```python
import torch

def _softmax(x, axis=-1):
    return torch.softmax(x, dim=axis)
def _gelu(x):
    return torch.nn.functional.gelu(x, approximate="tanh")
def _silu(x):
    return torch.nn.functional.silu(x)
def _sigmoid(x):
    return torch.sigmoid(x)
def _layernorm(x, axis=-1, eps=1e-5):
    m = x.mean(dim=axis, keepdim=True)
    v = x.var(dim=axis, keepdim=True, unbiased=False)
    return (x - m) / torch.sqrt(v + eps)
def _scatter_add(tgt, idx, src, axis=0):
    return tgt.clone().index_add_(axis, idx, src)
def _segment_sum(src, seg, n):
    out = torch.zeros((n,) + src.shape[1:], dtype=src.dtype)
    return out.index_add_(0, seg, src)
def _pad(x, pw):
    flat = tuple(v for pair in reversed(pw) for v in pair)
    return torch.nn.functional.pad(x, flat)

kernel_name = 'recurrent_scan__sliding_block_cached__geglu_ffn__decode'

def setup_inputs():

    _w = (lambda a: (lambda t: t.to(torch.bfloat16) if t.is_floating_point() else t)(torch.as_tensor(a)))
    def _A_setup():
        B, Sq, D = 2, 1, 576
        Hq, Hkv, Sk, Dh = 32, 16, 4096, 128
        assert Hq % Hkv == 0, (Hq, Hkv)
        return {
            "x": _w((lambda *s: torch.randn(*s, dtype=torch.bfloat16) * 0.05)(B, Sq, D)),
            "k_cache": _w((lambda *s: torch.randn(*s, dtype=torch.bfloat16) * 0.8)(B, Hkv, Sk, Dh)),
            "v_cache": _w((lambda *s: torch.randn(*s, dtype=torch.bfloat16) * 0.2)(B, Hkv, Sk, Dh)),
            "wq": _w((lambda *s: torch.randn(*s, dtype=torch.bfloat16) * 0.8)(D, Hq * Dh) * (D ** -0.5)),
            "wo": _w((lambda *s: torch.randn(*s, dtype=torch.bfloat16) * 0.2)(Hq * Dh, D) * ((Hq * Dh) ** -0.5)),
        }
    _A_in = _A_setup()

    def _B_setup():
        B, S, D, F = 2, 1, 576, 4608
        return {
            "x": _w((lambda *s: torch.randn(*s, dtype=torch.bfloat16) * 0.05)(B, S, D)),
            "w_gate": _w((lambda *s: torch.randn(*s, dtype=torch.bfloat16) * 0.1)(D, F)),
            "w_up": _w((lambda *s: torch.randn(*s, dtype=torch.bfloat16) * 0.1)(D, F)),
            "w_down": _w((lambda *s: torch.randn(*s, dtype=torch.bfloat16) * 0.1)(F, D)),
        }
    _B_in = _B_setup()

    return {
        "A_x": _A_in["x"],
        "A_k_cache": _A_in["k_cache"],
        "A_v_cache": _A_in["v_cache"],
        "A_wq": _A_in["wq"],
        "A_wo": _A_in["wo"],
        "B_x": _B_in["x"],
        "B_w_gate": _B_in["w_gate"],
        "B_w_up": _B_in["w_up"],
        "B_w_down": _B_in["w_down"],
    }

def reference(A_x, A_k_cache, A_v_cache, A_wq, A_wo, B_x, B_w_gate, B_w_up, B_w_down):
    def _A_ref(x, k_cache, v_cache, wq, wo):
        B, Sq, D = x.shape
        Hq, Dh = 32, 128
        Hkv, Sk = k_cache.shape[1], k_cache.shape[2]
        W = min(4096, max(256, Sk // 4))
        rep = Hq // Hkv
        q = (lambda x, *d: x.permute(*d))((x @ wq).reshape(B, Sq, Hq, Dh), 0, 2, 1, 3)
        k = (lambda x, n, axis: torch.repeat_interleave(x, n, dim=axis))(k_cache[:, :, Sk - W:, :], rep, axis=1)
        v = (lambda x, n, axis: torch.repeat_interleave(x, n, dim=axis))(v_cache[:, :, Sk - W:, :], rep, axis=1)
        scores = torch.einsum("bhqd,bhkd->bhqk", q, k) * (Dh ** -0.5)
        p = _softmax(scores, axis=-1)
        o = torch.einsum("bhqk,bhkd->bhqd", p, v)
        return (lambda x, *d: x.permute(*d))(o, 0, 2, 1, 3).reshape(B, Sq, Hq * Dh) @ wo

    def _B_ref(x, w_gate, w_up, w_down):
        return (_gelu(x @ w_gate) * (x @ w_up)) @ w_down

    x = A_x
    xn = _layernorm(x, axis=-1)
    s = _A_ref(xn, A_k_cache, A_v_cache, A_wq, A_wo)
    g = _silu(_B_ref(xn, B_w_gate, B_w_up, B_w_down))
    return x + s * g
```

```python
import re

_REG = re.compile(r'^-?\|?(?:abs\()?([vsa])(?:(\d+)|\[(\d+):(\d+)\])\)?\|?$')
TRANS = ("v_exp_f32", "v_log_f32", "v_rcp_f32", "v_rsq_f32", "v_sqrt_f32", "v_sin_f32", "v_cos_f32")

def regs(tok):
    tok = tok.strip()
    if tok == "vcc": return {("s", 106), ("s", 107)}
    if tok == "exec": return {("s", 126), ("s", 127)}
    if tok == "m0": return {("s", 124)}
    m = _REG.match(tok)
    if not m: return set()
    f = m.group(1)
    if m.group(2) is not None: return {(f, int(m.group(2)))}
    return {(f, i) for i in range(int(m.group(3)), int(m.group(4)) + 1)}

class Ins:
    def __init__(self, text):
        self.text = text
        body = text.split(";")[0].strip()
        self.label = body.endswith(":")
        self.op = body.split()[0] if body else ""
        rest = body[len(self.op):].strip()
        toks = [t.strip() for t in re.split(r',\s*(?![^\[]*\])', rest)] if rest else []
        if toks:
            last = toks[-1].split()
            mods = last[1:]
            toks[-1] = last[0]
        else:
            mods = []
        self.toks, self.mods = toks, mods
        op = self.op
        self.mfma = op.startswith("v_mfma")
        self.valu = op.startswith("v_") and not self.mfma
        self.vmem = op.startswith(("buffer_", "global_"))
        self.ds = op.startswith("ds_")
        self.salu = op.startswith("s_")
        self.dpp = "_dpp" in op
        self.trans = op.replace("_e32", "").replace("_e64", "") in TRANS
        self.permlane = op.startswith("v_permlane")
        self.readlane = op.startswith(("v_readlane", "v_readfirstlane"))
        self.w, self.r = set(), set()
        self.store_data = set()
        if self.label or not op: return
        R = [regs(t) for t in toks]
        if self.mfma:
            self.w = R[0]; self.r = R[1] | R[2] | R[3]; self.srcc = R[3]; self.ab = R[1] | R[2]
        elif self.valu:
            if self.permlane:
                self.w = R[0] | R[1]; self.r = R[0] | R[1]
            else:
                self.w = set(R[0]); rd = R[1:]
                if op.startswith(("v_add_co", "v_addc_co", "v_sub_co", "v_subb_co")):
                    self.w |= R[1]; rd = R[2:]
                for x in rd: self.r |= x
                if op.startswith(("v_fmac", "v_pk_fmac")) or self.dpp: self.r |= R[0]
        elif self.vmem:
            isload = "_load" in op
            lds = "lds" in mods
            if isload and not lds:
                self.w = R[0]
                for x in R[1:]: self.r |= x
            else:
                for x in R: self.r |= x
                if lds: self.r |= {("s", 124)}
                if "_store" in op and ("x3" in op or "x4" in op):
                    self.store_data = R[0] if op.startswith("buffer_") else R[1]
        elif self.ds:
            if op.startswith(("ds_read", "ds_bpermute", "ds_permute", "ds_swizzle")) or "_rtn" in op:
                self.w = R[0]
                for x in R[1:]: self.r |= x
            else:
                for x in R: self.r |= x
        elif self.salu:
            if op.startswith(("s_cmp", "s_bitcmp", "s_cbranch", "s_branch", "s_waitcnt", "s_nop", "s_sleep", "s_setprio", "s_barrier", "s_endpgm")):
                for x in R: self.r |= x
            elif R:
                self.w = R[0]
                for x in R[1:]: self.r |= x
                if "saveexec" in op: self.w = self.w | regs("exec")
    def states(self):
        if self.label or not self.op or self.op.startswith("."): return 0
        if self.op == "s_nop": return int(self.toks[0]) + 1
        return 1

def need(p, c):
    n = 0
    pv = {x for x in p.w if x[0] != "s"}; ps = {x for x in p.w if x[0] == "s"}
    if p.valu:
        if c.mfma and pv & c.r: n = max(n, 2)
        if c.valu and c.dpp and pv & c.r: n = max(n, 2)
        if c.permlane and pv & c.r: n = max(n, 2)
        if c.readlane and pv & c.r: n = max(n, 1)
        if p.trans and c.valu and pv & c.r: n = max(n, 1)
        if p.trans and (c.vmem or c.ds) and pv & c.r: n = max(n, 1)
        if ps & c.r:
            if c.vmem: n = max(n, 5)
            elif c.readlane: n = max(n, 4)
            elif c.valu or c.mfma: n = max(n, 2)
            elif c.salu and not c.op.startswith("s_cbranch"): n = max(n, 1)
    if p.mfma:
        if c.mfma:
            if p.w & c.ab: n = max(n, 8)
            elif p.w & c.srcc and p.w != c.srcc: n = max(n, 6)
            elif p.w & c.w and p.w != c.srcc: n = max(n, 8)
        elif (c.valu or c.vmem or c.ds) and p.w & (c.r | c.w): n = max(n, 8)
        if c.valu and p.srcc & c.w: n = max(n, 3)
    if p.store_data and (p.store_data & c.w): n = max(n, 2)
    if p.salu and ("s", 124) in p.w and c.vmem and ("s", 124) in c.r: n = max(n, 1)
    return n

class Asm:
    def __init__(self):
        self.ins = []
        self.uid = 0
    def __call__(self, text):
        for line in text.strip().split("\n"):
            line = line.strip()
            if line: self.ins.append(Ins(line))
    def label(self, base):
        self.uid += 1
        return f"L_{base}_{self.uid}"
    def finish(self):
        changed = True
        while changed:
            changed = False
            ins = self.ins
            pos = {i.op[:-1]: k for k, i in enumerate(ins) if i.label}
            preds = {}
            for k, i in enumerate(ins):
                if i.op.startswith(("s_cbranch", "s_branch")) and i.toks[0] in pos:
                    preds.setdefault(pos[i.toks[0]], []).append(k)
            def walk(k, dist, c, seen):
                best = 0
                while k >= 0 and dist < 9:
                    p = ins[k]
                    if p.label:
                        for q in preds.get(k, []):
                            if (q, dist) not in seen:
                                seen.add((q, dist))
                                best = max(best, walk(q, dist, c, seen))
                    else:
                        best = max(best, need(p, c) - dist)
                        dist += p.states()
                    k -= 1
                    if k >= 0 and ins[k].op in ("s_branch", "s_endpgm"): break
                return best
            for k, c in enumerate(ins):
                if c.label or not c.op or c.op.startswith("."): continue
                if k > 0 and ins[k - 1].op in ("s_branch", "s_endpgm"): continue
                miss = walk(k - 1, 0, c, set())
                if miss > 0:
                    ins.insert(k, Ins(f"s_nop {miss - 1}"))
                    changed = True
                    break
        return "\n".join(("" if i.label else "    ") + i.text for i in self.ins)
```

```python
import sys
from asmlib import Asm

NAME = "recurrent_scan__sliding_block_cached__geglu_ffn__decode"
NW = 14
WS_EPOCH = 0
WS_QP = 0x1000
WS_GUP = WS_QP + 128 * 1024
WS_OP = WS_GUP + 216 * 1024
WS_OS = WS_OP + 128 * 1024
WS_FP = WS_OS + 4096
WS_STAMP = 8 << 20
L_XNP = 0
L_VAL = 4608
L_STAT = 5120
L_TAG, L_E1, L_QFLAG, L_CNT0, L_CNT1, L_CNT2, L_DONE = 5248, 5252, 5256, 5260, 5264, 5268, 5272
L_QL = 7168
L_OT = 8192
L_BIG = 12288
LDS_BYTES = 83968
SPIN = 40000

def f32bits(x):
    import struct
    return struct.unpack("<I", struct.pack("<f", x))[0]

def gen(stamps=False, opt=None):
    opt = opt or {}
    NT = opt.get("nt", "nt")
    a = Asm()
    nstamp = [0]
    def stamp(i):
        if stamps: a(f"s_memrealtime s[{60+2*i}:{61+2*i}]")
    def finish_wave():
        if stamps:
            stamp(7)
            a("s_branch L_dump")
        else:
            a("s_endpgm")

    def spin(reads, check, sleep=1, wait="lgkmcnt(0)"):
        L = a.label("spin"); D = a.label("spun")
        a(f"s_mov_b32 s51, {SPIN}")
        a(f"{L}:")
        a(reads)
        a(f"s_waitcnt {wait}")
        a(check)
        a(f"s_cbranch_vccz {D}")
        a("s_sub_u32 s51, s51, 1")
        a("s_cbranch_scc1 L_abort")
        if sleep: a(f"s_sleep {sleep}")
        a(f"s_branch {L}")
        a(f"{D}:")

    def maxchain(regs, tmp):
        out = []
        rs = list(regs)
        cur = rs.pop(0)
        while rs:
            if len(rs) >= 2:
                out.append(f"v_max3_u32 v{tmp}, v{cur}, v{rs[0]}, v{rs[1]}"); rs = rs[2:]
            else:
                out.append(f"v_max_u32 v{tmp}, v{cur}, v{rs[0]}"); rs = rs[1:]
            cur = tmp
        out.append(f"v_cmp_eq_u32 vcc, -2, v{cur}")
        return "\n".join(out)

    def sel_masks():
        a("""
        v_and_b32 v9, 1, v1
        v_lshlrev_b32 v9, 4, v9
        v_mov_b32 v10, 0xffff
        v_lshlrev_b32 v10, v9, v10
        v_bfe_u32 v9, v1, 1, 2
        v_cmp_eq_u32 s[40:41], 0, v9
        v_cmp_eq_u32 s[42:43], 1, v9
        v_cmp_eq_u32 s[44:45], 2, v9
        v_cmp_eq_u32 s[46:47], 3, v9
        v_cndmask_b32 v4, 0, v10, s[40:41]
        v_cndmask_b32 v5, 0, v10, s[42:43]
        v_cndmask_b32 v6, 0, v10, s[44:45]
        v_cndmask_b32 v7, 0, v10, s[46:47]
        """)

    def get_tag():
        a(f"v_mov_b32 v9, {L_TAG}")
        spin("ds_read_b32 v8, v9", "v_cmp_eq_u32 vcc, -2, v8")
        a("v_and_b32 v8, 0xff, v8")

    def build_op(dst, val):
        for t in range(4):
            a(f"v_and_b32 v{dst+t}, v{val}, v{4+t}")

    def tag4(r):
        for t in range(4):
            a(f"v_and_or_b32 v{r+t}, v{r+t}, s50, v8")

    def srd(sr, ptr, nbytes):
        a(f"s_mov_b32 s{sr}, s{ptr}")
        a(f"s_mov_b32 s{sr+1}, s{ptr+1}")
        a(f"s_mov_b32 s{sr+2}, {nbytes}")
        a(f"s_mov_b32 s{sr+3}, 0x20000")

    W0, A0, V0, D0, D1 = 16, 52, 88, 100, 104

    def read_vals(n, addr, addr2):
        rd = f"ds_read_b128 v[{V0}:{V0+3}], v{addr}\nds_read_b128 v[{V0+4}:{V0+7}], v{addr} offset:64"
        if n == 9: rd += f"\nds_read_b32 v{V0+8}, v{addr2}"
        spin(rd, maxchain(range(V0, V0 + n), 9))

    def gemv(n, pending_after=0):
        for i in range(n): build_op(A0 + 4 * i, V0 + i)
        for i in range(n):
            a(f"s_waitcnt vmcnt({n-1-i+pending_after})")
            c = "0" if i == 0 else f"v[{D0}:{D0+3}]"
            a(f"v_mfma_f32_16x16x32_bf16 v[{D0}:{D0+3}], v[{A0+4*i}:{A0+4*i+3}], v[{W0+4*i}:{W0+4*i+3}], {c}")

    stamp(0)
    a(f"""
    s_cmp_ge_u32 s2, 256
    s_cbranch_scc1 L_exit
    s_load_dwordx16 s[16:31], s[0:1], 0
    s_load_dwordx8 s[32:39], s[0:1], 64
    v_lshrrev_b32 v2, 6, v0
    v_and_b32 v1, 63, v0
    v_readfirstlane_b32 s3, v2
    v_lshlrev_b32 v9, 3, v0
    v_mov_b32 v10, -2
    v_mov_b32 v11, -2
    ds_write_b64 v9, v[10:11]
    s_and_b32 s4, s2, 7
    s_lshr_b32 s5, s2, 4
    s_lshl_b32 s5, s5, 3
    s_or_b32 s4, s4, s5
    s_bfe_u32 s5, s2, 0x10003
    v_and_b32 v2, 15, v1
    v_lshrrev_b32 v3, 4, v1
    s_mov_b32 s50, 0xffffff00
    s_waitcnt lgkmcnt(0)
    s_barrier
    """)
    stamp(1)
    a("""
    s_cmp_eq_u32 s3, 13
    s_cbranch_scc1 L_M
    s_cmp_eq_u32 s5, 1
    s_cbranch_scc1 L_G
    s_cmp_lt_u32 s3, 4
    s_cbranch_scc1 L_K
    s_cmp_lt_u32 s3, 8
    s_cbranch_scc1 L_V
    s_cmp_lt_u32 s3, 12
    s_cbranch_scc1 L_WO
    L_exit:
    s_endpgm
    L_G:
    s_cmp_lt_u32 s3, 4
    s_cbranch_scc1 L_Q
    s_branch L_GU
    """)

    a("L_K:")
    srd(8, 18, 33554432)
    a(f"""
    s_lshr_b32 s40, s4, 2
    s_lshl_b32 s40, s40, 20
    s_and_b32 s41, s4, 3
    s_lshl_b32 s41, s41, 16
    s_add_u32 s40, s40, s41
    s_lshl_b32 s41, s3, 14
    s_add_u32 s40, s40, s41
    s_add_u32 s40, s40, {3072*256}
    s_add_u32 s41, s41, {L_BIG}
    v_lshlrev_b32 v9, 8, v3
    """)
    for q in range(4):
        a(f"v_add_u32 v{10+q}, {4*q}, v3")
        a(f"v_xor_b32 v{10+q}, v{10+q}, v2")
        a(f"v_lshl_add_u32 v{10+q}, v{10+q}, 4, v9")
    for grp in range(4):
        a("s_mov_b32 m0, s41")
        for q in range(4):
            a(f"buffer_load_dwordx4 v{10+q}, s[8:11], s40 offen offset:{q*1024} {NT} lds")
        if grp < 3:
            a("s_add_u32 s40, s40, 4096")
            a("s_add_u32 s41, s41, 4096")
    stamp(2)
    a(f"""
    s_lshl_b32 s41, s3, 14
    s_add_u32 s41, s41, {L_BIG}
    v_lshl_add_u32 v9, v2, 8, s41
    """)
    for st in range(4):
        a(f"v_or_b32 v{10+st}, {4*st}, v3")
        a(f"v_xor_b32 v{10+st}, v{10+st}, v2")
        a(f"v_lshl_add_u32 v{10+st}, v{10+st}, 4, v9")
    a("""
    v_cmp_eq_u32 s[40:41], 1, v3
    v_cmp_eq_u32 s[42:43], 2, v3
    v_cmp_eq_u32 s[44:45], 3, v3
    """)
    get_tag()
    a(f"""
    s_bfe_u32 s46, s4, 0x40002
    s_lshl_b32 s46, s46, 13
    s_lshr_b32 s47, s4, 6
    s_lshl_b32 s47, s47, 9
    s_add_u32 s46, s46, s47
    s_add_u32 s46, s46, {WS_QP}
    v_lshrrev_b32 v14, 5, v1
    v_lshlrev_b32 v14, 12, v14
    v_and_b32 v15, 31, v1
    v_lshl_add_u32 v14, v15, 4, v14
    v_add_u32 v14, s46, v14
    s_waitcnt vmcnt(0)
    """)
    stamp(3)
    for t in range(4):
        for st in range(4):
            a(f"ds_read_b128 v[{64+16*t+4*st}:{67+16*t+4*st}], v{10+st} offset:{t*4096}")
    a("""
    s_cmp_lg_u32 s3, 0
    s_cbranch_scc1 L_K_nogather1
    """)
    rd = "\n".join(f"global_load_dwordx4 v[{48+4*i}:{51+4*i}], v14, s[38:39] offset:{i*1024} sc1" for i in range(4))
    ck = [f"v_xor_b32 v{r}, v{r}, v8" for r in range(48, 64)]
    ck.append("v_or3_b32 v9, v48, v49, v50")
    for r in range(51, 63, 2): ck.append(f"v_or3_b32 v9, v9, v{r}, v{r+1}")
    ck += ["v_or_b32 v9, v9, v63", "v_and_b32 v9, 0xff, v9", "v_cmp_ne_u32 vcc, 0, v9"]
    spin(rd, "\n".join(ck), sleep=2, wait="vmcnt(0)")
    a(f"""
    v_pk_add_f32 v[48:49], v[48:49], v[52:53]
    v_pk_add_f32 v[50:51], v[50:51], v[54:55]
    v_pk_add_f32 v[56:57], v[56:57], v[60:61]
    v_pk_add_f32 v[58:59], v[58:59], v[62:63]
    v_pk_add_f32 v[48:49], v[48:49], v[56:57]
    v_pk_add_f32 v[50:51], v[50:51], v[58:59]
    v_cvt_pk_bf16_f32 v48, v48, v49
    v_cvt_pk_bf16_f32 v49, v50, v51
    v_lshrrev_b32 v14, 5, v1
    v_lshlrev_b32 v14, 8, v14
    v_lshl_add_u32 v14, v2, 4, v14
    v_and_b32 v15, 1, v3
    v_lshl_add_u32 v14, v15, 3, v14
    ds_write_b64 v14, v[48:49] offset:{L_QL}
    v_mov_b32 v14, {L_QFLAG}
    v_mov_b32 v15, 0
    s_mov_b64 exec, 1
    ds_write_b32 v14, v15
    s_mov_b64 exec, -1
    L_K_nogather1:
    v_mov_b32 v14, {L_QFLAG}
    """)
    spin("ds_read_b32 v15, v14", "v_cmp_eq_u32 vcc, -2, v15")
    stamp(4)
    a("""
    v_and_b32 v14, 1, v1
    v_lshlrev_b32 v14, 8, v14
    v_lshl_add_u32 v14, v3, 4, v14
    """)
    for st in range(4):
        a(f"ds_read_b128 v[{16+4*st}:{19+4*st}], v14 offset:{L_QL+64*st}")
    for st in range(4):
        a(f"s_waitcnt lgkmcnt({3-st})")
        for t in range(4):
            c = "0" if st == 0 else f"v[{32+4*t}:{35+4*t}]"
            a(f"v_mfma_f32_16x16x32_bf16 v[{32+4*t}:{35+4*t}], v[{16+4*st}:{19+4*st}], v[{64+16*t+4*st}:{67+16*t+4*st}], {c}")
    a(f"""
    s_mov_b32 s48, {f32bits(128**-0.5 * 1.4426950408889634)}
    v_cndmask_b32 v32, v32, v36, s[40:41]
    v_cndmask_b32 v33, v33, v37, s[40:41]
    v_cndmask_b32 v32, v32, v40, s[42:43]
    v_cndmask_b32 v33, v33, v41, s[42:43]
    v_cndmask_b32 v32, v32, v44, s[44:45]
    v_cndmask_b32 v33, v33, v45, s[44:45]
    v_mul_f32 v32, s48, v32
    v_mul_f32 v33, s48, v33
    v_mov_b32 v34, v32
    v_mov_b32 v35, v33
    """)
    def wave_reduce(op, regs):
        for mode in ("quad_perm:[1,0,3,2] row_mask:0xf", "quad_perm:[2,3,0,1] row_mask:0xf", "row_half_mirror row_mask:0xf",
                     "row_mirror row_mask:0xf", "row_bcast:15 row_mask:0xa", "row_bcast:31 row_mask:0xc"):
            for r in regs:
                a(f"{op}_dpp v{r}, v{r}, v{r} {mode} bank_mask:0xf")
    wave_reduce("v_max_f32", (34, 35))
    a(f"""
    v_readlane_b32 s46, v34, 63
    v_readlane_b32 s47, v35, 63
    v_subrev_f32 v32, s46, v32
    v_subrev_f32 v33, s47, v33
    v_exp_f32 v32, v32
    v_exp_f32 v33, v33
    s_lshl_b32 s48, s3, 8
    v_lshl_add_u32 v14, v1, 2, s48
    v_cvt_pk_bf16_f32 v32, v32, v32
    v_cvt_pk_bf16_f32 v33, v33, v33
    ds_write_b32 v14, v32 offset:{L_XNP}
    ds_write_b32 v14, v33 offset:{L_XNP+1024}
    v_and_b32 v34, 0xffff0000, v32
    v_and_b32 v35, 0xffff0000, v33
    """)
    stamp(5)
    wave_reduce("v_add_f32", (34, 35))
    a(f"""
    s_lshl_b32 s48, s3, 2
    v_mov_b32 v14, s48
    v_mov_b32 v36, s46
    v_mov_b32 v37, s47
    s_mov_b32 exec_lo, 0
    s_mov_b32 exec_hi, 0x80000000
    ds_write_b32 v14, v36 offset:{L_STAT}
    ds_write_b32 v14, v37 offset:{L_STAT+16}
    ds_write_b32 v14, v34 offset:{L_STAT+32}
    ds_write_b32 v14, v35 offset:{L_STAT+48}
    s_mov_b64 exec, -1
    """)
    finish_wave()

    a("L_V:")
    srd(8, 20, 33554432)
    a(f"""
    s_sub_u32 s42, s3, 4
    s_lshr_b32 s40, s4, 2
    s_lshl_b32 s40, s40, 20
    s_and_b32 s41, s4, 3
    s_lshl_b32 s41, s41, 16
    s_add_u32 s40, s40, s41
    s_lshl_b32 s41, s42, 14
    s_add_u32 s40, s40, s41
    s_add_u32 s40, s40, {3072*256}
    v_lshlrev_b32 v11, 10, v3
    v_lshl_add_u32 v11, v2, 4, v11
    """)
    for blk in range(4):
        for i in range(4):
            r = 64 + 16 * blk + 4 * i
            a(f"buffer_load_dwordx4 v[{r}:{r+3}], v11, s[8:11], s40 offen offset:{i*256} {NT}")
        if blk < 3: a("s_add_u32 s40, s40, 4096")
    stamp(2)
    a("s_mov_b32 s49, s42")
    sel_masks()
    get_tag()
    a("""
    v_bfe_u32 v11, v1, 3, 1
    v_lshlrev_b32 v11, 10, v11
    v_lshl_add_u32 v11, v3, 4, v11
    s_lshl_b32 s41, s49, 8
    v_add_u32 v11, s41, v11
    """)
    rd = "\n".join(f"ds_read_b128 v[{16+4*b}:{19+4*b}], v11 offset:{L_XNP+64*b}" for b in range(4))
    spin(rd, maxchain(range(16, 32), 9))
    stamp(3)
    for i in range(8): build_op(32 + 4 * i, 16 + i)
    a("""
    v_lshrrev_b32 v11, 5, v1
    v_lshlrev_b32 v11, 4, v11
    """)
    spin(f"ds_read_b128 v[16:19], v11 offset:{L_STAT}\nds_read_b128 v[20:23], v11 offset:{L_STAT+32}", maxchain(range(16, 24), 9))
    a("""
    v_max3_f32 v9, v16, v17, v18
    v_max_f32 v9, v9, v19
    v_sub_f32 v16, v16, v9
    v_sub_f32 v17, v17, v9
    v_sub_f32 v18, v18, v9
    v_sub_f32 v19, v19, v9
    v_exp_f32 v16, v16
    v_exp_f32 v17, v17
    v_exp_f32 v18, v18
    v_exp_f32 v19, v19
    v_mul_f32 v10, v16, v20
    v_fmac_f32 v10, v17, v21
    v_fmac_f32 v10, v18, v22
    v_fmac_f32 v10, v19, v23
    v_mov_b32 v11, v16
    s_cmp_eq_u32 s49, 1
    s_cselect_b64 vcc, -1, 0
    v_cndmask_b32 v11, v11, v17, vcc
    s_cmp_eq_u32 s49, 2
    s_cselect_b64 vcc, -1, 0
    v_cndmask_b32 v11, v11, v18, vcc
    s_cmp_eq_u32 s49, 3
    s_cselect_b64 vcc, -1, 0
    v_cndmask_b32 v11, v11, v19, vcc
    """)
    for i in range(16):
        a(f"s_waitcnt vmcnt({15-i})")
        c = "0" if i == 0 else "v[12:15]"
        o = 32 + 4 * (i % 8)
        a(f"v_mfma_f32_16x16x32_bf16 v[12:15], v[{o}:{o+3}], v[{64+4*i}:{67+4*i}], {c}")
        if i < 8: build_op(o, 24 + i)
    stamp(4)
    a(f"""
    s_lshl_b32 s41, s49, 10
    v_lshlrev_b32 v16, 4, v1
    v_add_u32 v17, s41, v16
    v_mov_b32 v18, {L_CNT0}
    v_mov_b32 v19, 1
    v_mul_f32 v12, v12, v11
    v_mul_f32 v13, v13, v11
    v_mul_f32 v14, v14, v11
    v_mul_f32 v15, v15, v11
    ds_write_b128 v17, v[12:15] offset:{L_OT}
    s_mov_b64 exec, 1
    ds_add_rtn_u32 v20, v18, v19
    s_mov_b64 exec, -1
    s_waitcnt lgkmcnt(0)
    v_readfirstlane_b32 s41, v20
    s_cmp_eq_u32 s41, 1
    s_cbranch_scc0 L_V_end
    ds_read_b128 v[24:27], v16 offset:{L_OT}
    ds_read_b128 v[28:31], v16 offset:{L_OT+1024}
    ds_read_b128 v[32:35], v16 offset:{L_OT+2048}
    ds_read_b128 v[36:39], v16 offset:{L_OT+3072}
    s_lshl_b32 s41, s4, 10
    s_add_u32 s41, s41, {WS_OP}
    v_add_u32 v16, s41, v16
    v_and_or_b32 v40, v9, s50, v8
    v_lshl_or_b32 v41, v9, 8, v8
    v_and_or_b32 v42, v10, s50, v8
    v_mov_b32 v43, v8
    s_lshl_b32 s41, s4, 5
    s_add_u32 s41, s41, {WS_OS}
    v_lshrrev_b32 v17, 5, v1
    v_lshl_add_u32 v17, v17, 4, s41
    s_waitcnt lgkmcnt(2)
    v_pk_add_f32 v[24:25], v[24:25], v[28:29]
    v_pk_add_f32 v[26:27], v[26:27], v[30:31]
    s_waitcnt lgkmcnt(0)
    v_pk_add_f32 v[32:33], v[32:33], v[36:37]
    v_pk_add_f32 v[34:35], v[34:35], v[38:39]
    v_pk_add_f32 v[24:25], v[24:25], v[32:33]
    v_pk_add_f32 v[26:27], v[26:27], v[34:35]
    """)
    tag4(24)
    a(f"""
    global_store_dwordx4 v16, v[24:27], s[38:39] sc1
    s_mov_b32 exec_lo, 1
    s_mov_b32 exec_hi, 1
    global_store_dwordx4 v17, v[40:43], s[38:39] sc1
    v_mov_b32 v18, {L_DONE}
    s_mov_b64 exec, 1
    ds_write_b32 v18, v19
    s_mov_b64 exec, -1
    """)
    stamp(5)
    a("L_V_end:")
    finish_wave()

    def s3_loads(nrows, wreg):
        a("""
        v_mul_u32_u24 v11, 4608, v3
        v_lshl_add_u32 v11, v2, 4, v11
        s_add_u32 s41, s40, 18432
        """)
        for i in range(8):
            so = "s40" if i < 4 else "s41"
            a(f"buffer_load_dwordx4 v[{W0+4*i}:{W0+4*i+3}], v11, s[8:11], {so} offen offset:{(i%4)*1152} {NT}")
        if nrows == 36:
            a("""
            v_mul_u32_u24 v11, 1152, v3
            v_lshl_add_u32 v11, v2, 4, v11
            s_add_u32 s41, s40, 36864
            """)
            a(f"buffer_load_dwordx4 v[{W0+32}:{W0+35}], v11, s[8:11], s41 offen {NT}")
    def val_addr():
        a(f"""
        v_bfe_u32 v12, v1, 3, 1
        v_mul_u32_u24 v12, 192, v12
        v_add_u32 v12, {L_VAL}, v12
        v_lshl_add_u32 v13, v3, 2, v12
        v_add_u32 v13, 128, v13
        v_lshl_add_u32 v12, v3, 4, v12
        """)
    def fp_addr(wsreg):
        a(f"""
        s_lshl_b32 s41, s5, 7
        s_add_u32 s41, s41, s4
        s_lshl_b32 s41, s41, 5
        s_lshl_b32 s42, {wsreg}, 18
        s_add_u32 s41, s41, s42
        s_add_u32 s41, s41, {WS_FP}
        v_lshrrev_b32 v14, 1, v1
        v_lshlrev_b32 v14, 13, v14
        v_and_b32 v15, 1, v1
        v_lshl_add_u32 v14, v15, 4, v14
        v_add_u32 v14, s41, v14
        """)

    a("L_WO:")
    srd(8, 24, 4096 * 1152)
    a("""
    s_sub_u32 s49, s3, 8
    s_mul_i32 s40, s4, 36864
    s_lshl_b32 s41, s49, 8
    s_add_u32 s40, s40, s41
    """)
    s3_loads(32, W0)
    stamp(2)
    sel_masks(); get_tag(); val_addr(); fp_addr("s49")
    read_vals(8, 12, 13)
    stamp(3)
    gemv(8)
    a("s_branch L_S3_pub")

    a("L_Q:")
    a("s_setprio 2")
    srd(8, 22, 576 * 8192)
    a("""
    s_and_b32 s40, s4, 3
    s_mul_i32 s40, s40, 144
    s_mul_i32 s41, s3, 36
    s_add_u32 s48, s40, s41
    s_lshl_b32 s40, s48, 13
    s_lshr_b32 s41, s4, 2
    s_lshl_b32 s41, s41, 8
    s_add_u32 s40, s40, s41
    v_lshlrev_b32 v11, 15, v3
    v_lshl_add_u32 v11, v2, 4, v11
    v_lshlrev_b32 v12, 13, v3
    v_lshl_add_u32 v12, v2, 4, v12
    """)
    for i in range(8):
        a(f"s_add_u32 s41, s40, {(16*(i//4) + i%4)*8192}")
        a(f"buffer_load_dwordx4 v[{W0+4*i}:{W0+4*i+3}], v11, s[8:11], s41 offen {NT}")
    a(f"s_add_u32 s41, s40, {32*8192}")
    a(f"buffer_load_dwordx4 v[{W0+32}:{W0+35}], v12, s[8:11], s41 offen {NT}")
    stamp(2)
    def xn_addr():
        a(f"""
        v_bfe_u32 v12, v1, 3, 1
        v_mul_u32_u24 v12, 2304, v12
        s_lshl_b32 s41, s48, 2
        v_add_u32 v12, s41, v12
        v_lshl_add_u32 v13, v3, 2, v12
        v_add_u32 v13, 128, v13
        v_lshl_add_u32 v12, v3, 4, v12
        """)
    sel_masks(); xn_addr(); get_tag()
    read_vals(9, 12, 13)
    stamp(3)
    gemv(9)
    a(f"""
    s_lshl_b32 s41, s3, 10
    v_lshlrev_b32 v16, 4, v1
    v_add_u32 v17, s41, v16
    v_mov_b32 v18, {L_CNT2}
    v_mov_b32 v19, 1
    ds_write_b128 v17, v[{D0}:{D0+3}] offset:{L_BIG}
    s_mov_b64 exec, 1
    ds_add_rtn_u32 v20, v18, v19
    s_mov_b64 exec, -1
    s_waitcnt lgkmcnt(0)
    v_readfirstlane_b32 s41, v20
    s_cmp_eq_u32 s41, 1
    s_cbranch_scc0 L_Q_down
    ds_read_b128 v[24:27], v16 offset:{L_BIG}
    ds_read_b128 v[28:31], v16 offset:{L_BIG+1024}
    ds_read_b128 v[32:35], v16 offset:{L_BIG+2048}
    ds_read_b128 v[36:39], v16 offset:{L_BIG+3072}
    s_lshl_b32 s41, s4, 10
    s_add_u32 s41, s41, {WS_QP}
    v_add_u32 v16, s41, v16
    s_waitcnt lgkmcnt(0)
    v_pk_add_f32 v[24:25], v[24:25], v[28:29]
    v_pk_add_f32 v[26:27], v[26:27], v[30:31]
    v_pk_add_f32 v[32:33], v[32:33], v[36:37]
    v_pk_add_f32 v[34:35], v[34:35], v[38:39]
    v_pk_add_f32 v[108:109], v[24:25], v[32:33]
    v_pk_add_f32 v[110:111], v[26:27], v[34:35]
    """)
    tag4(108)
    a("""
    global_store_dwordx4 v16, v[108:111], s[38:39] sc1
    L_Q_down:
    s_setprio 0
    """)
    stamp(4)
    srd(8, 32, 4608 * 1152)
    a("""
    s_mov_b32 s49, s3
    s_mul_i32 s40, s4, 41472
    s_lshl_b32 s41, s49, 8
    s_add_u32 s40, s40, s41
    """)
    s3_loads(36, W0)
    val_addr(); fp_addr("s49")
    read_vals(9, 12, 13)
    gemv(9)
    a("L_S3_pub:")
    tag4(D0)
    a(f"global_store_dwordx4 v14, v[{D0}:{D0+3}], s[38:39] sc1")
    stamp(5)
    a("""
    s_cmp_lg_u32 s49, 0
    s_cbranch_scc1 L_wave_end
    s_cmp_ge_u32 s2, 144
    s_cbranch_scc1 L_wave_end
    """)
    a(f"""
    s_lshl_b32 s41, s2, 13
    s_add_u32 s41, s41, {WS_FP}
    v_lshl_add_u32 v14, v1, 4, s41
    v_add_u32 v15, 4096, v14
    s_cmp_ge_u32 s2, 128
    s_cbranch_scc1 L_R_hi
    s_lshr_b32 s42, s2, 5
    s_lshl_b32 s42, s42, 7
    s_bfe_u32 s43, s2, 0x10004
    s_bfe_u32 s44, s2, 0x10003
    s_and_b32 s45, s2, 7
    s_branch L_R_col
    L_R_hi:
    s_movk_i32 s42, 512
    s_bfe_u32 s43, s2, 0x10003
    s_bfe_u32 s44, s2, 0x10002
    s_and_b32 s45, s2, 3
    L_R_col:
    s_mul_i32 s43, s43, 576
    s_lshl_b32 s44, s44, 2
    s_lshl_b32 s45, s45, 4
    s_add_u32 s42, s42, s43
    s_add_u32 s42, s42, s44
    s_add_u32 s42, s42, s45
    s_lshl_b32 s42, s42, 1
    v_and_b32 v12, 1, v1
    v_lshlrev_b32 v12, 4, v12
    v_and_b32 v13, 1, v3
    v_lshl_add_u32 v12, v13, 2, v12
    v_add_u32 v12, s42, v12
    global_load_dword v13, v12, s[16:17]
    """)
    rd = "\n".join(f"global_load_dwordx4 v[{16+4*i}:{19+4*i}], v{14+i//4}, s[38:39] offset:{(i%4)*1024} sc1" for i in range(8))
    ck = [f"v_xor_b32 v{r}, v{r}, v8" for r in range(16, 48)]
    ck.append("v_or3_b32 v9, v16, v17, v18")
    for r in range(19, 47, 2): ck.append(f"v_or3_b32 v9, v9, v{r}, v{r+1}")
    ck += ["v_or_b32 v9, v9, v47", "v_and_b32 v9, 0xff, v9", "v_cmp_ne_u32 vcc, 0, v9"]
    spin(rd, "\n".join(ck), sleep=0, wait="vmcnt(0)")
    stamp(6)
    for base in (16, 32):
        a(f"""
        v_pk_add_f32 v[{base}:{base+1}], v[{base}:{base+1}], v[{base+4}:{base+5}]
        v_pk_add_f32 v[{base+2}:{base+3}], v[{base+2}:{base+3}], v[{base+6}:{base+7}]
        v_pk_add_f32 v[{base+8}:{base+9}], v[{base+8}:{base+9}], v[{base+12}:{base+13}]
        v_pk_add_f32 v[{base+10}:{base+11}], v[{base+10}:{base+11}], v[{base+14}:{base+15}]
        v_pk_add_f32 v[{base}:{base+1}], v[{base}:{base+1}], v[{base+8}:{base+9}]
        v_pk_add_f32 v[{base+2}:{base+3}], v[{base+2}:{base+3}], v[{base+10}:{base+11}]
        """)
    for r in range(4): a(f"v_permlane32_swap_b32 v{16+r}, v{32+r}")
    for r in range(4): a(f"v_add_f32 v{16+r}, v{16+r}, v{32+r}")
    a("""
    v_permlane16_swap_b32 v16, v18
    v_permlane16_swap_b32 v17, v19
    v_add_f32 v16, v16, v18
    v_add_f32 v17, v17, v19
    """)
    for mode in ("row_ror:8", "row_ror:4", "quad_perm:[2,3,0,1]"):
        for r in (16, 17):
            a(f"v_add_f32_dpp v{r}, v{r}, v{r} {mode} row_mask:0xf bank_mask:0xf")
    a(f"""
    v_cvt_pk_bf16_f32 v16, v16, v17
    v_mov_b32 v17, v16
    v_permlane32_swap_b32 v16, v17
    s_mov_b32 s43, {f32bits(-1.4426950408889634)}
    v_lshlrev_b32 v18, 16, v17
    v_and_b32 v19, 0xffff0000, v17
    v_mul_f32 v20, s43, v18
    v_mul_f32 v21, s43, v19
    v_exp_f32 v20, v20
    v_exp_f32 v21, v21
    v_add_f32 v20, 1.0, v20
    v_add_f32 v21, 1.0, v21
    v_rcp_f32 v20, v20
    v_rcp_f32 v21, v21
    v_mul_f32 v18, v18, v20
    v_mul_f32 v19, v19, v21
    v_cvt_pk_bf16_f32 v17, v18, v19
    v_lshlrev_b32 v18, 16, v17
    v_and_b32 v19, 0xffff0000, v17
    v_lshlrev_b32 v20, 16, v16
    v_and_b32 v21, 0xffff0000, v16
    v_mul_f32 v18, v18, v20
    v_mul_f32 v19, v19, v21
    v_cvt_pk_bf16_f32 v17, v18, v19
    v_lshlrev_b32 v18, 16, v17
    v_and_b32 v19, 0xffff0000, v17
    v_lshlrev_b32 v20, 16, v13
    v_and_b32 v21, 0xffff0000, v13
    v_add_f32 v18, v18, v20
    v_add_f32 v19, v19, v21
    v_cvt_pk_bf16_f32 v17, v18, v19
    s_mov_b32 exec_lo, 0x00030003
    s_mov_b32 exec_hi, 0
    global_store_dword v12, v17, s[34:35]
    s_cmp_lg_u32 s2, 0
    s_cbranch_scc1 L_R_done
    s_mov_b64 exec, 1
    v_mov_b32 v18, {L_E1}
    ds_read_b32 v19, v18
    v_mov_b32 v18, {WS_EPOCH}
    s_waitcnt lgkmcnt(0)
    global_store_dword v18, v19, s[38:39]
    L_R_done:
    s_mov_b64 exec, -1
    L_wave_end:
    """)
    finish_wave()

    a("L_GU:")
    a("""
    s_setprio 1
    s_mul_i32 s46, s4, 9
    s_add_u32 s47, s46, s3
    s_sub_u32 s47, s47, 4
    s_lshr_b32 s52, s47, 4
    s_and_b32 s48, s47, 15
    s_mul_i32 s48, s48, 36
    s_mul_i32 s40, s48, 9216
    s_lshl_b32 s41, s52, 7
    s_add_u32 s40, s40, s41
    s_add_u32 s42, s28, s40
    s_addc_u32 s43, s29, 0
    s_add_u32 s44, s30, s40
    s_addc_u32 s45, s31, 0
    v_cmp_gt_u32 vcc, 8, v2
    v_mov_b32 v10, s44
    v_mov_b32 v11, s45
    v_mov_b32 v12, s42
    v_mov_b32 v13, s43
    v_cndmask_b32 v10, v10, v12, vcc
    v_cndmask_b32 v11, v11, v13, vcc
    v_and_b32 v12, 7, v1
    v_lshlrev_b32 v12, 4, v12
    v_mov_b32 v13, 0
    v_mov_b32 v15, 0
    v_mul_u32_u24 v14, 9216, v3
    v_lshl_add_u64 v[10:11], v[12:13], 0, v[10:11]
    v_lshl_add_u64 v[12:13], v[14:15], 0, v[10:11]
    v_lshl_add_u64 v[10:11], v[14:15], 2, v[10:11]
    s_mov_b32 s40, 9216
    s_mov_b32 s41, 0
    s_mov_b32 s42, 119808
    s_mov_b32 s43, 0
    s_mov_b32 s44, 294912
    s_mov_b32 s45, 0
    """)
    for i in range(8):
        a(f"global_load_dwordx4 v[{W0+4*i}:{W0+4*i+3}], v[10:11], off {NT}")
        if i < 7:
            a(f"v_lshl_add_u64 v[10:11], {'s[42:43]' if i == 3 else 's[40:41]'}, 0, v[10:11]")
    a("v_lshl_add_u64 v[12:13], s[44:45], 0, v[12:13]")
    a(f"global_load_dwordx4 v[{W0+32}:{W0+35}], v[12:13], off {NT}")
    stamp(2)
    a(f"""
    s_mul_i32 s57, s4, 9
    s_lshl_b32 s53, s52, 4
    s_sub_i32 s54, s53, s57
    s_add_i32 s55, s54, 16
    s_max_i32 s54, s54, 0
    s_min_i32 s55, s55, 9
    s_lshl_b32 s56, 1, s55
    s_lshl_b32 s58, 1, s54
    s_sub_i32 s54, s55, s54
    s_sub_i32 s54, s54, 3
    s_mul_i32 s59, s53, 7282
    s_sub_u32 s53, s56, s58
    s_lshr_b32 s59, s59, 16
    s_sub_u32 s59, s4, s59
    s_mul_i32 s56, s52, 3
    s_add_u32 s56, s56, s59
    s_lshl_b32 s56, s56, 10
    s_add_u32 s56, s56, {WS_GUP}
    s_lshr_b32 s57, s57, 4
    s_sub_u32 s55, s52, s57
    s_lshl_b32 s55, s55, 2
    s_add_u32 s55, s55, {L_CNT0}
    """)
    sel_masks(); xn_addr(); get_tag()
    read_vals(9, 12, 13)
    stamp(3)
    gemv(9)
    stamp(4)
    a(f"""
    s_lshl_b32 s41, s3, 10
    v_lshlrev_b32 v16, 4, v1
    v_add_u32 v17, s41, v16
    v_mov_b32 v18, s55
    v_mov_b32 v19, 1
    ds_write_b128 v17, v[{D0}:{D0+3}] offset:{L_BIG}
    s_mov_b64 exec, 1
    ds_add_rtn_u32 v20, v18, v19
    s_mov_b64 exec, -1
    s_waitcnt lgkmcnt(0)
    v_readfirstlane_b32 s41, v20
    s_cmp_eq_u32 s41, s54
    s_cbranch_scc0 L_GU_end
    """)
    for t in range(9):
        a(f"ds_read_b128 v[{24+4*t}:{27+4*t}], v16 offset:{L_BIG+4096+1024*t}")
    a("""
    v_add_u32 v16, s56, v16
    v_mov_b32 v60, 0
    v_mov_b32 v61, 0
    v_mov_b32 v62, 0
    v_mov_b32 v63, 0
    s_waitcnt lgkmcnt(0)
    """)
    for t in range(9):
        L = a.label("skip")
        a(f"""
        s_bitcmp1_b32 s53, {t}
        s_cbranch_scc0 {L}
        v_pk_add_f32 v[60:61], v[60:61], v[{24+4*t}:{25+4*t}]
        v_pk_add_f32 v[62:63], v[62:63], v[{26+4*t}:{27+4*t}]
        {L}:
        """)
    tag4(60)
    a(f"""
    global_store_dwordx4 v16, v[60:63], s[38:39] sc1
    v_mov_b32 v18, {L_DONE}
    s_mov_b64 exec, 1
    ds_add_u32 v18, v19
    s_mov_b64 exec, -1
    """)
    stamp(5)
    a("L_GU_end:")
    finish_wave()

    a("L_M:")
    a(f"""
    s_setprio 3
    s_load_dword s52, s[38:39], {WS_EPOCH}
    s_cmp_eq_u32 s5, 0
    s_cbranch_scc1 L_M_nox
    v_lshrrev_b32 v11, 5, v1
    v_mul_u32_u24 v11, 1152, v11
    v_and_b32 v12, 31, v1
    v_mul_u32_u24 v12, 36, v12
    v_add_u32 v11, v11, v12
    global_load_dwordx4 v[108:111], v11, s[16:17]
    global_load_dwordx4 v[112:115], v11, s[16:17] offset:16
    global_load_dword v116, v11, s[16:17] offset:32
    L_M_nox:
    """)
    if opt.get("prefetch", 1):
        a("""
        s_getpc_b64 s[40:41]
        L_pc:
        s_sub_u32 s40, s40, L_pc-KERNEL_START
        s_subb_u32 s41, s41, 0
        v_lshlrev_b32 v11, 7, v1
        v_add_u32 v12, 8192, v11
        v_min_u32 v11, KERNEL_END-KERNEL_START-4, v11
        v_min_u32 v12, KERNEL_END-KERNEL_START-4, v12
        global_load_dword v117, v11, s[40:41]
        global_load_dword v118, v12, s[40:41]
        """)
    a(f"""
    s_cmp_eq_u32 s5, 0
    s_cselect_b32 s8, s24, s32
    s_cselect_b32 s9, s25, s33
    s_mul_i32 s10, s5, {512*1152}
    s_add_u32 s10, s10, {4096*1152}
    s_mov_b32 s11, 0x20000
    s_mul_i32 s40, s5, 4608
    s_add_u32 s40, s40, 36864
    s_mul_i32 s40, s40, s4
    s_add_u32 s40, s40, 1024
    v_lshrrev_b32 v11, 3, v2
    v_lshl_add_u32 v11, v11, 2, v3
    v_mul_u32_u24 v11, 4608, v11
    v_and_b32 v12, 7, v1
    v_lshl_add_u32 v11, v12, 4, v11
    """)
    for i in range(4):
        a(f"buffer_load_dwordx4 v[{W0+4*i}:{W0+4*i+3}], v11, s[8:11], s40 offen offset:{i*1152} {NT}")
    a(f"""
    s_waitcnt lgkmcnt(0)
    s_add_u32 s52, s52, 1
    s_and_b32 s53, s52, 0xff
    v_mov_b32 v8, s53
    s_or_b32 s53, s53, 0x100
    v_mov_b32 v14, s53
    v_mov_b32 v15, s52
    v_mov_b32 v13, {L_TAG}
    s_mov_b64 exec, 1
    ds_write_b64 v13, v[14:15]
    s_mov_b64 exec, -1
    """)
    stamp(2)
    a("""
    s_cmp_eq_u32 s5, 0
    s_cbranch_scc1 L_MA
    """)
    npf = 2 if opt.get("prefetch", 1) else 0
    a(f"""
    v_mul_u32_u24 v11, 1152, v3
    v_lshl_add_u32 v11, v12, 4, v11
    s_add_u32 s41, s40, 36864
    buffer_load_dwordx4 v[{W0+16}:{W0+19}], v11, s[8:11], s41 offen {NT}
    s_waitcnt vmcnt({5+npf})
    """)
    X = 52
    for t in range(9):
        a(f"v_lshlrev_b32 v{X+2*t}, 16, v{108+t}")
        a(f"v_and_b32 v{X+2*t+1}, 0xffff0000, v{108+t}")
    a(f"v_pk_add_f32 v[70:71], v[{X}:{X+1}], v[{X+2}:{X+3}]")
    for t in range(2, 9): a(f"v_pk_add_f32 v[70:71], v[70:71], v[{X+2*t}:{X+2*t+1}]")
    a("v_add_f32 v70, v70, v71")
    def half_reduce(r):
        for mode in ("quad_perm:[1,0,3,2]", "quad_perm:[2,3,0,1]", "row_half_mirror", "row_mirror"):
            a(f"v_add_f32_dpp v{r}, v{r}, v{r} {mode} row_mask:0xf bank_mask:0xf")
        a(f"v_mov_b32 v{r+1}, v{r}")
        a(f"v_permlane16_swap_b32 v{r}, v{r+1}")
        a(f"v_add_f32 v{r}, v{r}, v{r+1}")
    half_reduce(70)
    a(f"""
    v_mul_f32 v70, {f32bits(1.0/576):#x}, v70
    v_mov_b32 v71, v70
    """)
    for t in range(9):
        a(f"v_pk_add_f32 v[{72+2*t}:{73+2*t}], v[{X+2*t}:{X+2*t+1}], v[70:71] neg_lo:[0,1] neg_hi:[0,1]")
    a("v_pk_mul_f32 v[90:91], v[72:73], v[72:73]")
    for t in range(1, 9): a(f"v_pk_fma_f32 v[90:91], v[{72+2*t}:{73+2*t}], v[{72+2*t}:{73+2*t}], v[90:91]")
    a("v_add_f32 v90, v90, v91")
    half_reduce(90)
    a(f"""
    v_mul_f32 v90, {f32bits(1.0/576):#x}, v90
    v_cvt_pk_bf16_f32 v70, v70, v90
    v_and_b32 v90, 0xffff0000, v70
    v_lshlrev_b32 v70, 16, v70
    v_mov_b32 v71, v70
    v_add_f32 v90, {f32bits(1e-5):#x}, v90
    v_cvt_pk_bf16_f32 v90, v90, v90
    v_and_b32 v90, 0xffff0000, v90
    v_sqrt_f32 v90, v90
    v_cvt_pk_bf16_f32 v90, v90, v90
    v_and_b32 v90, 0xffff0000, v90
    v_rcp_f32 v90, v90
    v_lshrrev_b32 v11, 5, v1
    v_mul_u32_u24 v11, 2304, v11
    v_and_b32 v13, 31, v1
    v_mul_u32_u24 v13, 72, v13
    v_add_u32 v11, v11, v13
    v_mov_b32 v91, v90
    """)
    for t in range(9):
        a(f"v_pk_add_f32 v[{X+2*t}:{X+2*t+1}], v[{X+2*t}:{X+2*t+1}], v[70:71] neg_lo:[0,1] neg_hi:[0,1]")
    for t in range(9):
        a(f"v_cvt_pk_bf16_f32 v{72+t}, v{X+2*t}, v{X+2*t+1}")
    for t in range(9):
        a(f"v_lshlrev_b32 v{X+2*t}, 16, v{72+t}")
        a(f"v_and_b32 v{X+2*t+1}, 0xffff0000, v{72+t}")
        a(f"v_pk_mul_f32 v[{X+2*t}:{X+2*t+1}], v[{X+2*t}:{X+2*t+1}], v[90:91]")
        a(f"v_cvt_pk_bf16_f32 v{X+2*t}, v{X+2*t}, v{X+2*t}")
        a(f"v_cvt_pk_bf16_f32 v{X+2*t+1}, v{X+2*t+1}, v{X+2*t+1}")
        a(f"ds_write_b64 v11, v[{X+2*t}:{X+2*t+1}] offset:{L_XNP+8*t}")
    stamp(3)
    a(f"""
    v_min_u32 v11, 35, v1
    v_cmp_lt_u32 vcc, 17, v11
    v_cndmask_b32 v13, 0, 1, vcc
    v_mul_u32_u24 v14, 18, v13
    v_sub_u32 v11, v11, v14
    v_mul_u32_u24 v110, 192, v13
    v_lshl_add_u32 v110, v11, 3, v110
    s_mul_i32 s41, s4, 36
    v_lshl_add_u32 v11, v11, 1, s41
    v_lshrrev_b32 v14, 6, v11
    v_mul_u32_u24 v108, 3072, v14
    v_lshl_add_u32 v108, v13, 9, v108
    v_bfe_u32 v15, v11, 2, 1
    v_lshl_add_u32 v108, v15, 8, v108
    v_bfe_u32 v15, v11, 3, 3
    v_lshl_add_u32 v108, v15, 4, v108
    v_and_b32 v15, 3, v11
    v_lshl_add_u32 v108, v15, 2, v108
    v_add_u32 v108, {WS_GUP}, v108
    v_lshlrev_b32 v14, 4, v14
    v_add_u32 v15, 15, v14
    v_mul_u32_u24 v14, 7282, v14
    v_mul_u32_u24 v15, 7282, v15
    v_lshrrev_b32 v14, 16, v14
    v_lshrrev_b32 v15, 16, v15
    v_sub_u32 v14, v15, v14
    v_lshl_add_u32 v109, v14, 10, v108
    v_cmp_eq_u32 s[54:55], 2, v14
    s_mul_i32 s41, s4, 9
    s_add_u32 s42, s41, 8
    s_lshr_b32 s41, s41, 4
    s_lshr_b32 s42, s42, 4
    s_sub_u32 s56, s42, s41
    s_sub_u32 s56, s56, 1
    """)
    sel_masks(); val_addr()
    a(f"v_mov_b32 v111, {L_DONE}")
    spin("ds_read_b32 v112, v111", "v_cmp_ne_u32 vcc, s56, v112", sleep=2)
    stamp(4)
    rd = """
    global_load_dwordx2 v[52:53], v108, s[38:39] sc1
    global_load_dwordx2 v[54:55], v108, s[38:39] offset:128 sc1
    global_load_dwordx2 v[56:57], v108, s[38:39] offset:1024 sc1
    global_load_dwordx2 v[58:59], v108, s[38:39] offset:1152 sc1
    global_load_dwordx2 v[60:61], v109, s[38:39] sc1
    global_load_dwordx2 v[62:63], v109, s[38:39] offset:128 sc1
    """
    ck = [f"v_xor_b32 v{r}, v{r}, v8" for r in range(52, 64)]
    ck.append("v_or3_b32 v9, v52, v53, v54")
    for r in range(55, 63, 2): ck.append(f"v_or3_b32 v9, v9, v{r}, v{r+1}")
    ck += ["v_or_b32 v9, v9, v63", "v_and_b32 v9, 0xff, v9", "v_cmp_ne_u32 vcc, 0, v9"]
    spin(rd, "\n".join(ck), sleep=0, wait="vmcnt(0)")
    c1 = -2.0 * 0.7978845608028654 * 1.4426950408889634
    a(f"""
    v_cndmask_b32 v60, 0, v60, s[54:55]
    v_cndmask_b32 v61, 0, v61, s[54:55]
    v_cndmask_b32 v62, 0, v62, s[54:55]
    v_cndmask_b32 v63, 0, v63, s[54:55]
    v_pk_add_f32 v[52:53], v[52:53], v[56:57]
    v_pk_add_f32 v[54:55], v[54:55], v[58:59]
    v_pk_add_f32 v[52:53], v[52:53], v[60:61]
    v_pk_add_f32 v[54:55], v[54:55], v[62:63]
    v_cvt_pk_bf16_f32 v56, v52, v53
    v_cvt_pk_bf16_f32 v57, v54, v55
    v_lshlrev_b32 v52, 16, v56
    v_and_b32 v53, 0xffff0000, v56
    v_lshlrev_b32 v54, 16, v57
    v_and_b32 v55, 0xffff0000, v57
    s_mov_b32 s41, {f32bits(0.044715 * c1)}
    v_mov_b32 v60, {f32bits(c1):#x}
    v_mul_f32 v56, v52, v52
    v_mul_f32 v57, v53, v53
    v_fma_f32 v56, v56, s41, v60
    v_fma_f32 v57, v57, s41, v60
    v_mul_f32 v56, v56, v52
    v_mul_f32 v57, v57, v53
    v_exp_f32 v56, v56
    v_exp_f32 v57, v57
    v_add_f32 v56, 1.0, v56
    v_add_f32 v57, 1.0, v57
    v_rcp_f32 v56, v56
    v_rcp_f32 v57, v57
    v_mul_f32 v52, v52, v56
    v_mul_f32 v53, v53, v57
    v_cvt_pk_bf16_f32 v56, v52, v53
    v_lshlrev_b32 v52, 16, v56
    v_and_b32 v53, 0xffff0000, v56
    v_mul_f32 v52, v52, v54
    v_mul_f32 v53, v53, v55
    v_cvt_pk_bf16_f32 v52, v52, v52
    v_cvt_pk_bf16_f32 v53, v53, v53
    ds_write_b64 v110, v[52:53] offset:{L_VAL}
    """)
    stamp(5)
    a(f"""
    ds_read_b128 v[{V0}:{V0+3}], v12
    ds_read_b128 v[{V0+4}:{V0+7}], v12 offset:64
    ds_read_b32 v{V0+8}, v13
    s_waitcnt lgkmcnt(0)
    """)
    build_op(A0 + 32, V0 + 8)
    a(f"v_mfma_f32_16x16x32_bf16 v[{D0}:{D0+3}], v[{A0+32}:{A0+35}], v[{W0+16}:{W0+19}], 0")
    a("s_branch L_M_gemv")

    a("L_MA:")
    a(f"""
    s_lshr_b32 s41, s4, 3
    s_lshl_b32 s41, s41, 2
    v_lshrrev_b32 v11, 5, v1
    v_lshlrev_b32 v11, 6, v11
    v_and_b32 v13, 3, v1
    v_add3_u32 v11, v11, v13, s41
    s_bfe_u32 s41, s4, 0x10002
    s_lshl_b32 s42, s41, 4
    s_add_u32 s42, s42, {WS_OS}
    v_lshl_add_u32 v109, v11, 5, s42
    s_lshl_b32 s41, s41, 9
    s_and_b32 s42, s4, 3
    s_lshl_b32 s42, s42, 6
    s_add_u32 s41, s41, s42
    s_add_u32 s41, s41, {WS_OP}
    v_lshl_add_u32 v108, v11, 10, s41
    v_bfe_u32 v13, v1, 2, 1
    v_lshl_add_u32 v108, v13, 8, v108
    v_bfe_u32 v13, v1, 3, 2
    v_lshl_add_u32 v108, v13, 4, v108
    v_lshrrev_b32 v110, 5, v1
    v_mul_u32_u24 v110, 192, v110
    v_bfe_u32 v13, v1, 2, 3
    v_lshl_add_u32 v110, v13, 4, v110
    s_mov_b32 s57, 0x07060501
    """)
    sel_masks(); val_addr()
    a(f"v_mov_b32 v111, {L_DONE}")
    spin("ds_read_b32 v112, v111", "v_cmp_eq_u32 vcc, -2, v112", sleep=2)
    stamp(4)
    rd = """
    global_load_dwordx4 v[52:55], v108, s[38:39] sc1
    global_load_dwordx4 v[56:59], v109, s[38:39] sc1
    """
    ck = [f"v_xor_b32 v{r}, v{r}, v8" for r in range(52, 60)]
    ck += ["v_or3_b32 v9, v52, v53, v54", "v_or3_b32 v9, v9, v55, v56", "v_or3_b32 v9, v9, v57, v58",
           "v_or_b32 v9, v9, v59", "v_and_b32 v9, 0xff, v9", "v_cmp_ne_u32 vcc, 0, v9"]
    spin(rd, "\n".join(ck), sleep=0, wait="vmcnt(0)")
    a("""
    v_perm_b32 v56, v56, v57, s57
    v_mov_b32 v57, v56
    v_max_f32_dpp v57, v57, v57 quad_perm:[1,0,3,2] row_mask:0xf bank_mask:0xf
    v_max_f32_dpp v57, v57, v57 quad_perm:[2,3,0,1] row_mask:0xf bank_mask:0xf
    v_sub_f32 v56, v56, v57
    v_exp_f32 v56, v56
    v_mul_f32 v58, v58, v56
    v_mul_f32 v52, v52, v56
    v_mul_f32 v53, v53, v56
    v_mul_f32 v54, v54, v56
    v_mul_f32 v55, v55, v56
    """)
    for mode in ("quad_perm:[1,0,3,2]", "quad_perm:[2,3,0,1]"):
        for r in (58, 52, 53, 54, 55):
            a(f"v_add_f32_dpp v{r}, v{r}, v{r} {mode} row_mask:0xf bank_mask:0xf")
    a(f"""
    v_rcp_f32 v58, v58
    v_mul_f32 v52, v52, v58
    v_mul_f32 v53, v53, v58
    v_mul_f32 v54, v54, v58
    v_mul_f32 v55, v55, v58
    v_cvt_pk_bf16_f32 v52, v52, v52
    v_cvt_pk_bf16_f32 v53, v53, v53
    v_cvt_pk_bf16_f32 v54, v54, v54
    v_cvt_pk_bf16_f32 v55, v55, v55
    s_mov_b32 exec_lo, 0x11111111
    s_mov_b32 exec_hi, 0x11111111
    ds_write_b128 v110, v[52:55] offset:{L_VAL}
    s_mov_b64 exec, -1
    """)
    stamp(5)
    a(f"""
    ds_read_b128 v[{V0}:{V0+3}], v12
    ds_read_b128 v[{V0+4}:{V0+7}], v12 offset:64
    v_mov_b32 v{D0}, 0
    v_mov_b32 v{D0+1}, 0
    v_mov_b32 v{D0+2}, 0
    v_mov_b32 v{D0+3}, 0
    s_waitcnt lgkmcnt(0)
    L_M_gemv:
    """)
    for i in range(8): build_op(A0 + 4 * i, V0 + i)
    for i in range(4):
        a(f"v_mfma_f32_16x16x32_bf16 v[{D0}:{D0+3}], v[{A0+4*i}:{A0+4*i+3}], v[{W0+4*i}:{W0+4*i+3}], v[{D0}:{D0+3}]")
        c = "0" if i == 0 else f"v[{D1}:{D1+3}]"
        a(f"v_mfma_f32_16x16x32_bf16 v[{D1}:{D1+3}], v[{A0+16+4*i}:{A0+16+4*i+3}], v[{W0+4*i}:{W0+4*i+3}], {c}")
    a(f"""
    s_lshl_b32 s41, s5, 7
    s_add_u32 s41, s41, s4
    s_lshl_b32 s41, s41, 5
    s_add_u32 s41, s41, {WS_FP + 128*8192}
    v_bfe_u32 v14, v1, 1, 2
    v_lshl_add_u32 v14, v3, 2, v14
    v_lshlrev_b32 v14, 13, v14
    v_and_b32 v15, 1, v1
    v_lshl_add_u32 v14, v15, 4, v14
    v_add_u32 v14, s41, v14
    """)
    for r in range(4):
        a(f"v_add_f32_dpp v{D0+r}, v{D1+r}, v{D0+r} row_ror:8 row_mask:0xf bank_mask:0xf")
    tag4(D0)
    a(f"""
    s_mov_b32 exec_lo, 0x00ff00ff
    s_mov_b32 exec_hi, 0x00ff00ff
    global_store_dwordx4 v14, v[{D0}:{D0+3}], s[38:39] sc1
    s_mov_b64 exec, -1
    """)
    stamp(6)
    finish_wave()

    a("L_abort:")
    if stamps:
        a("s_mov_b32 s74, -1")
        a("L_dump:")
        a(f"""
        s_waitcnt lgkmcnt(0)
        s_lshl_b32 s41, s2, 4
        s_add_u32 s41, s41, s3
        s_lshl_b32 s41, s41, 5
        s_add_u32 s41, s41, {WS_STAMP}
        v_mov_b32 v9, s41
        """)
        for i in range(8): a(f"v_mov_b32 v{16+i}, s{60+2*i}")
        a("""
        s_mov_b64 exec, 1
        global_store_dwordx4 v9, v[16:19], s[38:39]
        global_store_dwordx4 v9, v[20:23], s[38:39] offset:16
        """)
    a("s_endpgm")
    body = a.finish()
    init = ""
    if stamps:
        init = "\n".join(f"    s_mov_b32 s{60+2*i}, 0" for i in range(1, 8)) + "\n"
    hdr = open("cdna_kernels/" + NAME + ".s.ref").read().split("; Override launch")[0]
    return f"""{hdr}; @launch grid=(256,1,1) block=({NW*64},1,1) lds={LDS_BYTES}
.amdgcn_target "amdgcn-amd-amdhsa--gfx950"
.text
.globl {NAME}_kernel
.p2align 8
.type {NAME}_kernel,@function
{NAME}_kernel:
KERNEL_START:
{init}{body}
KERNEL_END:
.section .rodata,"a"
.p2align 6
.amdhsa_kernel {NAME}_kernel
  .amdhsa_next_free_vgpr 128
  .amdhsa_next_free_sgpr 96
  .amdhsa_accum_offset 128
  .amdhsa_group_segment_fixed_size 0
  .amdhsa_kernarg_size 96
  .amdhsa_user_sgpr_count 2
  .amdhsa_user_sgpr_kernarg_segment_ptr 1
  .amdhsa_system_sgpr_workgroup_id_x 1
.end_amdhsa_kernel
"""

if __name__ == "__main__":
    import hb
    for x in range(0, 1200): assert (x * 7282) >> 16 == x // 9
    open("k.s", "w").write(gen(False)); hb.build("k.s")
    open("ks.s", "w").write(gen(True)); hb.build("ks.s")
    print("built")
```

```python
import re

_REG = re.compile(r'^-?\|?(?:abs\()?([vsa])(?:(\d+)|\[(\d+):(\d+)\])\)?\|?$')
TRANS = ("v_exp_f32", "v_log_f32", "v_rcp_f32", "v_rsq_f32", "v_sqrt_f32", "v_sin_f32", "v_cos_f32")

def regs(tok):
    tok = tok.strip()
    if tok == "vcc": return {("s", 106), ("s", 107)}
    if tok == "exec": return {("s", 126), ("s", 127)}
    if tok == "m0": return {("s", 124)}
    m = _REG.match(tok)
    if not m: return set()
    f = m.group(1)
    if m.group(2) is not None: return {(f, int(m.group(2)))}
    return {(f, i) for i in range(int(m.group(3)), int(m.group(4)) + 1)}

class Ins:
    def __init__(self, text):
        self.text = text
        body = text.split(";")[0].strip()
        self.label = body.endswith(":")
        self.op = body.split()[0] if body else ""
        rest = body[len(self.op):].strip()
        toks = [t.strip() for t in re.split(r',\s*(?![^\[]*\])', rest)] if rest else []
        if toks:
            last = toks[-1].split()
            mods = last[1:]
            toks[-1] = last[0]
        else:
            mods = []
        self.toks, self.mods = toks, mods
        op = self.op
        self.mfma = op.startswith(("v_mfma", "v_smfmac"))
        self.valu = op.startswith("v_") and not self.mfma
        self.vmem = op.startswith(("buffer_", "global_"))
        self.ds = op.startswith("ds_")
        self.salu = op.startswith("s_")
        self.dpp = "_dpp" in op
        self.trans = op.replace("_e32", "").replace("_e64", "") in TRANS
        self.permlane = op.startswith("v_permlane")
        self.readlane = op.startswith(("v_readlane", "v_readfirstlane"))
        self.w, self.r = set(), set()
        self.store_data = set()
        if self.label or not op: return
        R = [regs(t) for t in toks]
        if self.mfma:
            self.w = R[0]; self.r = R[1] | R[2] | R[3]; self.srcc = R[3]; self.ab = R[1] | R[2]
            if op.startswith("v_smfmac"):
                self.r = self.r | R[0]; self.srcc = R[0]; self.ab = R[1] | R[2] | R[3]
        elif self.valu:
            if self.permlane:
                self.w = R[0] | R[1]; self.r = R[0] | R[1]
            else:
                self.w = set(R[0]); rd = R[1:]
                if op.startswith(("v_add_co", "v_addc_co", "v_sub_co", "v_subb_co")):
                    self.w |= R[1]; rd = R[2:]
                for x in rd: self.r |= x
                if op.startswith(("v_fmac", "v_pk_fmac")) or self.dpp: self.r |= R[0]
        elif self.vmem:
            isload = "_load" in op
            if "_atomic" in op:
                for x in R: self.r |= x
                if "sc0" in mods: self.w = R[0]
                return
            lds = "lds" in mods
            if isload and not lds:
                self.w = R[0]
                for x in R[1:]: self.r |= x
            else:
                for x in R: self.r |= x
                if lds: self.r |= {("s", 124)}
                if "_store" in op and ("x3" in op or "x4" in op):
                    self.store_data = R[0] if op.startswith("buffer_") else R[1]
        elif self.ds:
            if op.startswith(("ds_read", "ds_bpermute", "ds_permute", "ds_swizzle")) or "_rtn" in op:
                self.w = R[0]
                for x in R[1:]: self.r |= x
            else:
                for x in R: self.r |= x
        elif self.salu:
            if op.startswith(("s_cmp", "s_bitcmp", "s_cbranch", "s_branch", "s_waitcnt", "s_nop", "s_sleep", "s_setprio", "s_barrier", "s_endpgm")):
                for x in R: self.r |= x
            elif R:
                self.w = R[0]
                for x in R[1:]: self.r |= x
                if "saveexec" in op: self.w = self.w | regs("exec")
    def states(self):
        if self.label or not self.op or self.op.startswith("."): return 0
        if self.op == "s_nop": return int(self.toks[0]) + 1
        return 1

def need(p, c):
    n = 0
    pv = {x for x in p.w if x[0] != "s"}; ps = {x for x in p.w if x[0] == "s"}
    if p.valu:
        if c.mfma and pv & c.r: n = max(n, 2)
        if c.valu and c.dpp and pv & c.r: n = max(n, 2)
        if c.permlane and pv & c.r: n = max(n, 2)
        if c.readlane and pv & c.r: n = max(n, 1)
        if p.trans and c.valu and pv & c.r: n = max(n, 1)
        if p.trans and (c.vmem or c.ds) and pv & c.r: n = max(n, 1)
        if ps & c.r:
            if c.vmem: n = max(n, 5)
            elif c.readlane: n = max(n, 4)
            elif c.valu or c.mfma: n = max(n, 2)
            elif c.salu and not c.op.startswith("s_cbranch"): n = max(n, 1)
    if p.mfma:
        if c.mfma:
            if p.w & c.ab: n = max(n, 8)
            elif p.w & c.srcc and p.w != c.srcc: n = max(n, 6)
            elif p.w & c.w and p.w != c.srcc: n = max(n, 8)
        elif (c.valu or c.vmem or c.ds) and p.w & (c.r | c.w): n = max(n, 8)
        if c.valu and p.srcc & c.w: n = max(n, 3)
    if p.store_data and (p.store_data & c.w): n = max(n, 2)
    if p.salu and ("s", 124) in p.w and c.vmem and ("s", 124) in c.r: n = max(n, 1)
    return n

class Asm:
    def __init__(self):
        self.ins = []
        self.uid = 0
    def __call__(self, text):
        for line in text.strip().split("\n"):
            line = line.strip()
            if line: self.ins.append(Ins(line))
    def label(self, base):
        self.uid += 1
        return f"L_{base}_{self.uid}"
    def finish(self):
        changed = True
        while changed:
            changed = False
            ins = self.ins
            pos = {i.op[:-1]: k for k, i in enumerate(ins) if i.label}
            preds = {}
            for k, i in enumerate(ins):
                if i.op.startswith(("s_cbranch", "s_branch")) and i.toks[0] in pos:
                    preds.setdefault(pos[i.toks[0]], []).append(k)
            def walk(k, dist, c, seen):
                best = 0
                while k >= 0 and dist < 9:
                    p = ins[k]
                    if p.label:
                        for q in preds.get(k, []):
                            if (q, dist) not in seen:
                                seen.add((q, dist))
                                best = max(best, walk(q, dist, c, seen))
                    else:
                        best = max(best, need(p, c) - dist)
                        dist += p.states()
                    k -= 1
                    if k >= 0 and ins[k].op in ("s_branch", "s_endpgm"): break
                return best
            for k, c in enumerate(ins):
                if c.label or not c.op or c.op.startswith("."): continue
                if k > 0 and ins[k - 1].op in ("s_branch", "s_endpgm"): continue
                miss = walk(k - 1, 0, c, set())
                if miss > 0:
                    ins.insert(k, Ins(f"s_nop {miss - 1}"))
                    changed = True
                    break
        return "\n".join(("" if i.label else "    ") + i.text for i in self.ins)
```

```python
import sys, struct
from asmlib import Asm

NAME = "recurrent_scan__sliding_block_cached__geglu_ffn__decode"
NW = 14
WS_EPOCH = 0
WS_QP = 0x1000
WS_ST = WS_QP + 128 * 1024
WS_GUP = WS_ST + 128 * 128
WS_OP = WS_GUP + 216 * 1024
LOC = 488 * 1024
WS_FP = WS_QP + 2 * LOC
FPS = 72 * 128
WS_HINT = WS_FP + 36 * FPS
WS_STAMP = 8 << 20
L_XNP = 0
L_VAL = 4608
L_STM, L_STL = 5632, 5664
L_TAG, L_QFLAG, L_CNT0, L_CNT1, L_CNT2, L_CNT3, L_DONE, L_QGO = 5760, 5764, 5768, 5772, 5776, 5780, 5784, 5788
L_KRDY, L_VISS, L_CGO, L_TK = 5792, 5808, 5812, 5816
L_QL = 7168
L_OT = 8192
L_T3 = 12288
L_BIG = 20480
L_GT = L_BIG + 9216
LDS_BYTES = 86016
SPIN = 1000000
MF = "v_mfma_f32_16x16x32_bf16"
SM = "v_smfmac_f32_16x16x64_bf16"
DPPF = "row_mask:0xf bank_mask:0xf"

def f32bits(x): return struct.unpack("<I", struct.pack("<f", x))[0]
def vr(r, n=4): return f"v[{r}:{r+n-1}]"

DEF = dict(wa0=4, wa=8, wg=2, wg2=3, gburst=8, wl=6, wlg=6, vd=3, gd=0, qgo=6, qsets=2, qstag=12, lmask=7,
           warm=1, dyn=0, cda=12, cdg=5, fast4=1, perm=1)

def gen(stamps=False, opt=None):
    o_ = dict(DEF); o_.update(opt or {}); opt = o_
    a = Asm()
    DYN = opt["dyn"]
    def stamp(i):
        if stamps: a(f"s_memrealtime s[{60+2*i}:{61+2*i}]")
    def finish_wave():
        if stamps:
            stamp(7); a("s_branch L_dump")
        else:
            a("s_endpgm")
    def spin(reads, check, sleep=1, preloaded=False):
        L = a.label("spin"); D = a.label("spun"); C = a.label("chk")
        a(f"s_mov_b32 s51, {SPIN}")
        if preloaded: a(f"s_branch {C}")
        a(f"{L}:")
        a(reads)
        if preloaded: a(f"{C}:")
        a("s_waitcnt lgkmcnt(0)")
        a(check)
        a(f"s_cbranch_vccz {D}")
        a("s_sub_u32 s51, s51, 1")
        a("s_cbranch_scc1 L_abort")
        if sleep: a(f"s_sleep {sleep}")
        a(f"s_branch {L}")
        a(f"{D}:")
    def chain(op3, op2, regs, tmp):
        out = []; rs = list(regs); cur = rs.pop(0)
        while rs:
            if len(rs) >= 2:
                out.append(f"{op3} v{tmp}, v{cur}, v{rs[0]}, v{rs[1]}"); rs = rs[2:]
            else:
                out.append(f"{op2} v{tmp}, v{cur}, v{rs[0]}"); rs = rs[1:]
            cur = tmp
        return out, cur
    def maxchain(regs):
        out, cur = chain("v_max3_u32", "v_max_u32", regs, 9)
        return "\n".join(out + [f"v_cmp_eq_u32 vcc, -2, v{cur}"])
    def untag(dst, src, n):
        for r in range(n): a(f"v_xor_b32 v{dst+r}, v{src+r}, v8")
        out, cur = chain("v_or3_b32", "v_or_b32", range(dst, dst + n), 9)
        a("\n".join(out + [f"v_and_b32 v9, 0xff, v{cur}", "v_cmp_ne_u32 vcc, 0, v9"]))
    def poll(nsets, n, canon, raw0, issue, nloads, stag=1):
        L = a.label("poll"); D = a.label("polled")
        a(f"s_mov_b32 s51, {SPIN}")
        for k in range(nsets):
            issue(raw0 + k * n)
            if k < nsets - 1: a(f"s_sleep {stag}")
        a(f"{L}:")
        for k in range(nsets):
            a(f"s_waitcnt vmcnt({(nsets-1)*nloads})")
            untag(canon, raw0 + k * n, n)
            a(f"s_cbranch_vccz {D}")
            issue(raw0 + k * n)
        a("s_sub_u32 s51, s51, 1")
        a("s_cbranch_scc1 L_abort")
        a(f"s_branch {L}")
        a(f"{D}:")
    def sel_masks():
        a("""
        v_and_b32 v9, 1, v1
        v_lshlrev_b32 v9, 4, v9
        v_mov_b32 v10, 0xffff
        v_lshlrev_b32 v10, v9, v10
        v_bfe_u32 v9, v1, 1, 2
        v_cmp_eq_u32 s[76:77], 0, v9
        v_cmp_eq_u32 s[78:79], 1, v9
        v_cmp_eq_u32 s[80:81], 2, v9
        v_cmp_eq_u32 s[82:83], 3, v9
        v_cndmask_b32 v4, 0, v10, s[76:77]
        v_cndmask_b32 v5, 0, v10, s[78:79]
        v_cndmask_b32 v6, 0, v10, s[80:81]
        v_cndmask_b32 v7, 0, v10, s[82:83]
        """)
    def get_tag():
        a(f"v_mov_b32 v9, {L_TAG}")
        spin("ds_read_b32 v8, v9", "v_cmp_eq_u32 vcc, -2, v8")
    def wait_flag(addr, sleep=1):
        a(f"v_mov_b32 v9, {addr}")
        spin("ds_read_b32 v10, v9", "v_cmp_eq_u32 vcc, -2, v10", sleep=sleep)
    def wait_value(addr, val, sleep=1):
        a(f"v_mov_b32 v9, {addr}")
        spin("ds_read_b32 v10, v9", f"v_cmp_ne_u32 vcc, {val}, v10", sleep=sleep)
    def lane0(op, addr, val):
        a(f"""
        v_mov_b32 v9, {addr}
        v_mov_b32 v10, {val}
        s_mov_b64 exec, 1
        {op} v9, v10
        s_mov_b64 exec, -1
        """)
    def set_flag(addr, val=0): lane0("ds_write_b32", addr, val)
    def bump(addr): lane0("ds_add_u32", addr, 1)
    def build_op(dst, val):
        for t in range(4): a(f"v_and_b32 v{dst+t}, v{val}, v{4+t}")
    def tag4(r):
        for t in range(4): a(f"v_and_or_b32 v{r+t}, v{r+t}, s50, v8")
    def add4(d, x, y):
        a(f"v_pk_add_f32 {vr(d,2)}, {vr(x,2)}, {vr(y,2)}")
        a(f"v_pk_add_f32 {vr(d+2,2)}, {vr(x+2,2)}, {vr(y+2,2)}")
    def wave_reduce(op, regs):
        for mode in ("quad_perm:[1,0,3,2] row_mask:0xf", "quad_perm:[2,3,0,1] row_mask:0xf", "row_half_mirror row_mask:0xf",
                     "row_mirror row_mask:0xf", "row_bcast:15 row_mask:0xa", "row_bcast:31 row_mask:0xc"):
            for r in regs: a(f"{op}_dpp v{r}, v{r}, v{r} {mode} bank_mask:0xf")
    def la_prep(cnt):
        a(f"v_mov_b32 v9, {cnt}")
        a("v_mov_b32 v10, 1")
    def last_arriver(expect, skip, reads):
        a("""
        s_mov_b64 exec, 1
        ds_add_rtn_u32 v11, v9, v10
        s_mov_b64 exec, -1
        """)
        for r in reads: a(r)
        a(f"""
        s_waitcnt lgkmcnt({len(reads)})
        v_readfirstlane_b32 s84, v11
        s_cmp_eq_u32 s84, {expect}
        s_cbranch_scc0 {skip}
        """)
    def lin_addr(r):
        a(f"""
        v_and_b32 v{r}, 33, v1
        v_mul_u32_u24 v{r}, 0x110, v{r}
        v_and_b32 v{r}, 0x300, v{r}
        v_bfe_u32 v9, v1, 1, 4
        v_lshl_add_u32 v{r}, v9, 4, v{r}
        """)
    def done_target_g(dst):
        a(f"""
        s_mul_i32 s41, s6, 9
        s_add_u32 s42, s41, 8
        s_lshr_b32 s41, s41, 4
        s_lshr_b32 s42, s42, 4
        s_sub_u32 {dst}, s42, s41
        s_sub_u32 {dst}, {dst}, 1
        """)
    def q_head(dst):
        if not opt["perm"]: return f"s_lshr_b32 {dst}, s7, 2"
        return f"""
        s_and_b32 {dst}, s6, 12
        s_lshr_b32 {dst}, 0x1320, {dst}
        s_and_b32 {dst}, {dst}, 3
        s_lshl2_add_u32 {dst}, s4, {dst}
        """
    def get_slot():
        if not DYN:
            a("s_mov_b32 s97, s6"); return
        wait_flag(L_TK, sleep=2)
        a("v_readfirstlane_b32 s97, v10")

    WQ, WU, W3, OPR, V0, D0, D1, D2 = 16, 32, 68, 104, 116, 12, 48, 52
    AXQ, AXU, AXU2, ALN, AW, AW2 = 112, 113, 114, 115, 125, 126

    stamp(0)
    a(f"""
    s_cmp_ge_u32 s2, 256
    s_cbranch_scc1 L_exit
    s_load_dwordx16 s[16:31], s[0:1], 0
    s_load_dwordx8 s[32:39], s[0:1], 64
    s_load_dwordx2 s[12:13], s[0:1], 88
    s_getpc_b64 s[40:41]
    L_pc:
    v_lshlrev_b32 v9, 4, v0
    v_min_u32 v9, KERNEL_END-L_pc-4, v9
    global_load_dword v67, v9, s[40:41]
    v_lshrrev_b32 v2, 6, v0
    v_and_b32 v1, 63, v0
    v_readfirstlane_b32 s3, v2
    v_lshlrev_b32 v9, 3, v0
    v_mov_b32 v4, -2
    v_mov_b32 v5, -2
    ds_write_b64 v9, v[4:5]
    s_and_b32 s4, s2, 7
    s_lshr_b32 s6, s2, 4
    s_bfe_u32 s5, s2, 0x10003
    s_lshl_b32 s7, s4, 4
    s_add_u32 s7, s7, s6
    v_and_b32 v2, 15, v1
    v_lshrrev_b32 v3, 4, v1
    s_mov_b32 s50, 0xffffff00
    s_mov_b32 s11, 0x20000
    s_mov_b32 s14, 0x1000000
    s_mov_b32 s15, 0x20000
    s_sub_u32 s3, s3, 1
    s_cbranch_scc0 L_notM
    s_setprio 3
    v_lshrrev_b32 v11, 5, v1
    v_mul_u32_u24 v11, 1152, v11
    v_and_b32 v12, 31, v1
    v_mul_u32_u24 v12, 36, v12
    v_add_u32 v11, v11, v12
    s_cmp_eq_u32 s5, 0
    s_waitcnt lgkmcnt(0)
    s_cbranch_scc1 L_M_nox
    global_load_dwordx4 v[108:111], v11, s[16:17]
    global_load_dwordx4 v[112:115], v11, s[16:17] offset:16
    global_load_dword v116, v11, s[16:17] offset:32
    L_M_nox:
    s_load_dword s52, s[38:39], {WS_EPOCH}
    s_barrier
    s_branch L_M2
    L_notM:
    s_cmp_ge_u32 s3, 9
    s_cbranch_scc1 L_S
    s_cmp_eq_u32 s5, 1
    s_cbranch_scc1 L_X
    s_cmp_ge_u32 s3, 4
    s_cbranch_scc1 L_S
    s_bfe_u32 s40, s6, 0x10002
    s_lshl_b32 s40, s40, 4
    s_lshr_b32 s41, s7, 3
    s_add_u32 s40, s40, s41
    s_lshl_b32 s40, s40, 20
    s_and_b32 s41, s6, 3
    s_lshl_b32 s41, s41, 16
    s_add_u32 s40, s40, s41
    s_lshl_b32 s41, s3, 14
    s_add_u32 s40, s40, s41
    s_add_u32 s40, s40, {3072*256}
    s_mov_b32 s42, s40
    s_add_u32 s41, s41, {L_BIG}
    s_mov_b32 m0, s41
    v_lshlrev_b32 v9, 8, v3
    """)
    for q in range(4):
        a(f"v_add_u32 v{16+q}, {4*q}, v3")
        a(f"v_xor_b32 v{16+q}, v{16+q}, v2")
        a(f"v_lshl_add_u32 v{16+q}, v{16+q}, 4, v9")
    a("""
    s_mov_b32 s10, 33554432
    s_waitcnt lgkmcnt(0)
    s_mov_b32 s8, s18
    s_mov_b32 s9, s19
    """)
    stamp(1)
    def l_issue(i):
        if i < 16:
            if i and i % 4 == 0:
                a("s_add_u32 s41, s41, 4096"); a("s_mov_b32 m0, s41"); a("s_add_u32 s40, s40, 4096")
            a(f"buffer_load_dwordx4 v{16+i%4}, s[8:11], s40 offen offset:{(i%4)*1024} nt lds")
        else:
            k = i - 16
            if k == 0:
                a("s_mov_b32 s8, s20"); a("s_mov_b32 s9, s21")
            if k and k % 4 == 0: a("s_add_u32 s42, s42, 4096")
            a(f"buffer_load_dwordx4 {vr(64+4*k)}, v20, s[8:11], s42 offen offset:{(k%4)*256} nt")
    WA0, WA = opt["wa0"], opt["wa"]
    for i in range(WA0): l_issue(i)
    a("""
    s_barrier
    s_branch L_L
    L_X:
    s_and_b32 s40, s6, 3
    s_mul_i32 s40, s40, 144
    s_lshl_b32 s41, s3, 4
    s_add_u32 s47, s40, s41
    s_lshl_b32 s40, s47, 13
    """ + q_head("s41") + """
    s_lshl_b32 s41, s41, 8
    s_add_u32 s40, s40, s41
    v_lshlrev_b32 v11, 15, v3
    v_lshl_add_u32 v11, v2, 4, v11
    s_mov_b32 s10, 4718592
    s_movk_i32 s42, 0x2000
    s_waitcnt lgkmcnt(0)
    s_mov_b32 s8, s22
    s_mov_b32 s9, s23
    """)
    stamp(1)
    for i in range(4):
        a(f"buffer_load_dwordx4 {vr(WQ+4*i)}, v11, s[8:11], s40 offen nt")
        if i < 3: a("s_add_u32 s40, s40, s42")
    a("""
    s_barrier
    s_branch L_X2
    L_S:
    s_cmp_eq_u32 s5, 0
    s_cbranch_scc1 L_S_bar
    v_lshlrev_b32 v9, 4, v0
    v_mov_b32 v4, 0
    v_mov_b32 v5, 0
    v_mov_b32 v6, 0
    v_mov_b32 v7, 0
    """ + "\n".join(f"ds_write_b128 v9, v[4:7] offset:{L_GT-10240+4096*t}" for t in range(5)) + """
    L_S_bar:
    s_waitcnt lgkmcnt(0)
    s_barrier
    s_cmp_lt_u32 s3, 8
    s_cbranch_scc1 L_S2
    s_cmp_ge_u32 s3, 9
    s_cbranch_scc1 L_D
    L_exit:
    s_endpgm
    """)

    a(f"""
    L_L:
    s_setprio 3
    v_lshlrev_b32 v20, 10, v3
    v_lshl_add_u32 v20, v2, 4, v20
    s_lshl_b32 s44, s3, 2
    s_add_u32 s44, s44, {L_KRDY}
    """)
    sel_masks()
    landed = 0
    for n in range(WA0, 32):
        w = min(WA, WA0 + (n - WA0 + 1) // 2)
        prev = landed
        if n - landed >= w:
            a(f"s_waitcnt vmcnt({w-1})")
            landed = n - w + 1
        l_issue(n)
        if prev < opt["qgo"] <= landed: set_flag(L_QGO)
        if prev < 16 <= landed: set_flag("s44")
        if DYN and n == 31 - opt["cda"]: bump(L_CGO)
        if n == 31 - opt["vd"]: bump(L_VISS)
    assert landed >= 16
    stamp(3)
    get_tag()
    a(f"""
    v_bfe_u32 v11, v1, 3, 1
    v_lshlrev_b32 v11, 10, v11
    v_lshl_add_u32 v11, v3, 4, v11
    s_lshl_b32 s41, s3, 8
    v_add_u32 v11, s41, v11
    s_lshl_b32 s45, s7, 10
    s_add_u32 s45, s45, {WS_OP}
    s_add_u32 s46, s45, {LOC}
    """)
    spin("\n".join(f"ds_read_b128 {vr(16+4*b)}, v11 offset:{L_XNP+64*b}" for b in range(4)), maxchain(range(16, 32)))
    stamp(4)
    for i in range(2): build_op(32 + 4 * i, 16 + i)
    nb = 2
    for i in range(16):
        a(f"s_waitcnt vmcnt({15-i})")
        a(f"{MF} v[12:15], {vr(32+4*(i%8))}, {vr(64+4*i)}, {'0' if i == 0 else 'v[12:15]'}")
        for _ in range(1 if i < 6 else 2):
            if nb < 16: build_op(32 + 4 * (nb % 8), 16 + nb); nb += 1
        if i == 11:
            a("""
            s_lshl_b32 s41, s3, 10
            v_lshlrev_b32 v17, 4, v1
            v_add_u32 v18, s41, v17
            """)
            lin_addr(19)
            la_prep(L_CNT0)
    stamp(5)
    a(f"ds_write_b128 v18, v[12:15] offset:{L_OT}")
    last_arriver(1, "L_wave_end", [f"ds_read_b128 {vr(32+4*t)}, v19 offset:{L_OT+1024*t}" for t in range(4)])
    a("s_waitcnt lgkmcnt(2)")
    add4(32, 32, 36)
    a("s_waitcnt lgkmcnt(0)")
    add4(40, 40, 44); add4(32, 32, 40)
    tag4(32)
    a("buffer_store_dwordx4 v[32:35], v17, s[12:15], s46 offen")
    set_flag(L_DONE)
    a("buffer_store_dwordx4 v[32:35], v17, s[12:15], s45 offen sc1")
    stamp(6)
    finish_wave()

    a(f"""
    L_S2:
    s_sub_u32 s49, s3, 4
    s_lshl_b32 s41, s49, 14
    s_add_u32 s41, s41, {L_BIG}
    v_lshl_add_u32 v11, v2, 8, s41
    """)
    for st in range(4):
        a(f"v_or_b32 v{12+st}, {4*st}, v3")
        a(f"v_xor_b32 v{12+st}, v{12+st}, v2")
        a(f"v_lshl_add_u32 v{12+st}, v{12+st}, 4, v11")
    a(f"""
    v_cmp_eq_u32 s[54:55], 1, v3
    v_cmp_eq_u32 s[56:57], 2, v3
    v_cmp_eq_u32 s[58:59], 3, v3
    s_lshl_b32 s53, s49, 2
    s_add_u32 s47, s53, {L_KRDY}
    v_mov_b32 v4, s53
    v_mov_b32 v5, 0
    s_lshl_b32 s48, s49, 8
    v_lshl_add_u32 v6, v1, 2, s48
    """)
    get_tag()
    wait_flag("s47", sleep=2)
    stamp(4)
    a("s_waitcnt vmcnt(0)")
    for t in range(4):
        for st in range(4):
            a(f"ds_read_b128 {vr(64+16*t+4*st)}, v{12+st} offset:{t*4096}")
    a("""
    v_and_b32 v11, 1, v1
    v_lshlrev_b32 v11, 8, v11
    v_lshl_add_u32 v11, v3, 4, v11
    """)
    wait_flag(L_QFLAG)
    stamp(2)
    for st in range(4): a(f"ds_read_b128 {vr(16+4*st)}, v11 offset:{L_QL+64*st}")
    for st in range(4):
        a(f"s_waitcnt lgkmcnt({3-st})")
        for t in range(4):
            a(f"{MF} {vr(32+4*t)}, {vr(16+4*st)}, {vr(64+16*t+4*st)}, {'0' if st == 0 else vr(32+4*t)}")
    a(f"""
    s_mov_b32 s48, {f32bits(128**-0.5 * 1.4426950408889634)}
    v_cndmask_b32 v32, v32, v36, s[54:55]
    v_cndmask_b32 v33, v33, v37, s[54:55]
    v_cndmask_b32 v32, v32, v40, s[56:57]
    v_cndmask_b32 v33, v33, v41, s[56:57]
    v_cndmask_b32 v32, v32, v44, s[58:59]
    v_cndmask_b32 v33, v33, v45, s[58:59]
    v_mul_f32 v32, s48, v32
    v_mul_f32 v33, s48, v33
    v_mov_b32 v34, v32
    v_mov_b32 v35, v33
    """)
    wave_reduce("v_max_f32", (34, 35))
    a(f"""
    s_mov_b32 exec_lo, 0
    s_mov_b32 exec_hi, 0x80000000
    ds_write_b32 v4, v34 offset:{L_STM}
    ds_write_b32 v4, v35 offset:{L_STM+16}
    s_mov_b64 exec, -1
    """)
    spin(f"ds_read_b128 v[36:39], v5 offset:{L_STM}\nds_read_b128 v[40:43], v5 offset:{L_STM+16}", maxchain(range(36, 44)), sleep=0)
    a(f"""
    v_max3_f32 v36, v36, v37, v38
    v_max3_f32 v40, v40, v41, v42
    v_max_f32 v36, v36, v39
    v_max_f32 v40, v40, v43
    v_sub_f32 v32, v32, v36
    v_sub_f32 v33, v33, v40
    v_exp_f32 v32, v32
    v_exp_f32 v33, v33
    v_cvt_pk_bf16_f32 v32, v32, v32
    v_cvt_pk_bf16_f32 v33, v33, v33
    ds_write_b32 v6, v32 offset:{L_XNP}
    ds_write_b32 v6, v33 offset:{L_XNP+1024}
    v_and_b32 v34, 0xffff0000, v32
    v_and_b32 v35, 0xffff0000, v33
    """)
    stamp(3)
    wave_reduce("v_add_f32", (34, 35))
    la_prep(L_CNT1)
    a(f"""
    v_lshrrev_b32 v5, 5, v1
    v_lshlrev_b32 v5, 4, v5
    s_mov_b32 exec_lo, 0
    s_mov_b32 exec_hi, 0x80000000
    ds_write_b32 v4, v34 offset:{L_STL}
    ds_write_b32 v4, v35 offset:{L_STL+16}
    """)
    last_arriver(1, "L_wave_end", [f"ds_read_b128 v[44:47], v5 offset:{L_STL}"])
    a(f"""
    v_cmp_lt_u32 vcc, 31, v1
    v_lshlrev_b32 v5, 2, v5
    v_lshl_add_u32 v5, v2, 4, v5
    v_cndmask_b32 v36, v36, v40, vcc
    s_lshl_b32 s45, s7, 7
    s_add_u32 s45, s45, {WS_ST}
    s_add_u32 s46, s45, {LOC}
    s_waitcnt lgkmcnt(0)
    v_add_f32 v44, v44, v45
    v_add_f32 v46, v46, v47
    v_add_f32 v44, v44, v46
    v_and_or_b32 v28, v36, s50, v8
    v_lshl_or_b32 v29, v36, 8, v8
    v_and_or_b32 v30, v44, s50, v8
    v_mov_b32 v31, v8
    s_mov_b32 exec_lo, 15
    s_mov_b32 exec_hi, 15
    buffer_store_dwordx4 v[28:31], v5, s[12:15], s46 offen
    buffer_store_dwordx4 v[28:31], v5, s[12:15], s45 offen sc1
    s_mov_b64 exec, -1
    """)
    stamp(5)
    finish_wave()

    a(f"""
    L_X2:
    s_setprio 3
    s_mul_i32 s57, s6, 9
    s_add_u32 s46, s57, s3
    s_lshr_b32 s52, s46, 4
    s_and_b32 s48, s46, 15
    s_mul_i32 s48, s48, 36
    s_and_b32 s43, s4, 1
    s_mul_i32 s41, s43, 5
    s_lshr_b32 s44, s52, 1
    s_add_u32 s41, s41, s44
    s_and_b32 s44, s52, 1
    s_cmp_eq_u32 s52, 8
    s_cselect_b32 s41, 4, s41
    s_cselect_b32 s43, s43, s44
    s_lshr_b32 s44, s4, 1
    s_mul_i32 s44, s44, 9
    s_add_u32 s41, s41, s44
    s_mul_i32 s44, s43, 36
    s_add_u32 s44, s44, s41
    s_cmp_eq_u32 s43, 1
    s_cselect_b32 s8, s30, s28
    s_cselect_b32 s9, s31, s29
    s_lshl_b32 s41, s41, 8
    s_mul_i32 s40, s48, 9216
    s_add_u32 s40, s40, s41
    s_mov_b32 s10, {576*9216}
    s_movk_i32 s42, 9216
    v_mul_u32_u24 v{AW2}, 9216, v3
    v_lshlrev_b32 v{AW}, 2, v{AW2}
    v_lshl_add_u32 v{AW}, v2, 4, v{AW}
    v_lshl_add_u32 v{AW2}, v2, 4, v{AW2}
    """)
    def g_issue(k):
        if k: a(f"s_add_u32 s40, s40, {13*9216 if k % 4 == 0 else 's42'}")
        a(f"buffer_load_dwordx4 {vr(WU+4*k)}, v{AW if k < 8 else AW2}, s[8:11], s40 offen nt")
    sel_masks()
    a(f"""
    v_bfe_u32 v{AXQ}, v1, 3, 1
    v_mul_u32_u24 v{AXQ}, 2304, v{AXQ}
    s_lshl_b32 s41, s48, 2
    v_add_u32 v{AXU}, s41, v{AXQ}
    v_lshl_add_u32 v{AXU2}, v3, 2, v{AXU}
    v_add_u32 v{AXU2}, 128, v{AXU2}
    v_lshl_add_u32 v{AXU}, v3, 4, v{AXU}
    s_lshl_b32 s41, s47, 2
    v_add_u32 v{AXQ}, s41, v{AXQ}
    v_lshl_add_u32 v{AXQ}, v3, 4, v{AXQ}
    v_lshlrev_b32 v{ALN}, 4, v1
    s_lshl_b32 s53, s52, 4
    s_sub_i32 s54, s53, s57
    s_add_i32 s55, s54, 16
    s_max_i32 s54, s54, 0
    s_min_i32 s55, s55, 9
    s_sub_u32 s90, s3, s54
    s_lshl_b32 s90, s90, 10
    s_sub_i32 s54, s55, s54
    s_sub_i32 s54, s54, 3
    s_mul_i32 s59, s53, 7282
    s_lshr_b32 s59, s59, 16
    s_sub_u32 s59, s6, s59
    s_mul_i32 s56, s44, 3
    s_add_u32 s56, s56, s59
    s_lshl_b32 s56, s56, 10
    s_add_u32 s56, s56, {WS_GUP}
    s_add_u32 s59, s56, {LOC}
    s_lshr_b32 s57, s57, 4
    s_sub_u32 s55, s52, s57
    s_mul_i32 s53, s55, 9216
    s_add_u32 s90, s90, s53
    s_lshl_b32 s55, s55, 2
    s_add_u32 s55, s55, {L_CNT0}
    s_lshl_b32 s58, s3, 10
    """)
    def tile_reads(base, tmp, addr):
        return [f"ds_read_b128 {vr(tmp+4*t)}, v{addr} offset:{base+1024*t}" for t in range(9)]
    gu_vals = f"ds_read_b128 {vr(V0)}, v{AXU}\nds_read_b128 {vr(V0+4)}, v{AXU} offset:64\nds_read_b32 v{V0+8}, v{AXU2}"
    def q_block():
        spin(f"ds_read_b128 {vr(V0)}, v{AXQ}", maxchain(range(V0, V0 + 4)))
        a(f"v_mov_b32 v10, {L_TAG}")
        a("ds_read_b32 v8, v10")
        stamp(2)
        for i in range(2): build_op(OPR + 4 * i, V0 + i)
        for i in range(4):
            a(f"{MF} {vr(D0)}, {vr(OPR+4*(i%2))}, {vr(WQ+4*i)}, {'0' if i == 0 else vr(D0)}")
            if i < 2: build_op(OPR + 4 * i, V0 + 2 + i)
        a(gu_vals)
        a(f"v_add_u32 v11, s58, v{ALN}")
        a(f"ds_write_b128 v11, {vr(D0)} offset:{L_BIG}")
        bump(L_CNT2)
        stamp(3)
        spin(gu_vals, maxchain(range(V0, V0 + 9)), preloaded=True)
    def g_mfma(k, wait=None):
        build_op(OPR + 4 * (k % 2), V0 + k)
        if wait is not None: a(f"s_waitcnt vmcnt({wait})")
        a(f"{MF} {vr(D0)}, {vr(OPR+4*(k%2))}, {vr(WU+4*k)}, {'0' if k == 0 else vr(D0)}")
    done = 0; landed = 0; qdone = False
    for k in range(9):
        n = 4 + k
        w = opt["wg"] if k < opt["gburst"] else opt["wg2"]
        if opt["fast4"] and w < opt["wg2"] and qdone:
            Lb = a.label("f4")
            a("s_cmp_ge_u32 s6, 12")
            a(f"s_cbranch_scc1 {Lb}")
            a(f"s_waitcnt vmcnt({w-1})")
            a(f"{Lb}:")
            w = opt["wg2"]
        if n - landed >= w:
            a(f"s_waitcnt vmcnt({w-1})")
            landed = n - w + 1
        g_issue(k)
        if not qdone and landed >= 4:
            q_block(); qdone = True
        if DYN and k == 8 - opt["cdg"]: bump(L_CGO)
        if k == 8 - opt["gd"]: bump(L_VISS)
        while qdone and 4 + done < landed:
            g_mfma(done); done += 1
    stamp(4)
    a(f"v_add_u32 v{AXQ}, s90, v{ALN}")
    lin_addr(AXU)
    a(f"v_add_u32 v{AXU}, s53, v{AXU}")
    la_prep("s55")
    for k in range(done, 9): g_mfma(k, 8 - k)
    stamp(5)
    a(f"ds_write_b128 v{AXQ}, {vr(D0)} offset:{L_GT}")
    last_arriver("s54", "L_wave_end", tile_reads(L_GT, 68, AXU))
    for t in range(4):
        a(f"s_waitcnt lgkmcnt({7-2*t})")
        add4(68 + 8 * t, 68 + 8 * t, 72 + 8 * t)
        if t == 1: add4(68, 68, 76)
    add4(84, 84, 92)
    a("s_waitcnt lgkmcnt(0)")
    add4(68, 68, 100); add4(68, 68, 84)
    tag4(68)
    a(f"buffer_store_dwordx4 v[68:71], v{ALN}, s[12:15], s59 offen")
    bump(L_DONE)
    a(f"buffer_store_dwordx4 v[68:71], v{ALN}, s[12:15], s56 offen sc1")
    stamp(6)
    finish_wave()

    a(f"""
    L_D:
    s_sub_u32 s49, s3, 9
    v_lshlrev_b32 v57, 4, v1
    s_lshl_b32 s41, s49, 11
    v_add_u32 v58, s41, v57
    """)
    lin_addr(57)
    a(f"""
    s_lshl_b32 s41, s49, 10
    v_add_u32 v57, s41, v57
    v_and_b32 v9, 7, v1
    v_lshlrev_b32 v9, 4, v9
    s_movk_i32 s41, {FPS}
    v_lshrrev_b32 v59, 3, v1
    v_mad_u32_u24 v59, v59, s41, v9
    v_bfe_u32 v60, v1, 3, 1
    v_and_b32 v10, 2, v3
    v_add3_u32 v60, v60, v10, 8
    v_mad_u32_u24 v60, v60, s41, v9
    s_cmp_eq_u32 s49, 1
    s_cselect_b32 s54, 0xffff, -1
    s_mov_b32 s55, s54
    s_cselect_b64 vcc, -1, 0
    v_cndmask_b32 v59, v59, v60, vcc
    v_bfe_u32 v9, v1, 2, 1
    v_cmp_eq_u32 vcc, 0, v9
    v_mov_b32 v10, 0xffff
    v_cndmask_b32 v4, 0, v10, vcc
    v_xor_b32 v5, v4, v10
    v_lshlrev_b32 v6, 16, v4
    v_lshlrev_b32 v7, 16, v5
    v_mov_b32 v122, {L_CNT3}
    v_mov_b32 v123, 1
    v_and_b32 v46, 3, v1
    v_mul_u32_u24 v46, 0x5555, v46
    v_mul_u32_u24 v44, 640, v2
    s_lshl_b32 s41, s49, 7
    s_add_u32 s41, s41, {L_VAL}
    v_and_b32 v65, 1, v1
    v_lshlrev_b32 v65, 5, v65
    v_bfe_u32 v9, v1, 3, 1
    v_lshl_add_u32 v65, v9, 4, v65
    v_lshlrev_b32 v56, 6, v9
    v_bfe_u32 v9, v1, 4, 1
    v_lshl_add_u32 v65, v9, 3, v65
    v_bfe_u32 v9, v1, 1, 1
    v_lshl_add_u32 v65, v9, 2, v65
    v_bfe_u32 v9, v1, 2, 1
    v_lshl_add_u32 v65, v9, 1, v65
    v_lshrrev_b32 v120, 5, v1
    v_lshl_add_u32 v65, v120, 6, v65
    v_add_u32 v65, s41, v65
    v_lshl_add_u32 v56, v3, 4, v56
    v_add_u32 v56, s41, v56
    v_and_b32 v121, 31, v1
    v_mul_u32_u24 v{AW}, 4608, v3
    v_lshrrev_b32 v9, 3, v2
    v_mul_u32_u24 v9, {18432-128}, v9
    v_lshl_add_u32 v{AW}, v2, 4, v{AW}
    v_add_u32 v{AW2}, v9, v{AW}
    """)
    for r in list(range(D0, D0 + 4)) + list(range(D1, D1 + 8)): a(f"v_mov_b32 v{r}, 0")
    get_tag()
    a("""
    s_mov_b32 s40, 0x01010101
    v_mul_lo_u32 v45, v8, s40
    s_cmp_eq_u32 s5, 1
    s_cbranch_scc1 L_DG
    """)
    def claim(role):
        if not DYN: return
        L = a.label("noclaim")
        a("s_cmp_lg_u32 s49, 0")
        a(f"s_cbranch_scc1 {L}")
        wait_value(L_CGO, (4, 9)[role] - 2, sleep=2)
        a(f"""
        s_lshl_b32 s41, s4, 2
        s_add_u32 s76, s36, s41
        s_addc_u32 s77, s37, 0
        s_mov_b32 s97, 1
        s_atomic_add s97, s[76:77], {128*role} glc
        s_waitcnt lgkmcnt(0)
        s_and_b32 s97, s97, 15
        """)
        if role == 1:
            a("""
            s_and_b32 s41, s4, 1
            s_sub_u32 s42, 14, s41
            s_add_u32 s43, s97, 12
            s_cmp_ge_u32 s43, s42
            s_cselect_b32 s41, s42, 0
            s_sub_u32 s43, s43, s41
            s_cmp_lt_u32 s97, s42
            s_cselect_b32 s97, s43, s97
            """)
        set_flag(L_TK, "s97")
        a(f"{L}:")
    def tile_scalars(role):
        ptr, nbytes = ((24, 4096 * 1152), (32, 4608 * 1152))[role]
        a(f"""
        s_add_u32 s40, s86, {32*role}
        s_lshl_b32 s43, s40, 7
        s_mul_i32 s41, s87, {12*FPS}
        s_add_u32 s43, s43, s41
        s_add_u32 s43, s43, {WS_FP}
        s_lshr_b32 s41, s40, 4
        s_and_b32 s40, s40, 15
        s_mul_i32 s42, s87, 60
        s_add_u32 s41, s41, s42
        s_lshl_b32 s41, s41, 7
        s_lshl2_add_u32 s44, s40, s41
        s_add_u32 s44, s44, {WS_HINT}
        s_lshl2_add_u32 s45, s86, s49
        s_mul_i32 s45, s45, 36864
        s_mul_i32 s41, s87, 384
        s_add_u32 s45, s45, s41
        s_add_u32 s46, s45, 18432
        s_mov_b32 s8, s{ptr}
        s_mov_b32 s9, s{ptr+1}
        s_mov_b32 s10, {nbytes}
        """)
    div3 = """
    s_mul_i32 s88, s97, 86
    s_lshr_b32 s88, s88, 8
    s_mul_i32 s87, s88, 3
    s_sub_u32 s87, s97, s87
    """
    ORDER = [8, 9, 10, 11, 0, 1, 2, 3, 4, 5, 6, 7]
    def tile_stream(role, p_issue, lo, n, mask):
        WL = opt["wlg" if role else "wl"]
        stamp(1)
        if opt["warm"] and not DYN: p_issue()
        wait_value(L_VISS, (4, 9)[role] - 2, sleep=1)
        stamp(2)
        for k, j in enumerate(ORDER):
            if k >= WL: a(f"s_waitcnt vmcnt({WL-1})")
            if j < 8: a(f"buffer_load_dwordx4 {vr(W3+4*j)}, v{AW}, s[8:11], {'s45' if j < 4 else 's46'} offen offset:{(j%4)*1152} nt")
            else: a(f"buffer_load_dwordx4 {vr(W3+4*j)}, v{AW2}, s[8:11], s45 offen offset:{(j-8)*1152+256} nt")
        stamp(3)
        wait_value(L_DONE, "s58", sleep=0)
        L = a.label("hand")
        a(f"""
        s_waitcnt vmcnt(0)
        s_mov_b32 s51, 0
        {L}:
        s_add_u32 s51, s51, 1
        s_cmp_gt_u32 s51, {SPIN}
        s_cbranch_scc1 L_abort
        s_and_b32 s41, s51, {mask}
        s_cselect_b32 s42, {LOC}, 0
        """)
        p_issue()
        a("s_waitcnt vmcnt(0)")
        untag(lo, lo, n)
        a(f"s_cbranch_vccnz {L}")
        stamp(4)
        a("""
        s_mov_b64 exec, 1
        ds_add_rtn_u32 v11, v122, v123
        s_mov_b64 exec, -1
        """)
    def tile_tail():
        B = a.label("nohint")
        a(f"""
        v_cvt_pk_bf16_f32 v16, v16, v16
        ds_write_b16 v65, v16
        ds_read_b128 {vr(V0)}, v56
        s_waitcnt lgkmcnt(2)
        v_readfirstlane_b32 s84, v11
        s_cmp_eq_u32 s84, 1
        s_cbranch_scc0 {B}
        s_mov_b64 exec, 0xfff
        buffer_store_dword v45, v44, s[12:15], s44 offen sc1
        s_mov_b64 exec, -1
        {B}:
        s_waitcnt lgkmcnt(0)
        """)
        OP = [24, 28, 32, 36]
        for st in ["b0", "b2", (D1, 0, 32), "b1", (D2, 2, 32), "b3", (D1, 1, 40), (D2, 3, 40), (D0, 0, 0), (D0, 1, 8), (D0, 2, 16), (D0, 3, 24)]:
            if isinstance(st, str): build_op(OP[int(st[1])], V0 + int(st[1]))
            else: a(f"{SM} {vr(st[0])}, {vr(OP[st[1]])}, {vr(W3+st[2], 8)}, v46")
        stamp(5)
        for r in range(4): a(f"v_add_f32_dpp v{D1+r}, v{D2+r}, v{D1+r} row_ror:8 {DPPF}")
        a(f"""
        ds_write_b128 v58, {vr(D1)} offset:{L_T3+1024}
        ds_write_b128 v58, {vr(D0)} offset:{L_T3}
        s_cmp_ge_u32 s49, 2
        s_waitcnt lgkmcnt(0)
        s_barrier
        s_cbranch_scc1 L_wave_end
        """)
        for t in range(4): a(f"ds_read_b128 {vr(16+4*t)}, v57 offset:{L_T3+2048*t}")
        a("s_mov_b64 exec, s[54:55]")
        a("s_waitcnt lgkmcnt(2)")
        add4(16, 16, 20)
        a("s_waitcnt lgkmcnt(0)")
        add4(24, 24, 28); add4(16, 16, 24)
        tag4(16)
        a("buffer_store_dwordx4 v[16:19], v59, s[12:15], s43 offen sc1")
        stamp(6)
        finish_wave()
    a(f"""
    v_lshlrev_b32 v61, 12, v120
    v_lshl_add_u32 v61, v121, 2, v61
    v_and_b32 v10, 3, v1
    v_lshl_add_u32 v62, v120, 2, v10
    v_lshlrev_b32 v62, 7, v62
    s_mov_b32 s57, 0x07060501
    s_mov_b32 s58, 0
    """)
    if DYN and opt["warm"]:
        a(f"""
        s_lshl_b32 s41, s7, 10
        s_add_u32 s41, s41, {WS_OP+LOC}
        s_lshl_b32 s42, s49, 8
        s_add_u32 s41, s41, s42
        v_lshlrev_b32 v9, 2, v1
        buffer_load_dword v20, v9, s[12:15], s41 offen sc1
        """)
    claim(0); get_slot()
    a(f"""
    s_lshl2_add_u32 s89, s4, s97
    s_sub_u32 s89, s89, 12
    s_cmp_ge_u32 s97, 12
    s_cbranch_scc1 L_RD
    {div3}
    s_lshl2_add_u32 s86, s4, s88
    s_lshr_b32 s47, s86, 1
    s_lshl_b32 s48, s47, 10
    s_lshl_b32 s47, s47, 13
    s_and_b32 s41, s86, 1
    s_lshl_b32 s42, s41, 6
    s_add_u32 s48, s48, s42
    s_add_u32 s48, s48, {WS_ST}
    s_lshl_b32 s41, s41, 9
    s_add_u32 s47, s47, s41
    s_lshl_b32 s41, s49, 7
    s_add_u32 s47, s47, s41
    s_add_u32 s47, s47, {WS_OP}
    v_add_u32 v61, s47, v61
    v_add_u32 v62, s48, v62
    """)
    tile_scalars(0)
    a(f"s_mov_b32 s42, {LOC}")
    def o_issue():
        a("buffer_load_dwordx4 v[24:27], v62, s[12:15], s42 offen sc1")
        for k in range(4): a(f"buffer_load_dword v{20+k}, v61, s[12:15], s42 offen offset:{k*1024} sc1")
    tile_stream(0, o_issue, 20, 8, opt["lmask"])
    a(f"""
    v_perm_b32 v28, v24, v25, s57
    v_mov_b32 v29, v28
    v_max_f32_dpp v29, v29, v29 quad_perm:[1,0,3,2] {DPPF}
    v_max_f32_dpp v29, v29, v29 quad_perm:[2,3,0,1] {DPPF}
    v_sub_f32 v28, v28, v29
    v_exp_f32 v28, v28
    v_mul_f32 v26, v26, v28
    v_mul_f32_dpp v16, v28, v20 quad_perm:[0,0,0,0] {DPPF}
    v_mul_f32_dpp v18, v28, v22 quad_perm:[2,2,2,2] {DPPF}
    v_add_f32_dpp v26, v26, v26 quad_perm:[1,0,3,2] {DPPF}
    v_fmac_f32_dpp v16, v28, v21 quad_perm:[1,1,1,1] {DPPF}
    v_fmac_f32_dpp v18, v28, v23 quad_perm:[3,3,3,3] {DPPF}
    v_add_f32_dpp v26, v26, v26 quad_perm:[2,3,0,1] {DPPF}
    v_rcp_f32 v26, v26
    v_add_f32 v16, v16, v18
    v_mul_f32 v16, v16, v26
    """)
    tile_tail()
    c1 = -2.0 * 0.7978845608028654 * 1.4426950408889634
    a(f"""
    L_DG:
    v_lshlrev_b32 v47, 9, v120
    v_lshl_add_u32 v47, v121, 2, v47
    s_mov_b32 s59, {f32bits(0.044715 * c1)}
    v_mov_b32 v66, {f32bits(c1):#x}
    """)
    done_target_g("s58")
    claim(1); get_slot()
    a(f"""
    s_lshr_b32 s89, s4, 1
    s_add_u32 s89, s89, 32
    s_and_b32 s85, s4, 1
    s_lshl4_add_u32 s41, s85, s97
    s_cmp_eq_u32 s41, 29
    s_cbranch_scc1 L_RD
    s_cmp_ge_u32 s97, 14
    s_cbranch_scc1 L_wave_end
    {div3}
    s_mul_i32 s86, s85, 5
    s_add_u32 s86, s86, s88
    s_lshl1_add_u32 s41, s85, s87
    s_cmp_lt_u32 s97, 12
    s_cselect_b32 s86, s86, 4
    s_cselect_b32 s87, s87, s41
    s_cselect_b32 s48, {opt["lmask"]}, 0
    s_lshr_b32 s41, s4, 1
    s_mul_i32 s41, s41, 9
    s_add_u32 s86, s86, s41
    s_lshl_b32 s56, s88, 1
    s_add_u32 s57, s56, 1
    s_min_u32 s57, s57, 8
    """)
    for sl, msk in (("s56", "s[90:91]"), ("s57", "s[92:93]")):
        a(f"""
        s_bitcmp1_b32 {THREE:#x}, {sl}
        s_cselect_b64 {msk}, -1, 0
        s_cselect_b32 {sl}, 2, 1
        s_lshl_b32 {sl}, {sl}, 10
        """)
    a(f"""
    s_mul_i32 s47, s86, 3072
    s_lshl_b32 s41, s49, 7
    s_add_u32 s47, s47, s41
    s_add_u32 s47, s47, {WS_GUP}
    v_add_u32 v61, s47, v47
    v_add_u32 v62, {36*3072}, v61
    v_add_u32 v63, s56, v61
    v_add_u32 v64, s57, v62
    """)
    tile_scalars(1)
    a("s_cmp_eq_u32 s48, 0")
    a(f"s_cselect_b32 s42, 0, {LOC}")
    def h_issue():
        a("""
        buffer_load_dword v16, v61, s[12:15], s42 offen sc1
        buffer_load_dword v17, v62, s[12:15], s42 offen sc1
        buffer_load_dword v18, v61, s[12:15], s42 offen offset:1024 sc1
        buffer_load_dword v19, v62, s[12:15], s42 offen offset:1024 sc1
        buffer_load_dword v20, v63, s[12:15], s42 offen sc1
        buffer_load_dword v21, v64, s[12:15], s42 offen sc1
        """)
    tile_stream(1, h_issue, 16, 6, "s48")
    a("""
    v_cndmask_b32 v20, 0, v20, s[90:91]
    v_cndmask_b32 v21, 0, v21, s[92:93]
    v_pk_add_f32 v[16:17], v[16:17], v[18:19]
    v_pk_add_f32 v[16:17], v[16:17], v[20:21]
    v_cvt_pk_bf16_f32 v17, v16, v17
    v_lshlrev_b32 v16, 16, v17
    v_and_b32 v17, 0xffff0000, v17
    v_mul_f32 v18, v16, v16
    v_fma_f32 v18, v18, s59, v66
    v_mul_f32 v18, v18, v16
    v_exp_f32 v18, v18
    v_add_f32 v18, 1.0, v18
    v_rcp_f32 v18, v18
    v_mul_f32 v16, v16, v18
    v_cvt_pk_bf16_f32 v16, v16, v16
    v_and_b32 v16, 0xffff0000, v16
    v_mul_f32 v16, v16, v17
    """)
    tile_tail()
    a("L_wave_end:")
    finish_wave()

    def wait_hint(group, n):
        L = a.label("hint"); D = a.label("hinted")
        a(f"""
        v_readfirstlane_b32 s90, v8
        s_mul_i32 s41, s89, 5
        s_add_u32 s41, s41, {group}
        s_lshl_b32 s41, s41, 7
        s_add_u32 s41, s41, {WS_HINT}
        s_add_u32 s76, s38, s41
        s_addc_u32 s77, s39, 0
        s_mul_i32 s90, s90, 0x01010101
        s_mov_b32 s91, s90
        s_movk_i32 s51, 200
        {L}:
        s_load_dwordx{n} s[16:{15+n}], s[76:77], 0 glc
        s_sub_u32 s51, s51, 1
        s_cbranch_scc1 {D}
        s_waitcnt lgkmcnt(0)
        """)
        for k in range(n // 2): a(f"s_xor_b64 s[{16+2*k}:{17+2*k}], s[{16+2*k}:{17+2*k}], s[90:91]")
        for k in range(1, n // 2): a(f"s_or_b64 s[16:17], s[16:17], s[{16+2*k}:{17+2*k}]")
        a(f"s_cbranch_scc1 {L}")
        a(f"{D}:")
        a("s_waitcnt lgkmcnt(0)")
    a(f"""
    L_RD:
    s_mul_i32 s44, s89, {FPS}
    s_lshl_b32 s41, s49, 11
    s_add_u32 s44, s44, s41
    s_add_u32 s44, s44, {WS_FP}
    v_lshlrev_b32 v14, 4, v1
    s_lshl_b32 s41, s49, 10
    v_add_u32 v15, s41, v14
    """)
    wait_value(L_DONE, "s58", sleep=2)
    wait_hint("s49", 16)
    def fd_issue(r):
        a(f"buffer_load_dwordx4 {vr(r)}, v14, s[12:15], s44 offen sc1")
        a(f"buffer_load_dwordx4 {vr(r+4)}, v14, s[12:15], s44 offen offset:1024 sc1")
    poll(1, 8, 24, 24, fd_issue, 2)
    add4(24, 24, 28)
    a(f"""
    ds_write_b128 v15, v[24:27] offset:{L_T3}
    s_mov_b64 exec, 1
    ds_add_u32 v122, v123
    s_mov_b64 exec, -1
    """)
    finish_wave()

    def m_tag():
        a(f"""
        s_waitcnt lgkmcnt(0)
        s_add_u32 s52, s52, 1
        s_and_b32 s53, s52, 0xff
        v_mov_b32 v8, s53
        v_mov_b32 v13, {L_TAG}
        s_mov_b64 exec, 1
        ds_write_b32 v13, v8
        s_mov_b64 exec, -1
        """)
    a("""
    L_M2:
    s_cmp_eq_u32 s5, 0
    s_cbranch_scc1 L_MA
    s_waitcnt vmcnt(0)
    """)
    stamp(2)
    X = 16
    for t in range(9):
        a(f"v_lshlrev_b32 v{X+2*t}, 16, v{108+t}")
        a(f"v_and_b32 v{X+2*t+1}, 0xffff0000, v{108+t}")
    a(f"v_pk_add_f32 v[34:35], {vr(X,2)}, {vr(X+2,2)}")
    for t in range(2, 9): a(f"v_pk_add_f32 v[34:35], v[34:35], {vr(X+2*t,2)}")
    a("v_add_f32 v34, v34, v35")
    def half_reduce(r):
        for mode in ("quad_perm:[1,0,3,2]", "quad_perm:[2,3,0,1]", "row_half_mirror", "row_mirror"):
            a(f"v_add_f32_dpp v{r}, v{r}, v{r} {mode} {DPPF}")
        a(f"v_mov_b32 v{r+1}, v{r}")
        a(f"v_permlane16_swap_b32 v{r}, v{r+1}")
        a(f"v_add_f32 v{r}, v{r}, v{r+1}")
    half_reduce(34)
    a(f"v_mul_f32 v34, {f32bits(1.0/576):#x}, v34")
    a("v_mov_b32 v35, v34")
    for t in range(9): a(f"v_pk_add_f32 {vr(36+2*t,2)}, {vr(X+2*t,2)}, v[34:35] neg_lo:[0,1] neg_hi:[0,1]")
    a("v_pk_mul_f32 v[54:55], v[36:37], v[36:37]")
    for t in range(1, 9): a(f"v_pk_fma_f32 v[54:55], {vr(36+2*t,2)}, {vr(36+2*t,2)}, v[54:55]")
    a("v_add_f32 v54, v54, v55")
    half_reduce(54)
    a(f"""
    v_mul_f32 v54, {f32bits(1.0/576):#x}, v54
    v_cvt_pk_bf16_f32 v34, v34, v54
    v_and_b32 v54, 0xffff0000, v34
    v_lshlrev_b32 v34, 16, v34
    v_mov_b32 v35, v34
    v_add_f32 v54, {f32bits(1e-5):#x}, v54
    v_cvt_pk_bf16_f32 v54, v54, v54
    v_and_b32 v54, 0xffff0000, v54
    v_sqrt_f32 v54, v54
    v_cvt_pk_bf16_f32 v54, v54, v54
    v_and_b32 v54, 0xffff0000, v54
    v_rcp_f32 v54, v54
    v_lshrrev_b32 v11, 5, v1
    v_mul_u32_u24 v11, 2304, v11
    v_and_b32 v13, 31, v1
    v_mul_u32_u24 v13, 72, v13
    v_add_u32 v11, v11, v13
    v_mov_b32 v55, v54
    """)
    for t in range(9): a(f"v_pk_add_f32 {vr(X+2*t,2)}, {vr(X+2*t,2)}, v[34:35] neg_lo:[0,1] neg_hi:[0,1]")
    for t in range(9): a(f"v_cvt_pk_bf16_f32 v{36+t}, v{X+2*t}, v{X+2*t+1}")
    m_tag()
    for t in range(9):
        a(f"v_lshlrev_b32 v{X+2*t}, 16, v{36+t}")
        a(f"v_and_b32 v{X+2*t+1}, 0xffff0000, v{36+t}")
        a(f"v_pk_mul_f32 {vr(X+2*t,2)}, {vr(X+2*t,2)}, v[54:55]")
        a(f"v_cvt_pk_bf16_f32 v{X+2*t}, v{X+2*t}, v{X+2*t}")
        a(f"v_cvt_pk_bf16_f32 v{X+2*t+1}, v{X+2*t+1}, v{X+2*t+1}")
        a(f"ds_write_b64 v11, {vr(X+2*t,2)} offset:{L_XNP+8*t}")
    stamp(3)
    a(f"""
    v_lshlrev_b32 v14, 4, v1
    v_mov_b32 v15, {L_CNT2}
    """ + q_head("s44") + f"""
    s_and_b32 s41, s6, 3
    s_lshl2_add_u32 s44, s44, s41
    s_lshl_b32 s44, s44, 10
    s_add_u32 s44, s44, {WS_QP}
    s_add_u32 s45, s44, {LOC}
    """)
    spin("\n".join(["ds_read_b32 v10, v15"] + tile_reads(L_BIG, 16, 14)), "v_cmp_ne_u32 vcc, 7, v10", sleep=0)
    add4(16, 16, 20); add4(24, 24, 28); add4(32, 32, 36); add4(40, 40, 44)
    add4(16, 16, 24); add4(32, 32, 40); add4(16, 16, 48); add4(16, 16, 32)
    tag4(16)
    a("buffer_store_dwordx4 v[16:19], v14, s[12:15], s45 offen")
    a("buffer_store_dwordx4 v[16:19], v14, s[12:15], s44 offen sc1")
    stamp(1)
    done_target_g("s56")
    a("s_setprio 0")
    get_slot()
    a("""
    s_lshr_b32 s89, s4, 1
    s_add_u32 s89, s89, 32
    s_and_b32 s41, s4, 1
    s_lshl4_add_u32 s41, s41, s97
    s_cmp_eq_u32 s41, 29
    s_cbranch_scc1 L_R
    """)
    finish_wave()

    a(f"""
    L_MA:
    s_lshr_b32 s46, s7, 3
    s_lshl_b32 s46, s46, 13
    s_bfe_u32 s47, s6, 0x10002
    s_lshl_b32 s47, s47, 9
    s_add_u32 s46, s46, s47
    s_add_u32 s46, s46, {WS_QP}
    s_add_u32 s47, s46, {LOC}
    s_mov_b32 s48, 0
    v_lshrrev_b32 v11, 5, v1
    v_and_b32 v15, 31, v1
    v_lshlrev_b32 v14, 12, v11
    v_lshl_add_u32 v14, v15, 4, v14
    v_lshlrev_b32 v12, 8, v11
    v_lshl_add_u32 v12, v2, 4, v12
    v_and_b32 v9, 1, v3
    v_lshl_add_u32 v12, v9, 3, v12
    """)
    m_tag()
    def q_issue(r):
        a("s_add_u32 s48, s48, 1")
        a(f"s_and_b32 s41, s48, {opt['lmask']}")
        a("s_cselect_b32 s42, s47, s46")
        for i in range(4): a(f"buffer_load_dwordx4 {vr(r+4*i)}, v14, s[12:15], s42 offen offset:{i*1024} sc1")
    wait_flag(L_QGO, sleep=2)
    stamp(2)
    poll(opt["qsets"], 16, 16, 64, q_issue, 4, stag=opt["qstag"])
    add4(16, 16, 20); add4(24, 24, 28); add4(16, 16, 24)
    a(f"""
    v_cvt_pk_bf16_f32 v16, v16, v17
    v_cvt_pk_bf16_f32 v17, v18, v19
    ds_write_b64 v12, v[16:17] offset:{L_QL}
    """)
    set_flag(L_QFLAG)
    stamp(3)
    get_slot()
    a("""
    s_lshl2_add_u32 s89, s4, s97
    s_sub_u32 s89, s89, 12
    s_mov_b32 s56, 0
    s_cmp_lt_u32 s97, 12
    s_cbranch_scc1 L_wave_end
    """)

    a(f"""
    L_R:
    s_mul_i32 s46, s89, {FPS}
    s_add_u32 s46, s46, {WS_FP+8192}
    v_lshlrev_b32 v14, 4, v1
    s_mul_i32 s41, s89, 43
    s_lshr_b32 s41, s41, 9
    s_mul_i32 s42, s41, 12
    s_sub_u32 s42, s89, s42
    s_mul_i32 s41, s41, 192
    s_cmp_ge_u32 s42, 8
    s_cbranch_scc1 L_R_hi
    s_lshr_b32 s43, s42, 2
    s_and_b32 s48, s42, 3
    s_lshl_b32 s48, s48, 5
    s_branch L_R_col
    L_R_hi:
    s_bfe_u32 s43, s42, 0x10001
    s_and_b32 s48, s42, 1
    s_lshl_b32 s48, s48, 5
    s_add_u32 s48, s48, 128
    L_R_col:
    s_mul_i32 s43, s43, 576
    s_add_u32 s41, s41, s43
    s_add_u32 s41, s41, s48
    s_lshl_b32 s41, s41, 1
    v_and_b32 v12, 7, v1
    v_lshlrev_b32 v12, 3, v12
    v_and_b32 v13, 1, v3
    v_lshl_add_u32 v12, v13, 2, v12
    v_add_u32 v12, s41, v12
    v_min_u32 v12, 2300, v12
    global_load_dword v13, v12, s[16:17]
    v_mov_b32 v48, 0
    v_mov_b32 v49, 0
    v_mov_b32 v50, 0
    v_mov_b32 v51, 0
    v_mov_b32 v15, {L_CNT3}
    s_mov_b32 s43, {f32bits(-1.4426950408889634)}
    """)
    wait_value(L_DONE, "s56", sleep=2)
    stamp(4)
    wait_hint(4, 4)
    a("s_mov_b32 exec_hi, 0")
    poll(1, 4, 48, 48, lambda r: a(f"buffer_load_dwordx4 {vr(r)}, v14, s[12:15], s46 offen sc1"), 1)
    a("""
    s_mov_b32 exec_hi, -1
    v_lshlrev_b32 v22, 16, v13
    v_and_b32 v23, 0xffff0000, v13
    """)
    spin("\n".join(["ds_read_b32 v10, v15"] + [f"ds_read_b128 {vr(r)}, v14 offset:{L_T3+1024*t}" for t, r in enumerate((16, 24, 32, 36))]),
         "v_cmp_ne_u32 vcc, 2, v10", sleep=0)
    stamp(5)
    add4(16, 16, 24); add4(32, 32, 36); add4(32, 32, 48)
    for r in range(4): a(f"v_permlane32_swap_b32 v{16+r}, v{32+r}")
    add4(16, 16, 32)
    a(f"""
    v_permlane16_swap_b32 v16, v18
    v_permlane16_swap_b32 v17, v19
    v_pk_add_f32 v[16:17], v[16:17], v[18:19]
    v_add_f32_dpp v16, v16, v16 row_ror:8 {DPPF}
    v_add_f32_dpp v17, v17, v17 row_ror:8 {DPPF}
    v_cvt_pk_bf16_f32 v16, v16, v17
    v_mov_b32 v17, v16
    v_permlane32_swap_b32 v16, v17
    v_lshlrev_b32 v18, 16, v17
    v_and_b32 v19, 0xffff0000, v17
    v_mul_f32 v20, s43, v18
    v_mul_f32 v21, s43, v19
    v_exp_f32 v20, v20
    v_exp_f32 v21, v21
    v_add_f32 v20, 1.0, v20
    v_add_f32 v21, 1.0, v21
    v_rcp_f32 v20, v20
    v_rcp_f32 v21, v21
    v_mul_f32 v18, v18, v20
    v_mul_f32 v19, v19, v21
    v_cvt_pk_bf16_f32 v17, v18, v19
    v_lshlrev_b32 v20, 16, v16
    v_and_b32 v21, 0xffff0000, v16
    v_lshlrev_b32 v18, 16, v17
    v_and_b32 v19, 0xffff0000, v17
    v_mul_f32 v18, v18, v20
    v_mul_f32 v19, v19, v21
    v_cvt_pk_bf16_f32 v17, v18, v19
    v_lshlrev_b32 v18, 16, v17
    v_and_b32 v19, 0xffff0000, v17
    v_add_f32 v18, v18, v22
    v_add_f32 v19, v19, v23
    s_mov_b32 exec_lo, 0x00ff00ff
    s_mov_b32 exec_hi, 0
    v_cvt_pk_bf16_f32 v17, v18, v19
    global_store_dword v12, v17, s[34:35]
    s_cmp_lg_u32 s89, 0
    s_cbranch_scc1 L_R_done
    s_mov_b64 exec, 1
    v_mov_b32 v18, {WS_EPOCH}
    v_mov_b32 v19, s52
    buffer_store_dword v19, v18, s[12:15], 0 offen
    L_R_done:
    """)
    stamp(6)
    finish_wave()

    a("L_abort:")
    if stamps:
        a("s_mov_b32 s74, -1")
        a(f"""
        L_dump:
        s_mov_b64 exec, -1
        s_waitcnt lgkmcnt(0)
        s_lshl_b32 s41, s2, 4
        s_add_u32 s41, s41, s3
        s_add_u32 s41, s41, 1
        s_lshl_b32 s41, s41, 5
        s_add_u32 s41, s41, {WS_STAMP}
        v_mov_b32 v9, s41
        """)
        for i in range(8): a(f"v_mov_b32 v{i}, s{60+2*i}")
        a("""
        s_mov_b64 exec, 1
        buffer_store_dwordx4 v[0:3], v9, s[12:15], 0 offen
        buffer_store_dwordx4 v[4:7], v9, s[12:15], 0 offen offset:16
        """)
    a("s_endpgm")
    body = a.finish()
    init = "\n".join(f"    s_mov_b32 s{60+2*i}, 0" for i in range(1, 8)) + "\n" if stamps else ""
    hdr = open("cdna_kernels/" + NAME + ".s.ref").read().split("; Override launch")[0]
    return f"""{hdr}; @launch grid=(256,1,1) block=({NW*64},1,1) lds={LDS_BYTES}
.amdgcn_target "amdgcn-amd-amdhsa--gfx950"
.text
.globl {NAME}_kernel
.p2align 12
.p2align 8
.type {NAME}_kernel,@function
{NAME}_kernel:
{init}{body}
KERNEL_END:
.section .rodata,"a"
.p2align 6
.amdhsa_kernel {NAME}_kernel
  .amdhsa_next_free_vgpr 128
  .amdhsa_next_free_sgpr 100
  .amdhsa_accum_offset 128
  .amdhsa_group_segment_fixed_size 0
  .amdhsa_kernarg_size 96
  .amdhsa_user_sgpr_count 2
  .amdhsa_user_sgpr_kernarg_segment_ptr 1
  .amdhsa_system_sgpr_workgroup_id_x 1
.end_amdhsa_kernel
"""

THREE = sum(1 << s for s in range(9) if (16 * s + 15) // 9 - (16 * s) // 9 == 2)

def emit(name, stamps, opt):
    import hb, subprocess
    open(name + ".s", "w").write(gen(stamps, opt)); hb.build(name + ".s")
    r = subprocess.run([sys.executable, "../cdna_kernels/cdna_unwritten_srd_check.py", name + ".co", "--entry", NAME + "_kernel"], capture_output=True, text=True)
    if ": ok:" not in r.stdout: print(r.stdout[-2500:])

if __name__ == "__main__":
    emit("k20", False, {}); emit("ks20", True, {})
    print("built", hex(THREE))
```

```python
import sys, struct
from asmlib import Asm

NAME = "recurrent_scan__sliding_block_cached__geglu_ffn__decode"
NW = 14
WS_EPOCH = 0
WS_QP = 0x1000
WS_ST = WS_QP + 128 * 1024
WS_GUP = WS_ST + 128 * 128
WS_OP = WS_GUP + 216 * 1024
LOC = 488 * 1024
WS_FP = WS_QP + 2 * LOC
FPS = 72 * 128
WS_HINT = WS_FP + 36 * FPS
WS_STAMP = 8 << 20
L_XNP = 0
L_VAL = 4608
L_STM, L_STL = 5632, 5664
L_TAG, L_QFLAG, L_CNT0, L_CNT1, L_CNT2, L_CNT3, L_DONE, L_QGO = 5760, 5764, 5768, 5772, 5776, 5780, 5784, 5788
L_KRDY, L_VISS, L_CGO, L_TK, L_E1 = 5792, 5808, 5812, 5816, 5820
L_QL = 7168
L_OT = 8192
L_T3 = 12288
L_BIG = 20480
L_GT = L_BIG + 9216
LDS_BYTES = 86016
SPIN = 1000000
MF = "v_mfma_f32_16x16x32_bf16"
SM = "v_smfmac_f32_16x16x64_bf16"
DPPF = "row_mask:0xf bank_mask:0xf"

def f32bits(x): return struct.unpack("<I", struct.pack("<f", x))[0]
def vr(r, n=4): return f"v[{r}:{r+n-1}]"

DEF = dict(wa0=4, wa=8, wg=2, wg2=3, gburst=8, wl=6, wlg=6, vd=3, gd=0, qgo=6, qsets=2, qstag=12, lmask=7,
           warm=1, dyn=0, cda=12, cdg=5, fast4=1, perm=1, order=1, fake=0, hp=-1, hb=0, wpl=16)

def gen(stamps=False, opt=None):
    o_ = dict(DEF); o_.update(opt or {}); opt = o_
    a = Asm()
    DYN = opt["dyn"]
    WPL = opt["wpl"]; NLN = 5 * 16 // WPL
    def stamp(i):
        if stamps: a(f"s_memrealtime s[{60+2*i}:{61+2*i}]")
    def finish_wave():
        if stamps:
            stamp(7); a("s_branch L_dump")
        else:
            a("s_endpgm")
    def spin(reads, check, sleep=1, preloaded=False):
        L = a.label("spin"); D = a.label("spun"); C = a.label("chk")
        a(f"s_mov_b32 s51, {SPIN}")
        if preloaded: a(f"s_branch {C}")
        a(f"{L}:")
        a(reads)
        if preloaded: a(f"{C}:")
        a("s_waitcnt lgkmcnt(0)")
        a(check)
        a(f"s_cbranch_vccz {D}")
        a("s_sub_u32 s51, s51, 1")
        a("s_cbranch_scc1 L_abort")
        if sleep: a(f"s_sleep {sleep}")
        a(f"s_branch {L}")
        a(f"{D}:")
    def chain(op3, op2, regs, tmp):
        out = []; rs = list(regs); cur = rs.pop(0)
        while rs:
            if len(rs) >= 2:
                out.append(f"{op3} v{tmp}, v{cur}, v{rs[0]}, v{rs[1]}"); rs = rs[2:]
            else:
                out.append(f"{op2} v{tmp}, v{cur}, v{rs[0]}"); rs = rs[1:]
            cur = tmp
        return out, cur
    def maxchain(regs):
        out, cur = chain("v_max3_u32", "v_max_u32", regs, 9)
        return "\n".join(out + [f"v_cmp_eq_u32 vcc, -2, v{cur}"])
    def untag(dst, src, n):
        for r in range(n): a(f"v_xor_b32 v{dst+r}, v{src+r}, v8")
        out, cur = chain("v_or3_b32", "v_or_b32", range(dst, dst + n), 9)
        a("\n".join(out + [f"v_and_b32 v9, 0xff, v{cur}", "v_cmp_ne_u32 vcc, 0, v9"]))
    def poll(nsets, n, canon, raw0, issue, nloads, stag=1):
        L = a.label("poll"); D = a.label("polled")
        a(f"s_mov_b32 s51, {SPIN}")
        for k in range(nsets):
            issue(raw0 + k * n)
            if k < nsets - 1: a(f"s_sleep {stag}")
        a(f"{L}:")
        for k in range(nsets):
            a(f"s_waitcnt vmcnt({(nsets-1)*nloads})")
            untag(canon, raw0 + k * n, n)
            a(f"s_cbranch_vccz {D}")
            issue(raw0 + k * n)
        a("s_sub_u32 s51, s51, 1")
        a("s_cbranch_scc1 L_abort")
        a(f"s_branch {L}")
        a(f"{D}:")
    def poll1(n, reg, issue):
        L = a.label("again"); F = a.label("first")
        a(f"""
        s_branch {F}
        {L}:
        s_sub_u32 s51, s51, 1
        s_cbranch_scc1 L_abort
        {F}:
        """)
        issue(reg)
        a("s_waitcnt vmcnt(0)")
        untag(reg, reg, n)
        a(f"s_cbranch_vccnz {L}")
    def sel_masks():
        a("""
        v_and_b32 v9, 1, v1
        v_lshlrev_b32 v9, 4, v9
        v_mov_b32 v10, 0xffff
        v_lshlrev_b32 v10, v9, v10
        v_bfe_u32 v9, v1, 1, 2
        v_cmp_eq_u32 s[76:77], 0, v9
        v_cmp_eq_u32 s[78:79], 1, v9
        v_cmp_eq_u32 s[80:81], 2, v9
        v_cmp_eq_u32 s[82:83], 3, v9
        v_cndmask_b32 v4, 0, v10, s[76:77]
        v_cndmask_b32 v5, 0, v10, s[78:79]
        v_cndmask_b32 v6, 0, v10, s[80:81]
        v_cndmask_b32 v7, 0, v10, s[82:83]
        """)
    def get_tag():
        a(f"v_mov_b32 v9, {L_TAG}")
        spin("ds_read_b32 v8, v9", "v_cmp_eq_u32 vcc, -2, v8")
    def wait_flag(addr, sleep=1):
        a(f"v_mov_b32 v9, {addr}")
        spin("ds_read_b32 v10, v9", "v_cmp_eq_u32 vcc, -2, v10", sleep=sleep)
    def wait_value(addr, val, sleep=1):
        a(f"v_mov_b32 v9, {addr}")
        spin("ds_read_b32 v10, v9", f"v_cmp_ne_u32 vcc, {val}, v10", sleep=sleep)
    def lane0(op, addr, val):
        a(f"""
        v_mov_b32 v9, {addr}
        v_mov_b32 v10, {val}
        s_mov_b64 exec, 1
        {op} v9, v10
        s_mov_b64 exec, -1
        """)
    def set_flag(addr, val=0): lane0("ds_write_b32", addr, val)
    def bump(addr): lane0("ds_add_u32", addr, 1)
    def build_op(dst, val):
        for t in range(4): a(f"v_and_b32 v{dst+t}, v{val}, v{4+t}")
    def tag4(r):
        for t in range(4): a(f"v_and_or_b32 v{r+t}, v{r+t}, s50, v8")
    def add4(d, x, y):
        a(f"v_pk_add_f32 {vr(d,2)}, {vr(x,2)}, {vr(y,2)}")
        a(f"v_pk_add_f32 {vr(d+2,2)}, {vr(x+2,2)}, {vr(y+2,2)}")
    def wave_reduce(op, regs):
        for mode in ("quad_perm:[1,0,3,2] row_mask:0xf", "quad_perm:[2,3,0,1] row_mask:0xf", "row_half_mirror row_mask:0xf",
                     "row_mirror row_mask:0xf", "row_bcast:15 row_mask:0xa", "row_bcast:31 row_mask:0xc"):
            for r in regs: a(f"{op}_dpp v{r}, v{r}, v{r} {mode} bank_mask:0xf")
    def la_prep(cnt):
        a(f"v_mov_b32 v9, {cnt}")
        a("v_mov_b32 v10, 1")
    def last_arriver(expect, skip, reads, r0=9):
        a(f"""
        s_mov_b64 exec, 1
        ds_add_rtn_u32 v11, v{r0}, v{r0+1}
        s_mov_b64 exec, -1
        """)
        for r in reads: a(r)
        a(f"""
        s_waitcnt lgkmcnt({len(reads)})
        v_readfirstlane_b32 s84, v11
        s_cmp_eq_u32 s84, {expect}
        s_cbranch_scc0 {skip}
        """)
    def lin_addr(r):
        a(f"""
        v_and_b32 v{r}, 33, v1
        v_mul_u32_u24 v{r}, 0x110, v{r}
        v_and_b32 v{r}, 0x300, v{r}
        v_bfe_u32 v9, v1, 1, 4
        v_lshl_add_u32 v{r}, v9, 4, v{r}
        """)
    def done_target_g(dst):
        a(f"""
        s_mul_i32 s41, s6, 9
        s_add_u32 s42, s41, 8
        s_lshr_b32 s41, s41, 4
        s_lshr_b32 s42, s42, 4
        s_sub_u32 {dst}, s42, s41
        s_sub_u32 {dst}, {dst}, 1
        """)
    def q_head(dst):
        if not opt["perm"]: return f"s_lshr_b32 {dst}, s7, 2"
        return f"""
        s_and_b32 {dst}, s6, 12
        s_lshr_b32 {dst}, 0x1320, {dst}
        s_and_b32 {dst}, {dst}, 3
        s_lshl2_add_u32 {dst}, s4, {dst}
        """
    def get_slot():
        if not DYN:
            a("s_mov_b32 s97, s6"); return
        wait_flag(L_TK, sleep=2)
        a("v_readfirstlane_b32 s97, v10")

    WQ, WU, W3, OPR, V0, D0, D1, D2 = 16, 32, 68, 104, 116, 12, 48, 52
    AXQ, AXU, AXU2, ALN, AW, AW2 = 112, 113, 114, 115, 125, 126

    stamp(0)
    a(f"""
    s_cmp_ge_u32 s2, 256
    s_cbranch_scc1 L_exit
    s_load_dwordx16 s[16:31], s[0:1], 0
    s_load_dwordx8 s[32:39], s[0:1], 64
    s_load_dwordx2 s[12:13], s[0:1], 88
    s_getpc_b64 s[40:41]
    L_pc:
    v_lshlrev_b32 v9, 4, v0
    v_min_u32 v9, KERNEL_END-L_pc-4, v9
    global_load_dword v67, v9, s[40:41]
    v_lshrrev_b32 v2, 6, v0
    v_and_b32 v1, 63, v0
    v_readfirstlane_b32 s3, v2
    v_lshlrev_b32 v9, 3, v0
    v_mov_b32 v4, -2
    v_mov_b32 v5, -2
    ds_write_b64 v9, v[4:5]
    s_and_b32 s4, s2, 7
    s_lshr_b32 s6, s2, 4
    s_bfe_u32 s5, s2, 0x10003
    s_lshl_b32 s7, s4, 4
    s_add_u32 s7, s7, s6
    v_and_b32 v2, 15, v1
    v_lshrrev_b32 v3, 4, v1
    s_mov_b32 s50, 0xffffff00
    s_mov_b32 s11, 0x20000
    s_mov_b32 s14, 0x1000000
    s_mov_b32 s15, 0x20000
    s_sub_u32 s3, s3, 1
    s_cbranch_scc0 L_notM
    s_setprio 3
    v_lshrrev_b32 v11, 5, v1
    v_mul_u32_u24 v11, 1152, v11
    v_and_b32 v12, 31, v1
    v_mul_u32_u24 v12, 36, v12
    v_add_u32 v11, v11, v12
    s_cmp_eq_u32 s5, 0
    s_waitcnt lgkmcnt(0)
    s_cbranch_scc1 L_M_nox
    global_load_dwordx4 v[108:111], v11, s[16:17]
    global_load_dwordx4 v[112:115], v11, s[16:17] offset:16
    global_load_dword v116, v11, s[16:17] offset:32
    L_M_nox:
    s_load_dword s52, s[38:39], {WS_EPOCH}
    s_barrier
    s_branch L_M2
    L_notM:
    s_cmp_ge_u32 s3, 9
    s_cbranch_scc1 L_S
    s_cmp_eq_u32 s5, 1
    s_cbranch_scc1 L_X
    s_cmp_ge_u32 s3, 4
    s_cbranch_scc1 L_S
    s_bfe_u32 s40, s6, 0x10002
    s_lshl_b32 s40, s40, 4
    s_lshr_b32 s41, s7, 3
    s_add_u32 s40, s40, s41
    s_lshl_b32 s40, s40, 20
    s_and_b32 s41, s6, 3
    s_lshl_b32 s41, s41, 16
    s_add_u32 s40, s40, s41
    s_lshl_b32 s41, s3, 14
    s_add_u32 s40, s40, s41
    s_add_u32 s40, s40, {3072*256}
    s_mov_b32 s42, s40
    s_add_u32 s41, s41, {L_BIG}
    s_mov_b32 m0, s41
    v_lshlrev_b32 v9, 8, v3
    """)
    for q in range(4):
        a(f"v_add_u32 v{16+q}, {4*q}, v3")
        a(f"v_xor_b32 v{16+q}, v{16+q}, v2")
        a(f"v_lshl_add_u32 v{16+q}, v{16+q}, 4, v9")
    a("""
    s_mov_b32 s10, 33554432
    s_waitcnt lgkmcnt(0)
    s_mov_b32 s8, s18
    s_mov_b32 s9, s19
    """)
    stamp(1)
    def l_issue(i):
        if i < 16:
            if i and i % 4 == 0:
                a("s_add_u32 s41, s41, 4096"); a("s_mov_b32 m0, s41"); a("s_add_u32 s40, s40, 4096")
            a(f"buffer_load_dwordx4 v{16+i%4}, s[8:11], s40 offen offset:{(i%4)*1024} nt lds")
        else:
            k = i - 16
            if k == 0:
                a("s_mov_b32 s8, s20"); a("s_mov_b32 s9, s21")
            if k and k % 4 == 0: a("s_add_u32 s42, s42, 4096")
            a(f"buffer_load_dwordx4 {vr(64+4*k)}, v20, s[8:11], s42 offen offset:{(k%4)*256} nt")
    WA0, WA = opt["wa0"], opt["wa"]
    for i in range(WA0): l_issue(i)
    a("""
    s_barrier
    s_branch L_L
    L_X:
    s_and_b32 s40, s6, 3
    s_mul_i32 s40, s40, 144
    s_lshl_b32 s41, s3, 4
    s_add_u32 s47, s40, s41
    s_lshl_b32 s40, s47, 13
    """ + q_head("s41") + """
    s_lshl_b32 s41, s41, 8
    s_add_u32 s40, s40, s41
    v_lshlrev_b32 v11, 15, v3
    v_lshl_add_u32 v11, v2, 4, v11
    s_mov_b32 s10, 4718592
    s_movk_i32 s42, 0x2000
    s_waitcnt lgkmcnt(0)
    s_mov_b32 s8, s22
    s_mov_b32 s9, s23
    """)
    stamp(1)
    if opt["fake"] & 2:
        a("""
        s_mul_i32 s40, s7, 9
        s_add_u32 s40, s40, s3
        s_lshl_b32 s40, s40, 12
        s_movk_i32 s42, 1024
        v_lshlrev_b32 v11, 4, v1
        """)
    for i in range(4):
        a(f"buffer_load_dwordx4 {vr(WQ+4*i)}, v11, s[8:11], s40 offen nt")
        if i < 3: a("s_add_u32 s40, s40, s42")
    a("""
    s_barrier
    s_branch L_X2
    L_S:
    s_cmp_eq_u32 s5, 0
    s_cbranch_scc1 L_S_bar
    v_lshlrev_b32 v9, 4, v0
    v_mov_b32 v4, 0
    v_mov_b32 v5, 0
    v_mov_b32 v6, 0
    v_mov_b32 v7, 0
    """ + "\n".join(f"ds_write_b128 v9, v[4:7] offset:{L_GT-10240+4096*t}" for t in range(5)) + """
    L_S_bar:
    s_waitcnt lgkmcnt(0)
    s_barrier
    s_cmp_lt_u32 s3, 8
    s_cbranch_scc1 L_S2
    s_cmp_ge_u32 s3, 9
    s_cbranch_scc1 L_D
    L_exit:
    s_endpgm
    """)

    a(f"""
    L_L:
    s_setprio 3
    v_lshlrev_b32 v20, 10, v3
    v_lshl_add_u32 v20, v2, 4, v20
    s_lshl_b32 s44, s3, 2
    s_add_u32 s44, s44, {L_KRDY}
    """)
    sel_masks()
    landed = 0
    for n in range(WA0, 32):
        w = min(WA, WA0 + (n - WA0 + 1) // 2)
        prev = landed
        if n - landed >= w:
            a(f"s_waitcnt vmcnt({w-1})")
            landed = n - w + 1
        l_issue(n)
        if prev < opt["qgo"] <= landed: set_flag(L_QGO)
        if prev < 16 <= landed: set_flag("s44")
        if DYN and n == 31 - opt["cda"]: bump(L_CGO)
        if n == 31 - opt["vd"]: bump(L_VISS)
    assert landed >= 16
    stamp(3)
    get_tag()
    a(f"""
    v_bfe_u32 v11, v1, 3, 1
    v_lshlrev_b32 v11, 10, v11
    v_lshl_add_u32 v11, v3, 4, v11
    s_lshl_b32 s41, s3, 8
    v_add_u32 v11, s41, v11
    s_lshl_b32 s45, s7, 10
    s_add_u32 s45, s45, {WS_OP}
    s_add_u32 s46, s45, {LOC}
    """)
    spin("\n".join(f"ds_read_b128 {vr(16+4*b)}, v11 offset:{L_XNP+64*b}" for b in range(4)), maxchain(range(16, 32)))
    stamp(4)
    for i in range(2): build_op(32 + 4 * i, 16 + i)
    nb = 2
    for i in range(16):
        a(f"s_waitcnt vmcnt({15-i})")
        a(f"{MF} v[12:15], {vr(32+4*(i%8))}, {vr(64+4*i)}, {'0' if i == 0 else 'v[12:15]'}")
        for _ in range(1 if i < 6 else 2):
            if nb < 16: build_op(32 + 4 * (nb % 8), 16 + nb); nb += 1
        if i == 11:
            a("""
            s_lshl_b32 s41, s3, 10
            v_lshlrev_b32 v17, 4, v1
            v_add_u32 v18, s41, v17
            """)
            lin_addr(19)
            la_prep(L_CNT0)
    stamp(5)
    a(f"ds_write_b128 v18, v[12:15] offset:{L_OT}")
    last_arriver(1, "L_wave_end", [f"ds_read_b128 {vr(32+4*t)}, v19 offset:{L_OT+1024*t}" for t in range(4)])
    a("s_waitcnt lgkmcnt(2)")
    add4(32, 32, 36)
    a("s_waitcnt lgkmcnt(0)")
    add4(40, 40, 44); add4(32, 32, 40)
    tag4(32)
    a("buffer_store_dwordx4 v[32:35], v17, s[12:15], s46 offen")
    set_flag(L_DONE)
    a("buffer_store_dwordx4 v[32:35], v17, s[12:15], s45 offen sc1")
    stamp(6)
    finish_wave()

    a(f"""
    L_S2:
    s_sub_u32 s49, s3, 4
    s_lshl_b32 s41, s49, 14
    s_add_u32 s41, s41, {L_BIG}
    v_lshl_add_u32 v11, v2, 8, s41
    """)
    for st in range(4):
        a(f"v_or_b32 v{12+st}, {4*st}, v3")
        a(f"v_xor_b32 v{12+st}, v{12+st}, v2")
        a(f"v_lshl_add_u32 v{12+st}, v{12+st}, 4, v11")
    a(f"""
    v_cmp_eq_u32 s[54:55], 1, v3
    v_cmp_eq_u32 s[56:57], 2, v3
    v_cmp_eq_u32 s[58:59], 3, v3
    s_lshl_b32 s53, s49, 2
    s_add_u32 s47, s53, {L_KRDY}
    v_mov_b32 v4, s53
    v_mov_b32 v5, 0
    s_lshl_b32 s48, s49, 8
    v_lshl_add_u32 v6, v1, 2, s48
    """)
    get_tag()
    wait_flag("s47", sleep=2)
    stamp(4)
    a("s_waitcnt vmcnt(0)")
    for t in range(4):
        for st in range(4):
            a(f"ds_read_b128 {vr(64+16*t+4*st)}, v{12+st} offset:{t*4096}")
    a("""
    v_and_b32 v11, 1, v1
    v_lshlrev_b32 v11, 8, v11
    v_lshl_add_u32 v11, v3, 4, v11
    """)
    wait_flag(L_QFLAG)
    stamp(2)
    for st in range(4): a(f"ds_read_b128 {vr(16+4*st)}, v11 offset:{L_QL+64*st}")
    for st in range(4):
        a(f"s_waitcnt lgkmcnt({3-st})")
        for t in range(4):
            a(f"{MF} {vr(32+4*t)}, {vr(16+4*st)}, {vr(64+16*t+4*st)}, {'0' if st == 0 else vr(32+4*t)}")
    a(f"""
    s_mov_b32 s48, {f32bits(128**-0.5 * 1.4426950408889634)}
    v_cndmask_b32 v32, v32, v36, s[54:55]
    v_cndmask_b32 v33, v33, v37, s[54:55]
    v_cndmask_b32 v32, v32, v40, s[56:57]
    v_cndmask_b32 v33, v33, v41, s[56:57]
    v_cndmask_b32 v32, v32, v44, s[58:59]
    v_cndmask_b32 v33, v33, v45, s[58:59]
    v_mul_f32 v32, s48, v32
    v_mul_f32 v33, s48, v33
    v_mov_b32 v34, v32
    v_mov_b32 v35, v33
    """)
    wave_reduce("v_max_f32", (34, 35))
    a(f"""
    s_mov_b32 exec_lo, 0
    s_mov_b32 exec_hi, 0x80000000
    ds_write_b32 v4, v34 offset:{L_STM}
    ds_write_b32 v4, v35 offset:{L_STM+16}
    s_mov_b64 exec, -1
    """)
    spin(f"ds_read_b128 v[36:39], v5 offset:{L_STM}\nds_read_b128 v[40:43], v5 offset:{L_STM+16}", maxchain(range(36, 44)), sleep=0)
    a(f"""
    v_max3_f32 v36, v36, v37, v38
    v_max3_f32 v40, v40, v41, v42
    v_max_f32 v36, v36, v39
    v_max_f32 v40, v40, v43
    v_sub_f32 v32, v32, v36
    v_sub_f32 v33, v33, v40
    v_exp_f32 v32, v32
    v_exp_f32 v33, v33
    v_cvt_pk_bf16_f32 v32, v32, v32
    v_cvt_pk_bf16_f32 v33, v33, v33
    ds_write_b32 v6, v32 offset:{L_XNP}
    ds_write_b32 v6, v33 offset:{L_XNP+1024}
    v_and_b32 v34, 0xffff0000, v32
    v_and_b32 v35, 0xffff0000, v33
    """)
    stamp(3)
    wave_reduce("v_add_f32", (34, 35))
    la_prep(L_CNT1)
    a(f"""
    v_lshrrev_b32 v5, 5, v1
    v_lshlrev_b32 v5, 4, v5
    s_mov_b32 exec_lo, 0
    s_mov_b32 exec_hi, 0x80000000
    ds_write_b32 v4, v34 offset:{L_STL}
    ds_write_b32 v4, v35 offset:{L_STL+16}
    """)
    last_arriver(1, "L_wave_end", [f"ds_read_b128 v[44:47], v5 offset:{L_STL}"])
    a(f"""
    v_cmp_lt_u32 vcc, 31, v1
    v_lshlrev_b32 v5, 2, v5
    v_lshl_add_u32 v5, v2, 4, v5
    v_cndmask_b32 v36, v36, v40, vcc
    s_lshl_b32 s45, s7, 7
    s_add_u32 s45, s45, {WS_ST}
    s_add_u32 s46, s45, {LOC}
    s_waitcnt lgkmcnt(0)
    v_add_f32 v44, v44, v45
    v_add_f32 v46, v46, v47
    v_add_f32 v44, v44, v46
    v_and_or_b32 v28, v36, s50, v8
    v_lshl_or_b32 v29, v36, 8, v8
    v_and_or_b32 v30, v44, s50, v8
    v_mov_b32 v31, v8
    s_mov_b32 exec_lo, 15
    s_mov_b32 exec_hi, 15
    buffer_store_dwordx4 v[28:31], v5, s[12:15], s46 offen
    buffer_store_dwordx4 v[28:31], v5, s[12:15], s45 offen sc1
    s_mov_b64 exec, -1
    """)
    stamp(5)
    finish_wave()

    a(f"""
    L_X2:
    s_setprio 3
    s_mul_i32 s57, s6, 9
    s_add_u32 s46, s57, s3
    s_lshr_b32 s52, s46, 4
    s_and_b32 s48, s46, 15
    s_mul_i32 s48, s48, 36
    s_and_b32 s43, s4, 1
    s_mul_i32 s41, s43, 5
    s_lshr_b32 s44, s52, 1
    s_add_u32 s41, s41, s44
    s_and_b32 s44, s52, 1
    s_cmp_eq_u32 s52, 8
    s_cselect_b32 s41, 4, s41
    s_cselect_b32 s43, s43, s44
    s_lshr_b32 s44, s4, 1
    s_mul_i32 s44, s44, 9
    s_add_u32 s41, s41, s44
    s_mul_i32 s44, s43, 36
    s_add_u32 s44, s44, s41
    s_cmp_eq_u32 s43, 1
    s_cselect_b32 s8, s30, s28
    s_cselect_b32 s9, s31, s29
    s_lshl_b32 s41, s41, 8
    s_mul_i32 s40, s48, 9216
    s_add_u32 s40, s40, s41
    s_mov_b32 s10, {576*9216}
    s_movk_i32 s42, 9216
    v_mul_u32_u24 v{AW2}, 9216, v3
    v_lshlrev_b32 v{AW}, 2, v{AW2}
    v_lshl_add_u32 v{AW}, v2, 4, v{AW}
    v_lshl_add_u32 v{AW2}, v2, 4, v{AW2}
    """)
    if opt["fake"] & 1:
        a(f"""
        s_lshr_b32 s41, s41, 4
        s_and_b32 s40, s46, 15
        s_add_u32 s40, s40, s41
        s_mul_i32 s40, s40, 9216
        s_movk_i32 s42, 1024
        v_lshlrev_b32 v{AW}, 4, v1
        v_lshlrev_b32 v{AW2}, 4, v1
        """)
    def g_issue(k):
        if opt["fake"] & 1:
            if k: a("s_add_u32 s40, s40, s42")
            a(f"buffer_load_dwordx4 {vr(WU+4*k)}, v{AW}, s[8:11], s40 offen nt")
            return
        if k: a(f"s_add_u32 s40, s40, {13*9216 if k % 4 == 0 else 's42'}")
        a(f"buffer_load_dwordx4 {vr(WU+4*k)}, v{AW if k < 8 else AW2}, s[8:11], s40 offen nt")
    sel_masks()
    a(f"""
    v_bfe_u32 v{AXQ}, v1, 3, 1
    v_mul_u32_u24 v{AXQ}, 2304, v{AXQ}
    s_lshl_b32 s41, s48, 2
    v_add_u32 v{AXU}, s41, v{AXQ}
    v_lshl_add_u32 v{AXU2}, v3, 2, v{AXU}
    v_add_u32 v{AXU2}, 128, v{AXU2}
    v_lshl_add_u32 v{AXU}, v3, 4, v{AXU}
    s_lshl_b32 s41, s47, 2
    v_add_u32 v{AXQ}, s41, v{AXQ}
    v_lshl_add_u32 v{AXQ}, v3, 4, v{AXQ}
    v_lshlrev_b32 v{ALN}, 4, v1
    s_lshl_b32 s53, s52, 4
    s_sub_i32 s54, s53, s57
    s_add_i32 s55, s54, 16
    s_max_i32 s54, s54, 0
    s_min_i32 s55, s55, 9
    s_sub_u32 s90, s3, s54
    s_lshl_b32 s90, s90, 10
    s_sub_i32 s54, s55, s54
    s_sub_i32 s54, s54, 3
    s_mul_i32 s59, s53, 7282
    s_lshr_b32 s59, s59, 16
    s_sub_u32 s59, s6, s59
    s_mul_i32 s56, s44, 3
    s_add_u32 s56, s56, s59
    s_lshl_b32 s56, s56, 10
    s_add_u32 s56, s56, {WS_GUP}
    s_add_u32 s59, s56, {LOC}
    s_lshr_b32 s57, s57, 4
    s_sub_u32 s55, s52, s57
    s_mul_i32 s53, s55, 9216
    s_add_u32 s90, s90, s53
    s_lshl_b32 s55, s55, 2
    s_add_u32 s55, s55, {L_CNT0}
    s_lshl_b32 s58, s3, 10
    """)
    def tile_reads(base, tmp, addr):
        return [f"ds_read_b128 {vr(tmp+4*t)}, v{addr} offset:{base+1024*t}" for t in range(9)]
    gu_vals = f"ds_read_b128 {vr(V0)}, v{AXU}\nds_read_b128 {vr(V0+4)}, v{AXU} offset:64\nds_read_b32 v{V0+8}, v{AXU2}"
    def q_block():
        spin(f"ds_read_b128 {vr(V0)}, v{AXQ}", maxchain(range(V0, V0 + 4)))
        a(f"v_mov_b32 v10, {L_TAG}")
        a("ds_read_b32 v8, v10")
        stamp(2)
        for i in range(2): build_op(OPR + 4 * i, V0 + i)
        for i in range(4):
            a(f"{MF} {vr(D0)}, {vr(OPR+4*(i%2))}, {vr(WQ+4*i)}, {'0' if i == 0 else vr(D0)}")
            if i < 2: build_op(OPR + 4 * i, V0 + 2 + i)
        a(gu_vals)
        a(f"v_add_u32 v11, s58, v{ALN}")
        a(f"ds_write_b128 v11, {vr(D0)} offset:{L_BIG}")
        bump(L_CNT2)
        stamp(3)
        spin(gu_vals, maxchain(range(V0, V0 + 9)), preloaded=True)
    def g_mfma(k, wait=None):
        build_op(OPR + 4 * (k % 2), V0 + k)
        if wait is not None: a(f"s_waitcnt vmcnt({wait})")
        a(f"{MF} {vr(D0)}, {vr(OPR+4*(k%2))}, {vr(WU+4*k)}, {'0' if k == 0 else vr(D0)}")
    done = 0; landed = 0; qdone = False
    for k in range(9):
        n = 4 + k
        w = opt["wg"] if k < opt["gburst"] else opt["wg2"]
        if opt["fast4"] and w < opt["wg2"] and qdone:
            Lb = a.label("f4")
            a("s_cmp_ge_u32 s6, 12")
            a(f"s_cbranch_scc1 {Lb}")
            a(f"s_waitcnt vmcnt({w-1})")
            a(f"{Lb}:")
            w = opt["wg2"]
        if n - landed >= w:
            a(f"s_waitcnt vmcnt({w-1})")
            landed = n - w + 1
        g_issue(k)
        if not qdone and landed >= 4:
            q_block(); qdone = True
        if DYN and k == 8 - opt["cdg"]: bump(L_CGO)
        if k == 8 - opt["gd"]: bump(L_VISS)
        while qdone and 4 + done < landed:
            g_mfma(done); done += 1
    stamp(4)
    a(f"v_add_u32 v{AXQ}, s90, v{ALN}")
    lin_addr(AXU)
    a(f"v_add_u32 v{AXU}, s53, v{AXU}")
    la_prep("s55")
    for k in range(done, 9): g_mfma(k, 8 - k)
    stamp(5)
    a(f"ds_write_b128 v{AXQ}, {vr(D0)} offset:{L_GT}")
    last_arriver("s54", "L_wave_end", tile_reads(L_GT, 68, AXU))
    for t in range(4):
        a(f"s_waitcnt lgkmcnt({7-2*t})")
        add4(68 + 8 * t, 68 + 8 * t, 72 + 8 * t)
        if t == 1: add4(68, 68, 76)
    add4(84, 84, 92)
    a("s_waitcnt lgkmcnt(0)")
    add4(68, 68, 100); add4(68, 68, 84)
    tag4(68)
    a(f"buffer_store_dwordx4 v[68:71], v{ALN}, s[12:15], s59 offen")
    bump(L_DONE)
    a(f"buffer_store_dwordx4 v[68:71], v{ALN}, s[12:15], s56 offen sc1")
    stamp(6)
    finish_wave()

    a(f"""
    L_D:
    s_sub_u32 s49, s3, 9
    v_lshlrev_b32 v57, 4, v1
    s_lshl_b32 s41, s49, 11
    v_add_u32 v58, s41, v57
    """)
    lin_addr(57)
    a(f"""
    s_lshl_b32 s41, s49, 10
    v_add_u32 v57, s41, v57
    v_and_b32 v9, 7, v1
    v_lshlrev_b32 v9, 4, v9
    s_movk_i32 s41, {FPS}
    v_lshrrev_b32 v59, 3, v1
    v_mad_u32_u24 v59, v59, s41, v9
    v_bfe_u32 v60, v1, 3, 1
    v_and_b32 v10, 2, v3
    v_add3_u32 v60, v60, v10, 8
    v_mad_u32_u24 v60, v60, s41, v9
    s_cmp_eq_u32 s49, 1
    s_cselect_b32 s54, 0xffff, -1
    s_mov_b32 s55, s54
    s_cselect_b64 vcc, -1, 0
    v_cndmask_b32 v59, v59, v60, vcc
    v_bfe_u32 v9, v1, 2, 1
    v_cmp_eq_u32 vcc, 0, v9
    v_mov_b32 v10, 0xffff
    v_cndmask_b32 v4, 0, v10, vcc
    v_xor_b32 v5, v4, v10
    v_lshlrev_b32 v6, 16, v4
    v_lshlrev_b32 v7, 16, v5
    v_mov_b32 v122, {L_CNT3}
    v_mov_b32 v123, 1
    v_and_b32 v46, 3, v1
    v_mul_u32_u24 v46, 0x5555, v46
    v_mul_u32_u24 v44, {128*NLN}, v2
    s_lshl_b32 s41, s49, 7
    s_add_u32 s41, s41, {L_VAL}
    v_and_b32 v65, 1, v1
    v_lshlrev_b32 v65, 5, v65
    v_bfe_u32 v9, v1, 3, 1
    v_lshl_add_u32 v65, v9, 4, v65
    v_lshlrev_b32 v56, 6, v9
    v_bfe_u32 v9, v1, 4, 1
    v_lshl_add_u32 v65, v9, 3, v65
    v_bfe_u32 v9, v1, 1, 1
    v_lshl_add_u32 v65, v9, 2, v65
    v_bfe_u32 v9, v1, 2, 1
    v_lshl_add_u32 v65, v9, 1, v65
    v_lshrrev_b32 v120, 5, v1
    v_lshl_add_u32 v65, v120, 6, v65
    v_add_u32 v65, s41, v65
    v_lshl_add_u32 v56, v3, 4, v56
    v_add_u32 v56, s41, v56
    v_and_b32 v121, 31, v1
    v_mul_u32_u24 v{AW}, 4608, v3
    v_lshrrev_b32 v9, 3, v2
    v_mul_u32_u24 v9, {18432-128}, v9
    v_lshl_add_u32 v{AW}, v2, 4, v{AW}
    v_add_u32 v{AW2}, v9, v{AW}
    """)
    for r in list(range(D0, D0 + 4)) + list(range(D1, D1 + 8)): a(f"v_mov_b32 v{r}, 0")
    get_tag()
    a("""
    v_mul_u32_u24 v45, 0x101, v8
    s_cmp_eq_u32 s5, 1
    s_cbranch_scc1 L_DG
    """)
    def claim(role):
        if not DYN: return
        L = a.label("noclaim")
        a("s_cmp_lg_u32 s49, 0")
        a(f"s_cbranch_scc1 {L}")
        wait_value(L_CGO, (4, 9)[role] - 2, sleep=2)
        a(f"""
        s_lshl_b32 s41, s4, 2
        s_add_u32 s76, s36, s41
        s_addc_u32 s77, s37, 0
        s_mov_b32 s97, 1
        s_atomic_add s97, s[76:77], {128*role} glc
        s_waitcnt lgkmcnt(0)
        s_and_b32 s97, s97, 15
        """)
        if role == 1:
            a("""
            s_and_b32 s41, s4, 1
            s_sub_u32 s42, 14, s41
            s_add_u32 s43, s97, 12
            s_cmp_ge_u32 s43, s42
            s_cselect_b32 s41, s42, 0
            s_sub_u32 s43, s43, s41
            s_cmp_lt_u32 s97, s42
            s_cselect_b32 s97, s43, s97
            """)
        set_flag(L_TK, "s97")
        a(f"{L}:")
    def tile_scalars(role):
        ptr, nbytes = ((24, 4096 * 1152), (32, 4608 * 1152))[role]
        a(f"""
        s_add_u32 s40, s86, {32*role}
        s_lshl_b32 s43, s40, 7
        s_mul_i32 s41, s87, {12*FPS}
        s_add_u32 s43, s43, s41
        s_add_u32 s43, s43, {WS_FP}
        s_lshr_b32 s41, s40, {WPL.bit_length()-1}
        s_and_b32 s40, s40, {WPL-1}
        s_mul_i32 s42, s87, {12*NLN}
        s_add_u32 s41, s41, s42
        s_lshl_b32 s41, s41, 7
        {"s_lshl2_add_u32 s44, s40, s41" if opt["hb"] else "s_lshl1_add_u32 s44, s40, s41"}
        {"s_add_u32 s44, s44, s49" if opt["hb"] else ""}
        s_add_u32 s44, s44, {WS_HINT}
        s_lshl2_add_u32 s45, s86, s49
        s_mul_i32 s45, s45, 36864
        s_mul_i32 s41, s87, 384
        s_add_u32 s45, s45, s41
        s_add_u32 s46, s45, 18432
        s_mov_b32 s8, s{ptr}
        s_mov_b32 s9, s{ptr+1}
        s_mov_b32 s10, {nbytes}
        """)
    div3 = """
    s_mul_i32 s88, s97, 86
    s_lshr_b32 s88, s88, 8
    s_mul_i32 s87, s88, 3
    s_sub_u32 s87, s97, s87
    """
    ORDER = [[8, 9, 10, 11, 0, 1, 2, 3, 4, 5, 6, 7], [0, 8, 4, 1, 9, 5, 2, 10, 6, 3, 11, 7], [0, 1, 2, 3, 4, 5, 6, 7, 8, 9, 10, 11]][opt['order']]
    def tile_stream(role, p_issue, lo, n, mask):
        WL = opt["wlg" if role else "wl"]
        stamp(1)
        if opt["warm"] and not DYN: p_issue()
        wait_value(L_VISS, (4, 9)[role] - 2, sleep=1)
        stamp(2)
        if opt["fake"] & 4:
            a(f"""
            s_mul_i32 s45, s86, 3
            s_add_u32 s45, s45, s87
            s_lshl2_add_u32 s45, s45, s49
            s_mul_i32 s45, s45, 12288
            v_lshlrev_b32 v{AW}, 4, v1
            """)
        for k, j in enumerate(ORDER):
            if k >= WL: a(f"s_waitcnt vmcnt({WL-1})")
            if opt["fake"] & 4:
                a(f"buffer_load_dwordx4 {vr(W3+4*j)}, v{AW}, s[8:11], s45 offen nt")
                a("s_add_u32 s45, s45, 1024")
                continue
            if j < 8: a(f"buffer_load_dwordx4 {vr(W3+4*j)}, v{AW}, s[8:11], {'s45' if j < 4 else 's46'} offen offset:{(j%4)*1152} nt")
            else: a(f"buffer_load_dwordx4 {vr(W3+4*j)}, v{AW2}, s[8:11], s45 offen offset:{(j-8)*1152+256} nt")
        stamp(3)
        wait_value(L_DONE, "s58", sleep=0)
        L = a.label("hand"); F = a.label("first")
        a(f"""
        s_mov_b32 s51, 1
        s_branch {F}
        {L}:
        s_add_u32 s51, s51, 1
        s_cmp_gt_u32 s51, {SPIN}
        s_cbranch_scc1 L_abort
        s_and_b32 s41, s51, {mask}
        s_cselect_b32 s42, {LOC}, 0
        {F}:
        s_waitcnt vmcnt(0)
        """)
        p_issue()
        a("s_waitcnt vmcnt(0)")
        untag(lo, lo, n)
        a(f"s_cbranch_vccnz {L}")
        stamp(4)
        if opt["hb"] == 1: byte_notice()
        elif not opt["hb"]:
            a("""
            s_mov_b64 exec, 1
            ds_add_rtn_u32 v11, v122, v123
            s_mov_b64 exec, -1
            """)
    def byte_notice():
        a("""
        s_mov_b64 exec, 0xfff
        buffer_store_byte v8, v44, s[12:15], s44 offen sc1
        s_mov_b64 exec, -1
        """)
    def tile_tail():
        def notice():
            B = a.label("nohint")
            a(f"""
            v_readfirstlane_b32 s84, v11
            s_cmp_eq_u32 s84, 1
            s_cbranch_scc0 {B}
            s_mov_b64 exec, 0xfff
            buffer_store_short v45, v44, s[12:15], s44 offen sc1
            s_mov_b64 exec, -1
            """)
            stamp(1)
            a(f"{B}:")
        a(f"""
        v_cvt_pk_bf16_f32 v16, v16, v16
        ds_write_b16 v65, v16
        ds_read_b128 {vr(V0)}, v56
        """)
        if opt["hb"] == 2: byte_notice()
        if opt["hp"] < 0 and not opt["hb"]:
            a("s_waitcnt lgkmcnt(2)")
            notice()
        a("s_waitcnt lgkmcnt(0)")
        OP = [24, 28, 32, 36]
        k = 0
        for st in ["b0", "b2", (D1, 0, 32), "b1", (D2, 2, 32), "b3", (D1, 1, 40), (D2, 3, 40), (D0, 0, 0), (D0, 1, 8), (D0, 2, 16), (D0, 3, 24)]:
            if isinstance(st, str): build_op(OP[int(st[1])], V0 + int(st[1]))
            else:
                a(f"{SM} {vr(st[0])}, {vr(OP[st[1]])}, {vr(W3+st[2], 8)}, v46")
                k += 1
                if k == opt["hp"]: notice()
        stamp(5)
        for r in range(4): a(f"v_add_f32_dpp v{D1+r}, v{D2+r}, v{D1+r} row_ror:8 {DPPF}")
        a(f"""
        ds_write_b128 v58, {vr(D1)} offset:{L_T3+1024}
        ds_write_b128 v58, {vr(D0)} offset:{L_T3}
        s_cmp_ge_u32 s49, 2
        s_waitcnt lgkmcnt(0)
        s_barrier
        s_cbranch_scc1 L_wave_end
        """)
        for t in range(4): a(f"ds_read_b128 {vr(16+4*t)}, v57 offset:{L_T3+2048*t}")
        a("s_mov_b64 exec, s[54:55]")
        a("s_waitcnt lgkmcnt(2)")
        add4(16, 16, 20)
        a("s_waitcnt lgkmcnt(0)")
        add4(24, 24, 28); add4(16, 16, 24)
        tag4(16)
        a("buffer_store_dwordx4 v[16:19], v59, s[12:15], s43 offen sc1")
        stamp(6)
        finish_wave()
    a(f"""
    v_lshlrev_b32 v61, 12, v120
    v_lshl_add_u32 v61, v121, 2, v61
    v_and_b32 v10, 3, v1
    v_lshl_add_u32 v62, v120, 2, v10
    v_lshlrev_b32 v62, 7, v62
    s_mov_b32 s57, 0x07060501
    s_mov_b32 s58, 0
    """)
    if DYN and opt["warm"]:
        a(f"""
        s_lshl_b32 s41, s7, 10
        s_add_u32 s41, s41, {WS_OP+LOC}
        s_lshl_b32 s42, s49, 8
        s_add_u32 s41, s41, s42
        v_lshlrev_b32 v9, 2, v1
        buffer_load_dword v20, v9, s[12:15], s41 offen sc1
        """)
    claim(0); get_slot()
    a(f"""
    s_lshl2_add_u32 s89, s4, s97
    s_sub_u32 s89, s89, 12
    s_cmp_ge_u32 s97, 12
    s_cbranch_scc1 L_R
    {div3}
    s_lshl2_add_u32 s86, s4, s88
    s_lshr_b32 s47, s86, 1
    s_lshl_b32 s48, s47, 10
    s_lshl_b32 s47, s47, 13
    s_and_b32 s41, s86, 1
    s_lshl_b32 s42, s41, 6
    s_add_u32 s48, s48, s42
    s_add_u32 s48, s48, {WS_ST}
    s_lshl_b32 s41, s41, 9
    s_add_u32 s47, s47, s41
    s_lshl_b32 s41, s49, 7
    s_add_u32 s47, s47, s41
    s_add_u32 s47, s47, {WS_OP}
    v_add_u32 v61, s47, v61
    v_add_u32 v62, s48, v62
    """)
    tile_scalars(0)
    a(f"s_mov_b32 s42, {LOC}")
    def o_issue():
        a("buffer_load_dwordx4 v[24:27], v62, s[12:15], s42 offen sc1")
        for k in range(4): a(f"buffer_load_dword v{20+k}, v61, s[12:15], s42 offen offset:{k*1024} sc1")
    tile_stream(0, o_issue, 20, 8, opt["lmask"])
    a(f"""
    v_perm_b32 v28, v24, v25, s57
    v_mov_b32 v29, v28
    v_max_f32_dpp v29, v29, v29 quad_perm:[1,0,3,2] {DPPF}
    v_max_f32_dpp v29, v29, v29 quad_perm:[2,3,0,1] {DPPF}
    v_sub_f32 v28, v28, v29
    v_exp_f32 v28, v28
    v_mul_f32 v26, v26, v28
    v_mul_f32_dpp v16, v28, v20 quad_perm:[0,0,0,0] {DPPF}
    v_mul_f32_dpp v18, v28, v22 quad_perm:[2,2,2,2] {DPPF}
    v_add_f32_dpp v26, v26, v26 quad_perm:[1,0,3,2] {DPPF}
    v_fmac_f32_dpp v16, v28, v21 quad_perm:[1,1,1,1] {DPPF}
    v_fmac_f32_dpp v18, v28, v23 quad_perm:[3,3,3,3] {DPPF}
    v_add_f32_dpp v26, v26, v26 quad_perm:[2,3,0,1] {DPPF}
    v_rcp_f32 v26, v26
    v_add_f32 v16, v16, v18
    v_mul_f32 v16, v16, v26
    """)
    tile_tail()
    c1 = -2.0 * 0.7978845608028654 * 1.4426950408889634
    a(f"""
    L_DG:
    v_lshlrev_b32 v47, 9, v120
    v_lshl_add_u32 v47, v121, 2, v47
    s_mov_b32 s59, {f32bits(0.044715 * c1)}
    v_mov_b32 v66, {f32bits(c1):#x}
    """)
    done_target_g("s58")
    claim(1); get_slot()
    a(f"""
    s_lshr_b32 s89, s4, 1
    s_add_u32 s89, s89, 32
    s_and_b32 s85, s4, 1
    s_lshl4_add_u32 s41, s85, s97
    s_cmp_eq_u32 s41, 29
    s_cbranch_scc1 L_R
    s_cmp_ge_u32 s97, 14
    s_cbranch_scc1 L_wave_end
    {div3}
    s_mul_i32 s86, s85, 5
    s_add_u32 s86, s86, s88
    s_lshl1_add_u32 s41, s85, s87
    s_cmp_lt_u32 s97, 12
    s_cselect_b32 s86, s86, 4
    s_cselect_b32 s87, s87, s41
    s_cselect_b32 s48, {opt["lmask"]}, 0
    s_lshr_b32 s41, s4, 1
    s_mul_i32 s41, s41, 9
    s_add_u32 s86, s86, s41
    s_lshl_b32 s56, s88, 1
    s_add_u32 s57, s56, 1
    s_min_u32 s57, s57, 8
    """)
    for sl, msk in (("s56", "s[90:91]"), ("s57", "s[92:93]")):
        a(f"""
        s_bitcmp1_b32 {THREE:#x}, {sl}
        s_cselect_b64 {msk}, -1, 0
        s_cselect_b32 {sl}, 2, 1
        s_lshl_b32 {sl}, {sl}, 10
        """)
    a(f"""
    s_mul_i32 s47, s86, 3072
    s_lshl_b32 s41, s49, 7
    s_add_u32 s47, s47, s41
    s_add_u32 s47, s47, {WS_GUP}
    v_add_u32 v61, s47, v47
    v_add_u32 v62, {36*3072}, v61
    v_add_u32 v63, s56, v61
    v_add_u32 v64, s57, v62
    """)
    tile_scalars(1)
    a("s_cmp_eq_u32 s48, 0")
    a(f"s_cselect_b32 s42, 0, {LOC}")
    def h_issue():
        a("""
        buffer_load_dword v16, v61, s[12:15], s42 offen sc1
        buffer_load_dword v17, v62, s[12:15], s42 offen sc1
        buffer_load_dword v18, v61, s[12:15], s42 offen offset:1024 sc1
        buffer_load_dword v19, v62, s[12:15], s42 offen offset:1024 sc1
        buffer_load_dword v20, v63, s[12:15], s42 offen sc1
        buffer_load_dword v21, v64, s[12:15], s42 offen sc1
        """)
    tile_stream(1, h_issue, 16, 6, "s48")
    a("""
    v_cndmask_b32 v20, 0, v20, s[90:91]
    v_cndmask_b32 v21, 0, v21, s[92:93]
    v_pk_add_f32 v[16:17], v[16:17], v[18:19]
    v_pk_add_f32 v[16:17], v[16:17], v[20:21]
    v_cvt_pk_bf16_f32 v17, v16, v17
    v_lshlrev_b32 v16, 16, v17
    v_and_b32 v17, 0xffff0000, v17
    v_mul_f32 v18, v16, v16
    v_fma_f32 v18, v18, s59, v66
    v_mul_f32 v18, v18, v16
    v_exp_f32 v18, v18
    v_add_f32 v18, 1.0, v18
    v_rcp_f32 v18, v18
    v_mul_f32 v16, v16, v18
    v_cvt_pk_bf16_f32 v16, v16, v16
    v_and_b32 v16, 0xffff0000, v16
    v_mul_f32 v16, v16, v17
    """)
    tile_tail()
    a("L_wave_end:")
    finish_wave()

    def collect(nd, n, issue):
        L = a.label("hint"); R = a.label("again"); F = a.label("read")
        a(f"""
        s_branch {L}
        {R}:
        s_sub_u32 s51, s51, 1
        s_cbranch_scc1 L_abort
        s_branch {F}
        {L}:
        s_sub_u32 s53, s53, 1
        s_cbranch_scc1 {F}
        """)
        per = min(nd, WPL // 2)
        for k in range(nd // per):
            a(f"s_load_dwordx{per} s[{16+per*k}:{15+per*k+per}], s[76:77], {128*k} glc" if per > 1 else f"s_load_dword s{16+k}, s[76:77], {128*k} glc")
        a("s_waitcnt lgkmcnt(0)")
        for k in range(nd // 2): a(f"s_xor_b64 s[{16+2*k}:{17+2*k}], s[{16+2*k}:{17+2*k}], s[90:91]")
        for k in range(1, nd // 2): a(f"s_or_b64 s[16:17], s[16:17], s[{16+2*k}:{17+2*k}]")
        a(f"s_cbranch_scc1 {L}")
        stamp(2)
        a(f"{F}:")
        issue()
        a("s_waitcnt vmcnt(0)")
        untag(48, 48, n)
        a(f"s_cbranch_vccnz {R}")
        stamp(3)

    def m_tag():
        a(f"""
        s_waitcnt lgkmcnt(0)
        s_add_u32 s52, s52, 1
        s_and_b32 s53, s52, 0xff
        v_mov_b32 v8, s53
        v_mov_b32 v13, {L_TAG}
        s_mov_b64 exec, 1
        v_mov_b32 v10, s52
        ds_write_b32 v13, v10 offset:{L_E1-L_TAG}
        ds_write_b32 v13, v8
        s_mov_b64 exec, -1
        s_mov_b32 s49, 4
        """)
    a("""
    L_M2:
    s_cmp_eq_u32 s5, 0
    s_cbranch_scc1 L_MA
    s_waitcnt vmcnt(0)
    """)
    stamp(2)
    X = 16
    for t in range(9):
        a(f"v_lshlrev_b32 v{X+2*t}, 16, v{108+t}")
        a(f"v_and_b32 v{X+2*t+1}, 0xffff0000, v{108+t}")
    a(f"v_pk_add_f32 v[34:35], {vr(X,2)}, {vr(X+2,2)}")
    for t in range(2, 9): a(f"v_pk_add_f32 v[34:35], v[34:35], {vr(X+2*t,2)}")
    a("v_add_f32 v34, v34, v35")
    def half_reduce(r):
        for mode in ("quad_perm:[1,0,3,2]", "quad_perm:[2,3,0,1]", "row_half_mirror", "row_mirror"):
            a(f"v_add_f32_dpp v{r}, v{r}, v{r} {mode} {DPPF}")
        a(f"v_mov_b32 v{r+1}, v{r}")
        a(f"v_permlane16_swap_b32 v{r}, v{r+1}")
        a(f"v_add_f32 v{r}, v{r}, v{r+1}")
    half_reduce(34)
    a(f"v_mul_f32 v34, {f32bits(1.0/576):#x}, v34")
    a("v_mov_b32 v35, v34")
    for t in range(9): a(f"v_pk_add_f32 {vr(36+2*t,2)}, {vr(X+2*t,2)}, v[34:35] neg_lo:[0,1] neg_hi:[0,1]")
    a("v_pk_mul_f32 v[54:55], v[36:37], v[36:37]")
    for t in range(1, 9): a(f"v_pk_fma_f32 v[54:55], {vr(36+2*t,2)}, {vr(36+2*t,2)}, v[54:55]")
    a("v_add_f32 v54, v54, v55")
    half_reduce(54)
    a(f"""
    v_mul_f32 v54, {f32bits(1.0/576):#x}, v54
    v_cvt_pk_bf16_f32 v34, v34, v54
    v_and_b32 v54, 0xffff0000, v34
    v_lshlrev_b32 v34, 16, v34
    v_mov_b32 v35, v34
    v_add_f32 v54, {f32bits(1e-5):#x}, v54
    v_cvt_pk_bf16_f32 v54, v54, v54
    v_and_b32 v54, 0xffff0000, v54
    v_sqrt_f32 v54, v54
    v_cvt_pk_bf16_f32 v54, v54, v54
    v_and_b32 v54, 0xffff0000, v54
    v_rcp_f32 v54, v54
    v_lshrrev_b32 v11, 5, v1
    v_mul_u32_u24 v11, 2304, v11
    v_and_b32 v13, 31, v1
    v_mul_u32_u24 v13, 72, v13
    v_add_u32 v11, v11, v13
    v_mov_b32 v55, v54
    """)
    for t in range(9): a(f"v_pk_add_f32 {vr(X+2*t,2)}, {vr(X+2*t,2)}, v[34:35] neg_lo:[0,1] neg_hi:[0,1]")
    for t in range(9): a(f"v_cvt_pk_bf16_f32 v{36+t}, v{X+2*t}, v{X+2*t+1}")
    m_tag()
    for t in range(9):
        a(f"v_lshlrev_b32 v{X+2*t}, 16, v{36+t}")
        a(f"v_and_b32 v{X+2*t+1}, 0xffff0000, v{36+t}")
        a(f"v_pk_mul_f32 {vr(X+2*t,2)}, {vr(X+2*t,2)}, v[54:55]")
        a(f"v_cvt_pk_bf16_f32 v{X+2*t}, v{X+2*t}, v{X+2*t}")
        a(f"v_cvt_pk_bf16_f32 v{X+2*t+1}, v{X+2*t+1}, v{X+2*t+1}")
        a(f"ds_write_b64 v11, {vr(X+2*t,2)} offset:{L_XNP+8*t}")
    stamp(3)
    a(f"""
    v_lshlrev_b32 v14, 4, v1
    v_mov_b32 v15, {L_CNT2}
    """ + q_head("s44") + f"""
    s_and_b32 s41, s6, 3
    s_lshl2_add_u32 s44, s44, s41
    s_lshl_b32 s44, s44, 10
    s_add_u32 s44, s44, {WS_QP}
    s_add_u32 s45, s44, {LOC}
    """)
    spin("\n".join(["ds_read_b32 v10, v15"] + tile_reads(L_BIG, 16, 14)), "v_cmp_ne_u32 vcc, 7, v10", sleep=0)
    add4(16, 16, 20); add4(24, 24, 28); add4(32, 32, 36); add4(40, 40, 44)
    add4(16, 16, 24); add4(32, 32, 40); add4(16, 16, 48); add4(16, 16, 32)
    tag4(16)
    a("buffer_store_dwordx4 v[16:19], v14, s[12:15], s45 offen")
    a("buffer_store_dwordx4 v[16:19], v14, s[12:15], s44 offen sc1")
    stamp(1)
    done_target_g("s58")
    a("s_setprio 0")
    get_slot()
    a("""
    s_lshr_b32 s89, s4, 1
    s_add_u32 s89, s89, 32
    s_and_b32 s41, s4, 1
    s_lshl4_add_u32 s41, s41, s97
    s_cmp_eq_u32 s41, 29
    s_cbranch_scc1 L_R
    """)
    finish_wave()

    a(f"""
    L_MA:
    s_lshr_b32 s46, s7, 3
    s_lshl_b32 s46, s46, 13
    s_bfe_u32 s47, s6, 0x10002
    s_lshl_b32 s47, s47, 9
    s_add_u32 s46, s46, s47
    s_add_u32 s46, s46, {WS_QP}
    s_add_u32 s47, s46, {LOC}
    s_mov_b32 s48, 0
    v_lshrrev_b32 v11, 5, v1
    v_and_b32 v15, 31, v1
    v_lshlrev_b32 v14, 12, v11
    v_lshl_add_u32 v14, v15, 4, v14
    v_lshlrev_b32 v12, 8, v11
    v_lshl_add_u32 v12, v2, 4, v12
    v_and_b32 v9, 1, v3
    v_lshl_add_u32 v12, v9, 3, v12
    """)
    m_tag()
    def q_issue(r):
        a("s_add_u32 s48, s48, 1")
        a(f"s_and_b32 s41, s48, {opt['lmask']}")
        a("s_cselect_b32 s42, s47, s46")
        for i in range(4): a(f"buffer_load_dwordx4 {vr(r+4*i)}, v14, s[12:15], s42 offen offset:{i*1024} sc1")
    wait_flag(L_QGO, sleep=2)
    stamp(2)
    poll(opt["qsets"], 16, 16, 64, q_issue, 4, stag=opt["qstag"])
    add4(16, 16, 20); add4(24, 24, 28); add4(16, 16, 24)
    a(f"""
    v_cvt_pk_bf16_f32 v16, v16, v17
    v_cvt_pk_bf16_f32 v17, v18, v19
    ds_write_b64 v12, v[16:17] offset:{L_QL}
    """)
    set_flag(L_QFLAG)
    stamp(3)
    get_slot()
    a("""
    s_lshl2_add_u32 s89, s4, s97
    s_sub_u32 s89, s89, 12
    s_mov_b32 s58, 0
    s_cmp_lt_u32 s97, 12
    s_cbranch_scc1 L_wave_end
    """)

    a(f"""
    L_R:
    s_mul_i32 s46, s89, {FPS}
    s_lshl_b32 s41, s49, 11
    s_add_u32 s46, s46, s41
    s_add_u32 s46, s46, {WS_FP}
    v_lshlrev_b32 v14, 4, v1
    s_lshl_b32 s41, s49, 10
    v_add_u32 v15, s41, v14
    s_mul_i32 s41, s89, 43
    s_lshr_b32 s41, s41, 9
    s_mul_i32 s42, s41, 12
    s_sub_u32 s42, s89, s42
    s_mul_i32 s41, s41, 192
    s_cmp_ge_u32 s42, 8
    s_cbranch_scc1 L_R_hi
    s_lshr_b32 s43, s42, 2
    s_and_b32 s48, s42, 3
    s_lshl_b32 s48, s48, 5
    s_branch L_R_col
    L_R_hi:
    s_bfe_u32 s43, s42, 0x10001
    s_and_b32 s48, s42, 1
    s_lshl_b32 s48, s48, 5
    s_add_u32 s48, s48, 128
    L_R_col:
    s_mul_i32 s43, s43, 576
    s_add_u32 s41, s41, s43
    s_add_u32 s41, s41, s48
    s_lshl_b32 s41, s41, 1
    v_and_b32 v12, 7, v1
    v_lshlrev_b32 v12, 3, v12
    v_and_b32 v13, 1, v3
    v_lshl_add_u32 v12, v13, 2, v12
    v_add_u32 v12, s41, v12
    v_min_u32 v12, 2300, v12
    global_load_dword v13, v12, s[16:17]
    v_mov_b32 v48, 0
    v_mov_b32 v49, 0
    v_mov_b32 v50, 0
    v_mov_b32 v51, 0
    s_mov_b32 s43, {f32bits(-1.4426950408889634)}
    """)
    wait_value(L_DONE, "s58", sleep=2)
    stamp(4)
    a(f"""
    s_waitcnt vmcnt(0)
    v_lshlrev_b32 v22, 16, v13
    v_and_b32 v23, 0xffff0000, v13
    v_readfirstlane_b32 s90, v8
    s_mul_i32 s41, s89, 5
    s_add_u32 s41, s41, s49
    s_mul_i32 s41, s41, {128*16//WPL}
    s_add_u32 s41, s41, {WS_HINT}
    s_add_u32 s76, s38, s41
    s_addc_u32 s77, s39, 0
    s_mul_i32 s90, s90, 0x01010101
    s_mov_b32 s91, s90
    s_movk_i32 s53, 200
    s_mov_b32 s51, {SPIN}
    v_mov_b32 v20, {L_CNT3}
    v_mov_b32 v21, 1
    s_cmp_eq_u32 s49, 4
    s_cbranch_scc0 L_R_full
    s_mov_b32 exec_hi, 0
    """)
    collect(4 if opt["hb"] else 2, 4, lambda: a("buffer_load_dwordx4 v[48:51], v14, s[12:15], s46 offen sc1"))
    a("""
    s_mov_b32 exec_hi, -1
    s_branch L_R_put
    L_R_full:
    """)
    collect(16 if opt["hb"] else 8, 8, lambda: a("buffer_load_dwordx4 v[48:51], v14, s[12:15], s46 offen sc1\nbuffer_load_dwordx4 v[52:55], v14, s[12:15], s46 offen offset:1024 sc1"))
    add4(48, 48, 52)
    a("L_R_put:")
    a(f"ds_write_b128 v15, v[48:51] offset:{L_T3}")
    last_arriver(2, "L_wave_end", [f"ds_read_b128 {vr(r)}, v14 offset:{L_T3+1024*t}" for t, r in enumerate((16, 24, 32, 36, 40))], r0=20)
    stamp(5)
    a("s_waitcnt lgkmcnt(3)")
    add4(16, 16, 24)
    a("s_waitcnt lgkmcnt(1)")
    add4(32, 32, 36)
    a("s_waitcnt lgkmcnt(0)")
    add4(32, 32, 40)
    for r in range(4): a(f"v_permlane32_swap_b32 v{16+r}, v{32+r}")
    add4(16, 16, 32)
    a(f"""
    v_permlane16_swap_b32 v16, v18
    v_permlane16_swap_b32 v17, v19
    v_pk_add_f32 v[16:17], v[16:17], v[18:19]
    v_add_f32_dpp v16, v16, v16 row_ror:8 {DPPF}
    v_add_f32_dpp v17, v17, v17 row_ror:8 {DPPF}
    v_cvt_pk_bf16_f32 v16, v16, v17
    v_mov_b32 v17, v16
    v_permlane32_swap_b32 v16, v17
    v_lshlrev_b32 v18, 16, v17
    v_and_b32 v19, 0xffff0000, v17
    v_mul_f32 v20, s43, v18
    v_mul_f32 v21, s43, v19
    v_exp_f32 v20, v20
    v_exp_f32 v21, v21
    v_add_f32 v20, 1.0, v20
    v_add_f32 v21, 1.0, v21
    v_rcp_f32 v20, v20
    v_rcp_f32 v21, v21
    v_mul_f32 v18, v18, v20
    v_mul_f32 v19, v19, v21
    v_cvt_pk_bf16_f32 v17, v18, v19
    v_lshlrev_b32 v20, 16, v16
    v_and_b32 v21, 0xffff0000, v16
    v_lshlrev_b32 v18, 16, v17
    v_and_b32 v19, 0xffff0000, v17
    v_mul_f32 v18, v18, v20
    v_mul_f32 v19, v19, v21
    v_cvt_pk_bf16_f32 v17, v18, v19
    v_lshlrev_b32 v18, 16, v17
    v_and_b32 v19, 0xffff0000, v17
    v_add_f32 v18, v18, v22
    v_add_f32 v19, v19, v23
    s_mov_b32 exec_lo, 0x00ff00ff
    s_mov_b32 exec_hi, 0
    v_cvt_pk_bf16_f32 v17, v18, v19
    global_store_dword v12, v17, s[34:35]
    s_cmp_lg_u32 s89, 0
    s_cbranch_scc1 L_R_done
    s_mov_b64 exec, 1
    v_mov_b32 v18, {L_E1}
    ds_read_b32 v19, v18
    v_mov_b32 v18, {WS_EPOCH}
    s_waitcnt lgkmcnt(0)
    buffer_store_dword v19, v18, s[12:15], 0 offen
    L_R_done:
    """)
    stamp(6)
    finish_wave()

    a("L_abort:")
    if stamps:
        a("s_mov_b32 s74, -1")
        a(f"""
        L_dump:
        s_mov_b64 exec, -1
        s_waitcnt lgkmcnt(0)
        s_lshl_b32 s41, s2, 4
        s_add_u32 s41, s41, s3
        s_add_u32 s41, s41, 1
        s_lshl_b32 s41, s41, 5
        s_add_u32 s41, s41, {WS_STAMP}
        v_mov_b32 v9, s41
        """)
        for i in range(8): a(f"v_mov_b32 v{i}, s{60+2*i}")
        a("""
        s_mov_b64 exec, 1
        buffer_store_dwordx4 v[0:3], v9, s[12:15], 0 offen
        buffer_store_dwordx4 v[4:7], v9, s[12:15], 0 offen offset:16
        """)
    a("s_endpgm")
    body = a.finish()
    init = "\n".join(f"    s_mov_b32 s{60+2*i}, 0" for i in range(1, 8)) + "\n" if stamps else ""
    hdr = open("cdna_kernels/" + NAME + ".s.ref").read().split("; Override launch")[0]
    return f"""{hdr}; @launch grid=(256,1,1) block=({NW*64},1,1) lds={LDS_BYTES}
.amdgcn_target "amdgcn-amd-amdhsa--gfx950"
.text
.globl {NAME}_kernel
.p2align 12
.p2align 8
.type {NAME}_kernel,@function
{NAME}_kernel:
{init}{body}
KERNEL_END:
.section .rodata,"a"
.p2align 6
.amdhsa_kernel {NAME}_kernel
  .amdhsa_next_free_vgpr 128
  .amdhsa_next_free_sgpr 100
  .amdhsa_accum_offset 128
  .amdhsa_group_segment_fixed_size 0
  .amdhsa_kernarg_size 96
  .amdhsa_user_sgpr_count 2
  .amdhsa_user_sgpr_kernarg_segment_ptr 1
  .amdhsa_system_sgpr_workgroup_id_x 1
.end_amdhsa_kernel
"""

THREE = sum(1 << s for s in range(9) if (16 * s + 15) // 9 - (16 * s) // 9 == 2)

def emit(name, stamps, opt):
    import hb, subprocess
    open(name + ".s", "w").write(gen(stamps, opt)); hb.build(name + ".s")
    r = subprocess.run([sys.executable, "../cdna_kernels/cdna_unwritten_srd_check.py", name + ".co", "--entry", NAME + "_kernel"], capture_output=True, text=True)
    if ": ok:" not in r.stdout: print(r.stdout[-2500:])

if __name__ == "__main__":
    emit("k23", False, {}); emit("ks23", True, {})
    print("built", hex(THREE))
```

```python
import sys, struct
from asmlib import Asm

NAME = "recurrent_scan__sliding_block_cached__geglu_ffn__decode"
NW = 14
WS_EPOCH = 0
WS_QP = 0x1000
WS_ST = WS_QP + 128 * 1024
WS_GUP = WS_ST + 128 * 128
WS_OP = WS_GUP + 216 * 1024
LOC = 488 * 1024
WS_FP = WS_QP + 2 * LOC
FPS = 72 * 128
WS_HINT = WS_FP + 36 * FPS
WS_STAMP = 8 << 20
L_XNP = 0
L_VAL = 4608
L_STM, L_STL = 5632, 5664
L_TAG, L_QFLAG, L_CNT0, L_CNT1, L_CNT2, L_CNT3, L_DONE, L_QGO = 5760, 5764, 5768, 5772, 5776, 5780, 5784, 5788
L_KRDY, L_VISS, L_CGO, L_TK, L_E1, L_CNT4, L_FLUSH = 5792, 5808, 5812, 5816, 5820, 5824, 5828
L_QL = 7168
L_OT = 8192
L_T3 = 12288
L_BIG = 20480
L_GT = L_BIG + 9216
LDS_BYTES = 86016
SPIN = 1000000
MF = "v_mfma_f32_16x16x32_bf16"
SM = "v_smfmac_f32_16x16x64_bf16"
DPPF = "row_mask:0xf bank_mask:0xf"

def f32bits(x): return struct.unpack("<I", struct.pack("<f", x))[0]
def vr(r, n=4): return f"v[{r}:{r+n-1}]"

DEF = dict(wa0=4, wa=8, wg=2, wg2=3, gburst=8, wl=6, wlg=6, vd=3, gd=-2, qgo=6, qsets=2, qstag=12, lmask=7,
           warm=1, dyn=0, cda=12, cdg=5, fast4=1, perm=1, order=1, fake=0, hp=-1, hb=0, wpl=16, unev=0, cut=0, nog=0, dfr=1, kf=7, fd=1, stl=0)

def gen(stamps=False, opt=None):
    o_ = dict(DEF); o_.update(opt or {}); opt = o_
    a = Asm()
    DYN = opt["dyn"]
    WPL = opt["wpl"]; NLN = 5 * 16 // WPL
    def stamp(i):
        if stamps: a(f"s_memrealtime s[{60+2*i}:{61+2*i}]")
    def finish_wave():
        if stamps:
            stamp(7); a("s_branch L_dump")
        else:
            a("s_endpgm")
    def spin(reads, check, sleep=1, preloaded=False):
        L = a.label("spin"); D = a.label("spun"); C = a.label("chk")
        a(f"s_mov_b32 s51, {SPIN}")
        if preloaded: a(f"s_branch {C}")
        a(f"{L}:")
        a(reads)
        if preloaded: a(f"{C}:")
        a("s_waitcnt lgkmcnt(0)")
        a(check)
        a(f"s_cbranch_vccz {D}")
        a("s_sub_u32 s51, s51, 1")
        a("s_cbranch_scc1 L_abort")
        if sleep: a(f"s_sleep {sleep}")
        a(f"s_branch {L}")
        a(f"{D}:")
    def chain(op3, op2, regs, tmp):
        out = []; rs = list(regs); cur = rs.pop(0)
        while rs:
            if len(rs) >= 2:
                out.append(f"{op3} v{tmp}, v{cur}, v{rs[0]}, v{rs[1]}"); rs = rs[2:]
            else:
                out.append(f"{op2} v{tmp}, v{cur}, v{rs[0]}"); rs = rs[1:]
            cur = tmp
        return out, cur
    def maxchain(regs):
        out, cur = chain("v_max3_u32", "v_max_u32", regs, 9)
        return "\n".join(out + [f"v_cmp_eq_u32 vcc, -2, v{cur}"])
    def untag(dst, src, n):
        for r in range(n): a(f"v_xor_b32 v{dst+r}, v{src+r}, v8")
        out, cur = chain("v_or3_b32", "v_or_b32", range(dst, dst + n), 9)
        a("\n".join(out + [f"v_and_b32 v9, 0xff, v{cur}", "v_cmp_ne_u32 vcc, 0, v9"]))
    def poll(nsets, n, canon, raw0, issue, nloads, stag=1):
        L = a.label("poll"); D = a.label("polled")
        a(f"s_mov_b32 s51, {SPIN}")
        for k in range(nsets):
            issue(raw0 + k * n)
            if k < nsets - 1: a(f"s_sleep {stag}")
        a(f"{L}:")
        for k in range(nsets):
            a(f"s_waitcnt vmcnt({(nsets-1)*nloads})")
            untag(canon, raw0 + k * n, n)
            a(f"s_cbranch_vccz {D}")
            issue(raw0 + k * n)
        a("s_sub_u32 s51, s51, 1")
        a("s_cbranch_scc1 L_abort")
        a(f"s_branch {L}")
        a(f"{D}:")
    def poll1(n, reg, issue):
        L = a.label("again"); F = a.label("first")
        a(f"""
        s_branch {F}
        {L}:
        s_sub_u32 s51, s51, 1
        s_cbranch_scc1 L_abort
        {F}:
        """)
        issue(reg)
        a("s_waitcnt vmcnt(0)")
        untag(reg, reg, n)
        a(f"s_cbranch_vccnz {L}")
    def sel_masks():
        a("""
        v_and_b32 v9, 1, v1
        v_lshlrev_b32 v9, 4, v9
        v_mov_b32 v10, 0xffff
        v_lshlrev_b32 v10, v9, v10
        v_bfe_u32 v9, v1, 1, 2
        v_cmp_eq_u32 s[76:77], 0, v9
        v_cmp_eq_u32 s[78:79], 1, v9
        v_cmp_eq_u32 s[80:81], 2, v9
        v_cmp_eq_u32 s[82:83], 3, v9
        v_cndmask_b32 v4, 0, v10, s[76:77]
        v_cndmask_b32 v5, 0, v10, s[78:79]
        v_cndmask_b32 v6, 0, v10, s[80:81]
        v_cndmask_b32 v7, 0, v10, s[82:83]
        """)
    def get_tag():
        a(f"v_mov_b32 v9, {L_TAG}")
        spin("ds_read_b32 v8, v9", "v_cmp_eq_u32 vcc, -2, v8")
    def wait_flag(addr, sleep=1):
        a(f"v_mov_b32 v9, {addr}")
        spin("ds_read_b32 v10, v9", "v_cmp_eq_u32 vcc, -2, v10", sleep=sleep)
    def wait_value(addr, val, sleep=1):
        a(f"v_mov_b32 v9, {addr}")
        spin("ds_read_b32 v10, v9", f"v_cmp_ne_u32 vcc, {val}, v10", sleep=sleep)
    def lane0(op, addr, val):
        a(f"""
        v_mov_b32 v9, {addr}
        v_mov_b32 v10, {val}
        s_mov_b64 exec, 1
        {op} v9, v10
        s_mov_b64 exec, -1
        """)
    def set_flag(addr, val=0): lane0("ds_write_b32", addr, val)
    def bump(addr): lane0("ds_add_u32", addr, 1)
    def build_op(dst, val):
        for t in range(4): a(f"v_and_b32 v{dst+t}, v{val}, v{4+t}")
    def tag4(r):
        for t in range(4): a(f"v_and_or_b32 v{r+t}, v{r+t}, s50, v8")
    def add4(d, x, y):
        a(f"v_pk_add_f32 {vr(d,2)}, {vr(x,2)}, {vr(y,2)}")
        a(f"v_pk_add_f32 {vr(d+2,2)}, {vr(x+2,2)}, {vr(y+2,2)}")
    def wave_reduce(op, regs):
        for mode in ("quad_perm:[1,0,3,2] row_mask:0xf", "quad_perm:[2,3,0,1] row_mask:0xf", "row_half_mirror row_mask:0xf",
                     "row_mirror row_mask:0xf", "row_bcast:15 row_mask:0xa", "row_bcast:31 row_mask:0xc"):
            for r in regs: a(f"{op}_dpp v{r}, v{r}, v{r} {mode} bank_mask:0xf")
    def la_prep(cnt):
        a(f"v_mov_b32 v9, {cnt}")
        a("v_mov_b32 v10, 1")
    def last_arriver(expect, skip, reads, r0=9):
        a(f"""
        s_mov_b64 exec, 1
        ds_add_rtn_u32 v11, v{r0}, v{r0+1}
        s_mov_b64 exec, -1
        """)
        for r in reads: a(r)
        a(f"""
        s_waitcnt lgkmcnt({len(reads)})
        v_readfirstlane_b32 s84, v11
        s_cmp_eq_u32 s84, {expect}
        s_cbranch_scc0 {skip}
        """)
    def lin_addr(r):
        a(f"""
        v_and_b32 v{r}, 33, v1
        v_mul_u32_u24 v{r}, 0x110, v{r}
        v_and_b32 v{r}, 0x300, v{r}
        v_bfe_u32 v9, v1, 1, 4
        v_lshl_add_u32 v{r}, v9, 4, v{r}
        """)
    def done_target_g(dst):
        a(f"""
        s_mul_i32 s41, s6, 9
        s_add_u32 s42, s41, 8
        s_lshr_b32 s41, s41, 4
        s_lshr_b32 s42, s42, 4
        s_sub_u32 {dst}, s42, s41
        s_sub_u32 {dst}, {dst}, 1
        """)
    def q_head(dst):
        if not opt["perm"]: return f"s_lshr_b32 {dst}, s7, 2"
        return f"""
        s_and_b32 {dst}, s6, 12
        s_lshr_b32 {dst}, 0x1320, {dst}
        s_and_b32 {dst}, {dst}, 3
        s_lshl2_add_u32 {dst}, s4, {dst}
        """
    def get_slot():
        if not DYN:
            a("s_mov_b32 s97, s6"); return
        wait_flag(L_TK, sleep=2)
        a("v_readfirstlane_b32 s97, v10")

    def defer():
        if opt["dfr"]:
            a("s_setprio 0")
            wait_flag(L_FLUSH, sleep=4)
    WQ, WU, W3, OPR, V0, D0, D1, D2 = 16, 32, 68, 104, 116, 12, 48, 52
    AXQ, AXU, AXU2, ALN, AW, AW2 = 112, 113, 114, 115, 125, 126

    stamp(0)
    a(f"""
    s_cmp_ge_u32 s2, 256
    s_cbranch_scc1 L_exit
    s_load_dwordx16 s[16:31], s[0:1], 0
    s_load_dwordx8 s[32:39], s[0:1], 64
    s_load_dwordx2 s[12:13], s[0:1], 88
    s_getpc_b64 s[40:41]
    L_pc:
    v_lshlrev_b32 v9, 4, v0
    v_min_u32 v9, KERNEL_END-L_pc-4, v9
    global_load_dword v67, v9, s[40:41]
    v_lshrrev_b32 v2, 6, v0
    v_and_b32 v1, 63, v0
    v_readfirstlane_b32 s3, v2
    v_lshlrev_b32 v9, 3, v0
    v_mov_b32 v4, -2
    v_mov_b32 v5, -2
    ds_write_b64 v9, v[4:5]
    s_and_b32 s4, s2, 7
    s_lshr_b32 s6, s2, 4
    s_bfe_u32 s5, s2, 0x10003
    s_lshl_b32 s7, s4, 4
    s_add_u32 s7, s7, s6
    v_and_b32 v2, 15, v1
    v_lshrrev_b32 v3, 4, v1
    s_mov_b32 s50, 0xffffff00
    s_mov_b32 s11, 0x20000
    s_mov_b32 s14, 0x1000000
    s_mov_b32 s15, 0x20000
    s_sub_u32 s3, s3, 1
    s_cbranch_scc0 L_notM
    s_setprio 3
    v_lshrrev_b32 v11, 5, v1
    v_mul_u32_u24 v11, 1152, v11
    v_and_b32 v12, 31, v1
    v_mul_u32_u24 v12, 36, v12
    v_add_u32 v11, v11, v12
    s_cmp_eq_u32 s5, 0
    s_waitcnt lgkmcnt(0)
    s_cbranch_scc1 L_M_nox
    global_load_dwordx4 v[108:111], v11, s[16:17]
    global_load_dwordx4 v[112:115], v11, s[16:17] offset:16
    global_load_dword v116, v11, s[16:17] offset:32
    L_M_nox:
    s_load_dword s52, s[38:39], {WS_EPOCH}
    s_barrier
    s_branch L_M2
    L_notM:
    s_cmp_ge_u32 s3, 9
    s_cbranch_scc1 L_S
    s_cmp_eq_u32 s5, 1
    s_cbranch_scc1 L_X
    s_cmp_ge_u32 s3, 4
    s_cbranch_scc1 L_S
    s_bfe_u32 s40, s6, 0x10002
    s_lshl_b32 s40, s40, 4
    s_lshr_b32 s41, s7, 3
    s_add_u32 s40, s40, s41
    s_lshl_b32 s40, s40, 20
    s_and_b32 s41, s6, 3
    s_lshl_b32 s41, s41, 16
    s_add_u32 s40, s40, s41
    s_lshl_b32 s41, s3, 14
    s_add_u32 s40, s40, s41
    s_add_u32 s40, s40, {3072*256}
    s_mov_b32 s42, s40
    s_add_u32 s41, s41, {L_BIG}
    s_mov_b32 m0, s41
    v_lshlrev_b32 v9, 8, v3
    """)
    for q in range(4):
        a(f"v_add_u32 v{16+q}, {4*q}, v3")
        a(f"v_xor_b32 v{16+q}, v{16+q}, v2")
        a(f"v_lshl_add_u32 v{16+q}, v{16+q}, 4, v9")
    a("""
    s_mov_b32 s10, 33554432
    s_waitcnt lgkmcnt(0)
    s_mov_b32 s8, s18
    s_mov_b32 s9, s19
    """)
    stamp(1)
    def l_issue(i):
        if i < 16:
            if i and i % 4 == 0:
                a("s_add_u32 s41, s41, 4096"); a("s_mov_b32 m0, s41"); a("s_add_u32 s40, s40, 4096")
            a(f"buffer_load_dwordx4 v{16+i%4}, s[8:11], s40 offen offset:{(i%4)*1024} nt lds")
        else:
            k = i - 16
            if k == 0:
                a("s_mov_b32 s8, s20"); a("s_mov_b32 s9, s21")
            if k and k % 4 == 0: a("s_add_u32 s42, s42, 4096")
            a(f"buffer_load_dwordx4 {vr(64+4*k)}, v20, s[8:11], s42 offen offset:{(k%4)*256} nt")
    WA0, WA = opt["wa0"], opt["wa"]
    for i in range(WA0): l_issue(i)
    a("""
    s_barrier
    s_branch L_L
    L_X:
    s_and_b32 s40, s6, 3
    s_mul_i32 s40, s40, 144
    s_lshl_b32 s41, s3, 4
    s_add_u32 s47, s40, s41
    s_lshl_b32 s40, s47, 13
    """ + q_head("s41") + """
    s_lshl_b32 s41, s41, 8
    s_add_u32 s40, s40, s41
    v_lshlrev_b32 v11, 15, v3
    v_lshl_add_u32 v11, v2, 4, v11
    s_mov_b32 s10, 4718592
    s_movk_i32 s42, 0x2000
    s_waitcnt lgkmcnt(0)
    s_mov_b32 s8, s22
    s_mov_b32 s9, s23
    """)
    stamp(1)
    if opt["fake"] & 2:
        a("""
        s_mul_i32 s40, s7, 9
        s_add_u32 s40, s40, s3
        s_lshl_b32 s40, s40, 12
        s_movk_i32 s42, 1024
        v_lshlrev_b32 v11, 4, v1
        """)
    for i in range(4):
        a(f"buffer_load_dwordx4 {vr(WQ+4*i)}, v11, s[8:11], s40 offen nt")
        if i < 3: a("s_add_u32 s40, s40, s42")
    a("""
    s_barrier
    s_branch L_X2
    L_S:
    s_cmp_eq_u32 s5, 0
    s_cbranch_scc1 L_S_bar
    v_lshlrev_b32 v9, 4, v0
    v_mov_b32 v4, 0
    v_mov_b32 v5, 0
    v_mov_b32 v6, 0
    v_mov_b32 v7, 0
    """ + "\n".join(f"ds_write_b128 v9, v[4:7] offset:{L_GT-10240+4096*t}" for t in range(5)) + """
    L_S_bar:
    s_waitcnt lgkmcnt(0)
    s_barrier
    s_cmp_lt_u32 s3, 8
    s_cbranch_scc1 L_S2
    s_cmp_ge_u32 s3, 9
    s_cbranch_scc1 L_D
    L_exit:
    s_endpgm
    """)

    a(f"""
    L_L:
    s_setprio 3
    v_lshlrev_b32 v20, 10, v3
    v_lshl_add_u32 v20, v2, 4, v20
    s_lshl_b32 s44, s3, 2
    s_add_u32 s44, s44, {L_KRDY}
    """)
    sel_masks()
    landed = 0
    for n in range(WA0, 32):
        w = min(WA, WA0 + (n - WA0 + 1) // 2)
        prev = landed
        if n - landed >= w:
            a(f"s_waitcnt vmcnt({w-1})")
            landed = n - w + 1
        U = opt["unev"]
        if U and (n % 16) >= 16 - U:
            Lu = a.label("u")
            a("s_cmp_lt_u32 s6, 12")
            a(f"s_cbranch_scc1 {Lu}")
            for e in range(3):
                a(f"s_sub_u32 s48, s42, {262144 * (1 + e % 2) + 1024 * (n % 16) + 16384 * 4 * 0 + (e // 2) * 2048}")
                a(f"buffer_load_dwordx4 v[24:27], v20, s[8:11], s48 offen nt")
                a(f"s_waitcnt vmcnt({w-1})")
            l_issue(n)
            a(f"{Lu}:")
        else:
            l_issue(n)
        if prev < opt["qgo"] <= landed: set_flag(L_QGO)
        if prev < 16 <= landed: set_flag("s44")
        if DYN and n == 31 - opt["cda"]: bump(L_CGO)
        if n == 31 - opt["vd"]: bump(L_VISS)
    assert landed >= 16
    stamp(3)
    get_tag()
    a(f"""
    v_bfe_u32 v11, v1, 3, 1
    v_lshlrev_b32 v11, 10, v11
    v_lshl_add_u32 v11, v3, 4, v11
    s_lshl_b32 s41, s3, 8
    v_add_u32 v11, s41, v11
    s_lshl_b32 s45, s7, 10
    s_add_u32 s45, s45, {WS_OP}
    s_add_u32 s46, s45, {LOC}
    """)
    spin("\n".join(f"ds_read_b128 {vr(16+4*b)}, v11 offset:{L_XNP+64*b}" for b in range(4)), maxchain(range(16, 32)))
    stamp(4)
    for i in range(2): build_op(32 + 4 * i, 16 + i)
    nb = 2
    for i in range(16):
        a(f"s_waitcnt vmcnt({15-i})")
        a(f"{MF} v[12:15], {vr(32+4*(i%8))}, {vr(64+4*i)}, {'0' if i == 0 else 'v[12:15]'}")
        for _ in range(1 if i < 6 else 2):
            if nb < 16: build_op(32 + 4 * (nb % 8), 16 + nb); nb += 1
        if i == 11:
            a("""
            s_lshl_b32 s41, s3, 10
            v_lshlrev_b32 v17, 4, v1
            v_add_u32 v18, s41, v17
            """)
            lin_addr(19)
            if opt["stl"]:
                a("v_lshrrev_b32 v16, 5, v1")
                a("v_lshlrev_b32 v16, 4, v16")
                spin(f"ds_read_b128 v[20:23], v16 offset:{L_STM}\nds_read_b128 v[24:27], v16 offset:{L_STL}", maxchain(range(24, 28)), sleep=0)
                a(f"""
                v_max3_f32 v20, v20, v21, v22
                v_add_f32 v24, v24, v25
                v_add_f32 v26, v26, v27
                v_max_f32 v20, v20, v23
                v_add_f32 v24, v24, v26
                v_lshlrev_b32 v16, 2, v16
                v_lshl_add_u32 v16, v2, 4, v16
                v_and_or_b32 v28, v20, s50, v8
                v_lshl_or_b32 v29, v20, 8, v8
                v_and_or_b32 v30, v24, s50, v8
                v_mov_b32 v31, v8
                s_lshl_b32 s47, s7, 7
                s_add_u32 s47, s47, {WS_ST}
                s_add_u32 s48, s47, {LOC}
                """)
            la_prep(L_CNT0)
    stamp(5)
    a(f"ds_write_b128 v18, v[12:15] offset:{L_OT}")
    last_arriver(1, "L_wave_end", [f"ds_read_b128 {vr(32+4*t)}, v19 offset:{L_OT+1024*t}" for t in range(4)])
    def st_store(so, fl):
        if opt["stl"]:
            a(f"""
            s_mov_b32 exec_lo, 15
            s_mov_b32 exec_hi, 15
            buffer_store_dwordx4 v[28:31], v16, s[12:15], {so} offen {fl}
            s_mov_b64 exec, -1
            """)
    st_store("s48", "")
    a("s_waitcnt lgkmcnt(2)")
    add4(32, 32, 36)
    a("s_waitcnt lgkmcnt(0)")
    add4(40, 40, 44); add4(32, 32, 40)
    tag4(32)
    a("buffer_store_dwordx4 v[32:35], v17, s[12:15], s46 offen")
    set_flag(L_DONE)
    stamp(6)
    defer()
    st_store("s47", "sc1")
    a("buffer_store_dwordx4 v[32:35], v17, s[12:15], s45 offen sc1")
    finish_wave()

    a(f"""
    L_S2:
    s_sub_u32 s49, s3, 4
    s_lshl_b32 s41, s49, 14
    s_add_u32 s41, s41, {L_BIG}
    v_lshl_add_u32 v11, v2, 8, s41
    """)
    for st in range(4):
        a(f"v_or_b32 v{12+st}, {4*st}, v3")
        a(f"v_xor_b32 v{12+st}, v{12+st}, v2")
        a(f"v_lshl_add_u32 v{12+st}, v{12+st}, 4, v11")
    a(f"""
    v_cmp_eq_u32 s[54:55], 1, v3
    v_cmp_eq_u32 s[56:57], 2, v3
    v_cmp_eq_u32 s[58:59], 3, v3
    s_lshl_b32 s53, s49, 2
    s_add_u32 s47, s53, {L_KRDY}
    v_mov_b32 v4, s53
    v_mov_b32 v5, 0
    s_lshl_b32 s48, s49, 8
    v_lshl_add_u32 v6, v1, 2, s48
    """)
    get_tag()
    wait_flag("s47", sleep=2)
    stamp(4)
    a("s_waitcnt vmcnt(0)")
    for t in range(4):
        for st in range(4):
            a(f"ds_read_b128 {vr(64+16*t+4*st)}, v{12+st} offset:{t*4096}")
    a("""
    v_and_b32 v11, 1, v1
    v_lshlrev_b32 v11, 8, v11
    v_lshl_add_u32 v11, v3, 4, v11
    """)
    wait_flag(L_QFLAG)
    stamp(2)
    for st in range(4): a(f"ds_read_b128 {vr(16+4*st)}, v11 offset:{L_QL+64*st}")
    for st in range(4):
        a(f"s_waitcnt lgkmcnt({3-st})")
        for t in range(4):
            a(f"{MF} {vr(32+4*t)}, {vr(16+4*st)}, {vr(64+16*t+4*st)}, {'0' if st == 0 else vr(32+4*t)}")
    a(f"""
    s_mov_b32 s48, {f32bits(128**-0.5 * 1.4426950408889634)}
    v_cndmask_b32 v32, v32, v36, s[54:55]
    v_cndmask_b32 v33, v33, v37, s[54:55]
    v_cndmask_b32 v32, v32, v40, s[56:57]
    v_cndmask_b32 v33, v33, v41, s[56:57]
    v_cndmask_b32 v32, v32, v44, s[58:59]
    v_cndmask_b32 v33, v33, v45, s[58:59]
    v_mul_f32 v32, s48, v32
    v_mul_f32 v33, s48, v33
    v_mov_b32 v34, v32
    v_mov_b32 v35, v33
    """)
    wave_reduce("v_max_f32", (34, 35))
    a(f"""
    s_mov_b32 exec_lo, 0
    s_mov_b32 exec_hi, 0x80000000
    ds_write_b32 v4, v34 offset:{L_STM}
    ds_write_b32 v4, v35 offset:{L_STM+16}
    s_mov_b64 exec, -1
    """)
    spin(f"ds_read_b128 v[36:39], v5 offset:{L_STM}\nds_read_b128 v[40:43], v5 offset:{L_STM+16}", maxchain(range(36, 44)), sleep=0)
    a(f"""
    v_max3_f32 v36, v36, v37, v38
    v_max3_f32 v40, v40, v41, v42
    v_max_f32 v36, v36, v39
    v_max_f32 v40, v40, v43
    v_sub_f32 v32, v32, v36
    v_sub_f32 v33, v33, v40
    v_exp_f32 v32, v32
    v_exp_f32 v33, v33
    v_cvt_pk_bf16_f32 v32, v32, v32
    v_cvt_pk_bf16_f32 v33, v33, v33
    ds_write_b32 v6, v32 offset:{L_XNP}
    ds_write_b32 v6, v33 offset:{L_XNP+1024}
    v_and_b32 v34, 0xffff0000, v32
    v_and_b32 v35, 0xffff0000, v33
    """)
    stamp(3)
    wave_reduce("v_add_f32", (34, 35))
    if opt["stl"]:
        a(f"""
        s_mov_b32 exec_lo, 0
        s_mov_b32 exec_hi, 0x80000000
        ds_write_b32 v4, v34 offset:{L_STL}
        ds_write_b32 v4, v35 offset:{L_STL+16}
        """)
        finish_wave()
    else:
        la_prep(L_CNT1)
        a(f"""
        v_lshrrev_b32 v5, 5, v1
        v_lshlrev_b32 v5, 4, v5
        s_mov_b32 exec_lo, 0
        s_mov_b32 exec_hi, 0x80000000
        ds_write_b32 v4, v34 offset:{L_STL}
        ds_write_b32 v4, v35 offset:{L_STL+16}
        """)
        last_arriver(1, "L_wave_end", [f"ds_read_b128 v[44:47], v5 offset:{L_STL}"])
        a(f"""
        v_cmp_lt_u32 vcc, 31, v1
        v_lshlrev_b32 v5, 2, v5
        v_lshl_add_u32 v5, v2, 4, v5
        v_cndmask_b32 v36, v36, v40, vcc
        s_lshl_b32 s45, s7, 7
        s_add_u32 s45, s45, {WS_ST}
        s_add_u32 s46, s45, {LOC}
        s_waitcnt lgkmcnt(0)
        v_add_f32 v44, v44, v45
        v_add_f32 v46, v46, v47
        v_add_f32 v44, v44, v46
        v_and_or_b32 v28, v36, s50, v8
        v_lshl_or_b32 v29, v36, 8, v8
        v_and_or_b32 v30, v44, s50, v8
        v_mov_b32 v31, v8
        s_mov_b32 exec_lo, 15
        s_mov_b32 exec_hi, 15
        buffer_store_dwordx4 v[28:31], v5, s[12:15], s46 offen
        """)
        stamp(5)
        defer()
        a("buffer_store_dwordx4 v[28:31], v5, s[12:15], s45 offen sc1")
        finish_wave()

    a(f"""
    L_X2:
    s_setprio 3
    s_mul_i32 s57, s6, 9
    s_add_u32 s46, s57, s3
    s_lshr_b32 s52, s46, 4
    s_and_b32 s48, s46, 15
    s_mul_i32 s48, s48, 36
    s_and_b32 s43, s4, 1
    s_mul_i32 s41, s43, 5
    s_lshr_b32 s44, s52, 1
    s_add_u32 s41, s41, s44
    s_and_b32 s44, s52, 1
    s_cmp_eq_u32 s52, 8
    s_cselect_b32 s41, 4, s41
    s_cselect_b32 s43, s43, s44
    s_lshr_b32 s44, s4, 1
    s_mul_i32 s44, s44, 9
    s_add_u32 s41, s41, s44
    s_mul_i32 s44, s43, 36
    s_add_u32 s44, s44, s41
    s_cmp_eq_u32 s43, 1
    s_cselect_b32 s8, s30, s28
    s_cselect_b32 s9, s31, s29
    s_lshl_b32 s41, s41, 8
    s_mul_i32 s40, s48, 9216
    s_add_u32 s40, s40, s41
    s_mov_b32 s10, {576*9216}
    s_movk_i32 s42, 9216
    v_mul_u32_u24 v{AW2}, 9216, v3
    v_lshlrev_b32 v{AW}, 2, v{AW2}
    v_lshl_add_u32 v{AW}, v2, 4, v{AW}
    v_lshl_add_u32 v{AW2}, v2, 4, v{AW2}
    """)
    if opt["fake"] & 1:
        a(f"""
        s_lshr_b32 s41, s41, 4
        s_and_b32 s40, s46, 15
        s_add_u32 s40, s40, s41
        s_mul_i32 s40, s40, 9216
        s_movk_i32 s42, 1024
        v_lshlrev_b32 v{AW}, 4, v1
        v_lshlrev_b32 v{AW2}, 4, v1
        """)
    def g_issue(k):
        if opt["fake"] & 1:
            if k: a("s_add_u32 s40, s40, s42")
            a(f"buffer_load_dwordx4 {vr(WU+4*k)}, v{AW}, s[8:11], s40 offen nt")
            return
        if k: a(f"s_add_u32 s40, s40, {13*9216 if k % 4 == 0 else 's42'}")
        a(f"buffer_load_dwordx4 {vr(WU+4*k)}, v{AW if k < 8 else AW2}, s[8:11], s40 offen nt")
    sel_masks()
    a(f"""
    v_bfe_u32 v{AXQ}, v1, 3, 1
    v_mul_u32_u24 v{AXQ}, 2304, v{AXQ}
    s_lshl_b32 s41, s48, 2
    v_add_u32 v{AXU}, s41, v{AXQ}
    v_lshl_add_u32 v{AXU2}, v3, 2, v{AXU}
    v_add_u32 v{AXU2}, 128, v{AXU2}
    v_lshl_add_u32 v{AXU}, v3, 4, v{AXU}
    s_lshl_b32 s41, s47, 2
    v_add_u32 v{AXQ}, s41, v{AXQ}
    v_lshl_add_u32 v{AXQ}, v3, 4, v{AXQ}
    v_lshlrev_b32 v{ALN}, 4, v1
    s_lshl_b32 s53, s52, 4
    s_sub_i32 s54, s53, s57
    s_add_i32 s55, s54, 16
    s_max_i32 s54, s54, 0
    s_min_i32 s55, s55, 9
    s_sub_u32 s90, s3, s54
    s_lshl_b32 s90, s90, 10
    s_sub_i32 s54, s55, s54
    s_sub_i32 s54, s54, 3
    s_mul_i32 s59, s53, 7282
    s_lshr_b32 s59, s59, 16
    s_sub_u32 s59, s6, s59
    s_mul_i32 s56, s44, 3
    s_add_u32 s56, s56, s59
    s_lshl_b32 s56, s56, 10
    s_add_u32 s56, s56, {WS_GUP}
    s_add_u32 s59, s56, {LOC}
    s_lshr_b32 s57, s57, 4
    s_sub_u32 s55, s52, s57
    s_mul_i32 s53, s55, 9216
    s_add_u32 s90, s90, s53
    s_lshl_b32 s55, s55, 2
    s_add_u32 s55, s55, {L_CNT0}
    s_lshl_b32 s58, s3, 10
    """)
    def tile_reads(base, tmp, addr):
        return [f"ds_read_b128 {vr(tmp+4*t)}, v{addr} offset:{base+1024*t}" for t in range(9)]
    gu_vals = f"ds_read_b128 {vr(V0)}, v{AXU}\nds_read_b128 {vr(V0+4)}, v{AXU} offset:64\nds_read_b32 v{V0+8}, v{AXU2}"
    def q_block():
        spin(f"ds_read_b128 {vr(V0)}, v{AXQ}", maxchain(range(V0, V0 + 4)))
        a(f"v_mov_b32 v10, {L_TAG}")
        a("ds_read_b32 v8, v10")
        stamp(2)
        for i in range(2): build_op(OPR + 4 * i, V0 + i)
        for i in range(4):
            a(f"{MF} {vr(D0)}, {vr(OPR+4*(i%2))}, {vr(WQ+4*i)}, {'0' if i == 0 else vr(D0)}")
            if i < 2: build_op(OPR + 4 * i, V0 + 2 + i)
        a(gu_vals)
        a(f"v_add_u32 v11, s58, v{ALN}")
        a(f"ds_write_b128 v11, {vr(D0)} offset:{L_BIG}")
        bump(L_CNT2)
        stamp(3)
        spin(gu_vals, maxchain(range(V0, V0 + 9)), preloaded=True)
    def g_mfma(k, wait=None):
        build_op(OPR + 4 * (k % 2), V0 + k)
        if wait is not None: a(f"s_waitcnt vmcnt({wait})")
        a(f"{MF} {vr(D0)}, {vr(OPR+4*(k%2))}, {vr(WU+4*k)}, {'0' if k == 0 else vr(D0)}")
    done = 0; landed = 0; qdone = False
    for k in range(9):
        n = 4 + k
        w = opt["wg"] if k < opt["gburst"] else opt["wg2"]
        if opt["fast4"] and w < opt["wg2"] and qdone:
            Lb = a.label("f4")
            a("s_cmp_ge_u32 s6, 12")
            a(f"s_cbranch_scc1 {Lb}")
            a(f"s_waitcnt vmcnt({w-1})")
            a(f"{Lb}:")
            w = opt["wg2"]
        if n - landed >= w:
            a(f"s_waitcnt vmcnt({w-1})")
            landed = n - w + 1
        g_issue(k)
        if not qdone and landed >= 4:
            q_block(); qdone = True
        if DYN and k == 8 - opt["cdg"]: bump(L_CGO)
        if k == 8 - opt["gd"]: bump(L_VISS)
        while qdone and 4 + done < landed:
            g_mfma(done); done += 1
    stamp(4)
    a(f"v_add_u32 v{AXQ}, s90, v{ALN}")
    lin_addr(AXU)
    a(f"v_add_u32 v{AXU}, s53, v{AXU}")
    la_prep("s55")
    a(f"v_mov_b32 v{AXU2}, {L_VISS}")
    for k in range(done, 9):
        g_mfma(k, 8 - k)
        if opt["gd"] < 0 and k == 9 + opt["gd"]:
            a(f"""
            s_mov_b64 exec, 1
            ds_add_u32 v{AXU2}, v10
            s_mov_b64 exec, -1
            """)
    stamp(5)
    a(f"ds_write_b128 v{AXQ}, {vr(D0)} offset:{L_GT}")
    last_arriver("s54", "L_wave_end", tile_reads(L_GT, 68, AXU))
    for t in range(4):
        a(f"s_waitcnt lgkmcnt({7-2*t})")
        add4(68 + 8 * t, 68 + 8 * t, 72 + 8 * t)
        if t == 1: add4(68, 68, 76)
    add4(84, 84, 92)
    a("s_waitcnt lgkmcnt(0)")
    add4(68, 68, 100); add4(68, 68, 84)
    tag4(68)
    a(f"buffer_store_dwordx4 v[68:71], v{ALN}, s[12:15], s59 offen")
    bump(L_DONE)
    stamp(6)
    a("s_cmp_eq_u32 s52, 8")
    a("s_cbranch_scc1 L_X_now")
    defer()
    a("L_X_now:")
    a(f"buffer_store_dwordx4 v[68:71], v{ALN}, s[12:15], s56 offen sc1")
    finish_wave()

    a(f"""
    L_D:
    s_sub_u32 s49, s3, 9
    v_lshlrev_b32 v57, 4, v1
    s_lshl_b32 s41, s49, 11
    v_add_u32 v58, s41, v57
    """)
    lin_addr(57)
    a(f"""
    s_lshl_b32 s41, s49, 10
    v_add_u32 v57, s41, v57
    v_and_b32 v9, 7, v1
    v_lshlrev_b32 v9, 4, v9
    s_movk_i32 s41, {FPS}
    v_lshrrev_b32 v59, 3, v1
    v_mad_u32_u24 v59, v59, s41, v9
    v_bfe_u32 v60, v1, 3, 1
    v_and_b32 v10, 2, v3
    v_add3_u32 v60, v60, v10, 8
    v_mad_u32_u24 v60, v60, s41, v9
    s_cmp_eq_u32 s49, 1
    s_cselect_b32 s54, 0xffff, -1
    s_mov_b32 s55, s54
    s_cselect_b64 vcc, -1, 0
    v_cndmask_b32 v59, v59, v60, vcc
    v_bfe_u32 v9, v1, 2, 1
    v_cmp_eq_u32 vcc, 0, v9
    v_mov_b32 v10, 0xffff
    v_cndmask_b32 v4, 0, v10, vcc
    v_xor_b32 v5, v4, v10
    v_lshlrev_b32 v6, 16, v4
    v_lshlrev_b32 v7, 16, v5
    v_mov_b32 v122, {L_CNT3}
    v_mov_b32 v123, 1
    v_and_b32 v46, 3, v1
    v_mul_u32_u24 v46, 0x5555, v46
    v_mul_u32_u24 v44, {128*NLN}, v2
    s_lshl_b32 s41, s49, 7
    s_add_u32 s41, s41, {L_VAL}
    v_and_b32 v65, 1, v1
    v_lshlrev_b32 v65, 5, v65
    v_bfe_u32 v9, v1, 3, 1
    v_lshl_add_u32 v65, v9, 4, v65
    v_lshlrev_b32 v56, 6, v9
    v_bfe_u32 v9, v1, 4, 1
    v_lshl_add_u32 v65, v9, 3, v65
    v_bfe_u32 v9, v1, 1, 1
    v_lshl_add_u32 v65, v9, 2, v65
    v_bfe_u32 v9, v1, 2, 1
    v_lshl_add_u32 v65, v9, 1, v65
    v_lshrrev_b32 v120, 5, v1
    v_lshl_add_u32 v65, v120, 6, v65
    v_add_u32 v65, s41, v65
    v_lshl_add_u32 v56, v3, 4, v56
    v_add_u32 v56, s41, v56
    v_and_b32 v121, 31, v1
    v_mul_u32_u24 v{AW}, 4608, v3
    v_lshrrev_b32 v9, 3, v2
    v_mul_u32_u24 v9, {18432-128}, v9
    v_lshl_add_u32 v{AW}, v2, 4, v{AW}
    v_add_u32 v{AW2}, v9, v{AW}
    """)
    for r in list(range(D0, D0 + 4)) + list(range(D1, D1 + 8)): a(f"v_mov_b32 v{r}, 0")
    get_tag()
    a("""
    v_mul_u32_u24 v45, 0x101, v8
    s_cmp_eq_u32 s5, 1
    s_cbranch_scc1 L_DG
    """)
    def claim(role):
        if not DYN: return
        L = a.label("noclaim")
        a("s_cmp_lg_u32 s49, 0")
        a(f"s_cbranch_scc1 {L}")
        wait_value(L_CGO, (4, 9)[role] - 2, sleep=2)
        a(f"""
        s_lshl_b32 s41, s4, 2
        s_add_u32 s76, s36, s41
        s_addc_u32 s77, s37, 0
        s_mov_b32 s97, 1
        s_atomic_add s97, s[76:77], {128*role} glc
        s_waitcnt lgkmcnt(0)
        s_and_b32 s97, s97, 15
        """)
        if role == 1:
            a("""
            s_and_b32 s41, s4, 1
            s_sub_u32 s42, 14, s41
            s_add_u32 s43, s97, 12
            s_cmp_ge_u32 s43, s42
            s_cselect_b32 s41, s42, 0
            s_sub_u32 s43, s43, s41
            s_cmp_lt_u32 s97, s42
            s_cselect_b32 s97, s43, s97
            """)
        set_flag(L_TK, "s97")
        a(f"{L}:")
    def tile_scalars(role):
        ptr, nbytes = ((24, 4096 * 1152), (32, 4608 * 1152))[role]
        a(f"""
        s_add_u32 s40, s86, {32*role}
        s_lshl_b32 s43, s40, 7
        s_mul_i32 s41, s87, {12*FPS}
        s_add_u32 s43, s43, s41
        s_add_u32 s43, s43, {WS_FP}
        s_lshr_b32 s41, s40, {WPL.bit_length()-1}
        s_and_b32 s40, s40, {WPL-1}
        s_mul_i32 s42, s87, {12*NLN}
        s_add_u32 s41, s41, s42
        s_lshl_b32 s41, s41, 7
        {"s_lshl2_add_u32 s44, s40, s41" if opt["hb"] else "s_lshl1_add_u32 s44, s40, s41"}
        {"s_add_u32 s44, s44, s49" if opt["hb"] else ""}
        s_add_u32 s44, s44, {WS_HINT}
        s_lshl2_add_u32 s45, s86, s49
        s_mul_i32 s45, s45, 36864
        s_mul_i32 s41, s87, 384
        s_add_u32 s45, s45, s41
        s_add_u32 s46, s45, 18432
        s_mov_b32 s8, s{ptr}
        s_mov_b32 s9, s{ptr+1}
        s_mov_b32 s10, {nbytes}
        """)
    div3 = """
    s_mul_i32 s88, s97, 86
    s_lshr_b32 s88, s88, 8
    s_mul_i32 s87, s88, 3
    s_sub_u32 s87, s97, s87
    """
    ORDER = [[8, 9, 10, 11, 0, 1, 2, 3, 4, 5, 6, 7], [0, 8, 4, 1, 9, 5, 2, 10, 6, 3, 11, 7], [0, 1, 2, 3, 4, 5, 6, 7, 8, 9, 10, 11]][opt['order']]
    def tile_stream(role, p_issue, lo, n, mask):
        WL = opt["wlg" if role else "wl"]
        stamp(1)
        if opt["warm"] and not DYN: p_issue()
        wait_value(L_VISS, (4, 9)[role] - 2, sleep=1)
        stamp(2)
        if opt["fake"] & 4:
            a(f"""
            s_mul_i32 s45, s86, 3
            s_add_u32 s45, s45, s87
            s_lshl2_add_u32 s45, s45, s49
            s_mul_i32 s45, s45, 12288
            v_lshlrev_b32 v{AW}, 4, v1
            """)
        for k, j in enumerate(ORDER):
            if k >= WL: a(f"s_waitcnt vmcnt({WL-1})")
            if opt["fake"] & 4:
                a(f"buffer_load_dwordx4 {vr(W3+4*j)}, v{AW}, s[8:11], s45 offen nt")
                a("s_add_u32 s45, s45, 1024")
                continue
            if j < 8: a(f"buffer_load_dwordx4 {vr(W3+4*j)}, v{AW}, s[8:11], {'s45' if j < 4 else 's46'} offen offset:{(j%4)*1152} nt")
            else: a(f"buffer_load_dwordx4 {vr(W3+4*j)}, v{AW2}, s[8:11], s45 offen offset:{(j-8)*1152+256} nt")
        stamp(3)
        if opt["cut"] == 1: a("s_waitcnt vmcnt(0)"); a("s_endpgm")
        wait_value(L_DONE, "s58", sleep=0)
        L = a.label("hand"); F = a.label("first"); K = a.label("keep")
        a(f"""
        s_mov_b32 s51, 1
        s_branch {F}
        {L}:
        s_add_u32 s51, s51, 1
        s_cmp_gt_u32 s51, {SPIN}
        s_cbranch_scc1 L_abort
        s_cmp_lg_u32 s51, {opt["kf"]}
        s_cbranch_scc1 {K}
        s_mov_b64 exec, 1
        ds_write_b32 v122, v123 offset:{L_FLUSH-L_CNT3}
        s_mov_b64 exec, -1
        {K}:
        s_and_b32 s41, s51, {mask}
        s_cselect_b32 s42, {LOC}, 0
        {F}:
        s_waitcnt vmcnt(0)
        """)
        p_issue()
        a("s_waitcnt vmcnt(0)")
        untag(lo, lo, n)
        a(f"s_cbranch_vccnz {L}")
        stamp(4)
        if opt["cut"] == 2: a("s_endpgm")
        if opt["hb"] == 1: byte_notice()
        elif not opt["hb"]:
            a("""
            s_mov_b64 exec, 1
            ds_add_rtn_u32 v11, v122, v123
            s_mov_b64 exec, -1
            """)
    def byte_notice():
        a("""
        s_mov_b64 exec, 0xfff
        buffer_store_byte v8, v44, s[12:15], s44 offen sc1
        s_mov_b64 exec, -1
        """)
    def tile_tail():
        def notice():
            B = a.label("nohint")
            a(f"""
            v_readfirstlane_b32 s84, v11
            s_cmp_eq_u32 s84, 1
            s_cbranch_scc0 {B}
            s_mov_b64 exec, 0xfff
            buffer_store_short v45, v44, s[12:15], s44 offen sc1
            s_mov_b64 exec, -1
            """)
            stamp(1)
            a(f"{B}:")
        a(f"""
        v_cvt_pk_bf16_f32 v16, v16, v16
        ds_write_b16 v65, v16
        ds_read_b128 {vr(V0)}, v56
        """)
        if opt["hb"] == 2: byte_notice()
        if opt["hp"] < 0 and not opt["hb"]:
            a("s_waitcnt lgkmcnt(2)")
            notice()
        a("s_waitcnt lgkmcnt(0)")
        OP = [24, 28, 32, 36]
        k = 0
        for st in ["b0", "b2", (D1, 0, 32), "b1", (D2, 2, 32), "b3", (D1, 1, 40), (D2, 3, 40), (D0, 0, 0), (D0, 1, 8), (D0, 2, 16), (D0, 3, 24)]:
            if isinstance(st, str): build_op(OP[int(st[1])], V0 + int(st[1]))
            else:
                a(f"{SM} {vr(st[0])}, {vr(OP[st[1]])}, {vr(W3+st[2], 8)}, v46")
                k += 1
                if k == opt["hp"]: notice()
        stamp(5)
        L2 = a.label("sum"); F2 = a.label("sum1")
        for r in range(4): a(f"v_add_f32_dpp v{D1+r}, v{D2+r}, v{D1+r} row_ror:8 {DPPF}")
        a(f"""
        ds_write_b128 v58, {vr(D1)} offset:{L_T3+1024}
        ds_write_b128 v58, {vr(D0)} offset:{L_T3}
        s_mov_b64 exec, 1
        ds_add_u32 v122, v123 offset:{L_CNT4-L_CNT3}
        s_mov_b64 exec, s[54:55]
        s_cmp_ge_u32 s49, 2
        s_cbranch_scc1 L_wave_end
        s_mov_b32 s51, {SPIN}
        {L2}:
        ds_read_b32 v10, v122 offset:{L_CNT4-L_CNT3}
        """)
        for t in range(4): a(f"ds_read_b128 {vr(16+4*t)}, v57 offset:{L_T3+2048*t}")
        a(f"""
        s_sub_u32 s51, s51, 1
        s_cbranch_scc1 L_abort
        s_waitcnt lgkmcnt(4)
        v_cmp_ne_u32 vcc, 2, v10
        s_cbranch_vccnz {L2}
        s_waitcnt lgkmcnt(2)
        """)
        add4(16, 16, 20)
        a("s_waitcnt lgkmcnt(0)")
        add4(24, 24, 28); add4(16, 16, 24)
        tag4(16)
        a("buffer_store_dwordx4 v[16:19], v59, s[12:15], s43 offen sc1")
        a(f"""
        s_mov_b64 exec, 1
        ds_write_b32 v122, v123 offset:{L_FLUSH-L_CNT3}
        """)
        stamp(6)
        finish_wave()
    a(f"""
    v_lshlrev_b32 v61, 12, v120
    v_lshl_add_u32 v61, v121, 2, v61
    v_and_b32 v10, 3, v1
    v_lshl_add_u32 v62, v120, 2, v10
    v_lshlrev_b32 v62, 7, v62
    s_mov_b32 s57, 0x07060501
    s_mov_b32 s58, 0
    """)
    if DYN and opt["warm"]:
        a(f"""
        s_lshl_b32 s41, s7, 10
        s_add_u32 s41, s41, {WS_OP+LOC}
        s_lshl_b32 s42, s49, 8
        s_add_u32 s41, s41, s42
        v_lshlrev_b32 v9, 2, v1
        buffer_load_dword v20, v9, s[12:15], s41 offen sc1
        """)
    claim(0); get_slot()
    a(f"""
    s_lshl2_add_u32 s89, s4, s97
    s_sub_u32 s89, s89, 12
    s_cmp_ge_u32 s97, 12
    s_cbranch_scc1 L_free
    {div3}
    s_lshl2_add_u32 s86, s4, s88
    s_lshr_b32 s47, s86, 1
    s_lshl_b32 s48, s47, 10
    s_lshl_b32 s47, s47, 13
    s_and_b32 s41, s86, 1
    s_lshl_b32 s42, s41, 6
    s_add_u32 s48, s48, s42
    s_add_u32 s48, s48, {WS_ST}
    s_lshl_b32 s41, s41, 9
    s_add_u32 s47, s47, s41
    s_lshl_b32 s41, s49, 7
    s_add_u32 s47, s47, s41
    s_add_u32 s47, s47, {WS_OP}
    v_add_u32 v61, s47, v61
    v_add_u32 v62, s48, v62
    """)
    tile_scalars(0)
    a(f"s_mov_b32 s42, {LOC}")
    def o_issue():
        a("buffer_load_dwordx4 v[24:27], v62, s[12:15], s42 offen sc1")
        for k in range(4): a(f"buffer_load_dword v{20+k}, v61, s[12:15], s42 offen offset:{k*1024} sc1")
    tile_stream(0, o_issue, 20, 8, opt["lmask"])
    a(f"""
    v_perm_b32 v28, v24, v25, s57
    v_mov_b32 v29, v28
    v_max_f32_dpp v29, v29, v29 quad_perm:[1,0,3,2] {DPPF}
    v_max_f32_dpp v29, v29, v29 quad_perm:[2,3,0,1] {DPPF}
    v_sub_f32 v28, v28, v29
    v_exp_f32 v28, v28
    v_mul_f32 v26, v26, v28
    v_mul_f32_dpp v16, v28, v20 quad_perm:[0,0,0,0] {DPPF}
    v_mul_f32_dpp v18, v28, v22 quad_perm:[2,2,2,2] {DPPF}
    v_add_f32_dpp v26, v26, v26 quad_perm:[1,0,3,2] {DPPF}
    v_fmac_f32_dpp v16, v28, v21 quad_perm:[1,1,1,1] {DPPF}
    v_fmac_f32_dpp v18, v28, v23 quad_perm:[3,3,3,3] {DPPF}
    v_add_f32_dpp v26, v26, v26 quad_perm:[2,3,0,1] {DPPF}
    v_rcp_f32 v26, v26
    v_add_f32 v16, v16, v18
    v_mul_f32 v16, v16, v26
    """)
    tile_tail()
    c1 = -2.0 * 0.7978845608028654 * 1.4426950408889634
    a(f"""
    L_DG:
    v_lshlrev_b32 v47, 9, v120
    v_lshl_add_u32 v47, v121, 2, v47
    s_mov_b32 s59, {f32bits(0.044715 * c1)}
    v_mov_b32 v66, {f32bits(c1):#x}
    """)
    done_target_g("s58")
    claim(1); get_slot()
    a(f"""
    s_lshr_b32 s89, s4, 1
    s_add_u32 s89, s89, 32
    s_and_b32 s85, s4, 1
    s_lshl4_add_u32 s41, s85, s97
    s_cmp_eq_u32 s41, 29
    s_cbranch_scc1 L_free
    s_mov_b32 s89, -1
    s_cmp_ge_u32 s97, 14
    s_cbranch_scc1 L_free
    {div3}
    s_mul_i32 s86, s85, 5
    s_add_u32 s86, s86, s88
    s_lshl1_add_u32 s41, s85, s87
    s_cmp_lt_u32 s97, 12
    s_cselect_b32 s86, s86, 4
    s_cselect_b32 s87, s87, s41
    s_cselect_b32 s48, {opt["lmask"]}, 0
    s_lshr_b32 s41, s4, 1
    s_mul_i32 s41, s41, 9
    s_add_u32 s86, s86, s41
    s_lshl_b32 s56, s88, 1
    s_add_u32 s57, s56, 1
    s_min_u32 s57, s57, 8
    """)
    for sl, msk in (("s56", "s[90:91]"), ("s57", "s[92:93]")):
        a(f"""
        s_bitcmp1_b32 {THREE:#x}, {sl}
        s_cselect_b64 {msk}, -1, 0
        s_cselect_b32 {sl}, 2, 1
        s_lshl_b32 {sl}, {sl}, 10
        """)
    a(f"""
    s_mul_i32 s47, s86, 3072
    s_lshl_b32 s41, s49, 7
    s_add_u32 s47, s47, s41
    s_add_u32 s47, s47, {WS_GUP}
    v_add_u32 v61, s47, v47
    v_add_u32 v62, {36*3072}, v61
    v_add_u32 v63, s56, v61
    v_add_u32 v64, s57, v62
    """)
    tile_scalars(1)
    a("s_cmp_eq_u32 s48, 0")
    a(f"s_cselect_b32 s42, 0, {LOC}")
    def h_issue():
        a("""
        buffer_load_dword v16, v61, s[12:15], s42 offen sc1
        buffer_load_dword v17, v62, s[12:15], s42 offen sc1
        buffer_load_dword v18, v61, s[12:15], s42 offen offset:1024 sc1
        buffer_load_dword v19, v62, s[12:15], s42 offen offset:1024 sc1
        buffer_load_dword v20, v63, s[12:15], s42 offen sc1
        buffer_load_dword v21, v64, s[12:15], s42 offen sc1
        """)
    tile_stream(1, h_issue, 16, 6, "s48")
    a("""
    v_cndmask_b32 v20, 0, v20, s[90:91]
    v_cndmask_b32 v21, 0, v21, s[92:93]
    v_pk_add_f32 v[16:17], v[16:17], v[18:19]
    v_pk_add_f32 v[16:17], v[16:17], v[20:21]
    v_cvt_pk_bf16_f32 v17, v16, v17
    v_lshlrev_b32 v16, 16, v17
    v_and_b32 v17, 0xffff0000, v17
    v_mul_f32 v18, v16, v16
    v_fma_f32 v18, v18, s59, v66
    v_mul_f32 v18, v18, v16
    v_exp_f32 v18, v18
    v_add_f32 v18, 1.0, v18
    v_rcp_f32 v18, v18
    v_mul_f32 v16, v16, v18
    v_cvt_pk_bf16_f32 v16, v16, v16
    v_and_b32 v16, 0xffff0000, v16
    v_mul_f32 v16, v16, v17
    """)
    tile_tail()
    a("L_free:")
    if opt["fd"]: wait_value(L_DONE, "s58", sleep=2)
    set_flag(L_FLUSH)
    a("""
    s_cmp_lg_u32 s89, -1
    s_cbranch_scc1 L_R
    """)
    a("L_wave_end:")
    finish_wave()

    def collect(nd, n, issue):
        L = a.label("hint"); R = a.label("again"); F = a.label("read")
        a(f"""
        s_branch {L}
        {R}:
        s_sub_u32 s51, s51, 1
        s_cbranch_scc1 L_abort
        s_branch {F}
        {L}:
        s_sub_u32 s53, s53, 1
        s_cbranch_scc1 {F}
        """)
        per = min(nd, WPL // 2)
        for k in range(nd // per):
            a(f"s_load_dwordx{per} s[{16+per*k}:{15+per*k+per}], s[76:77], {128*k} glc" if per > 1 else f"s_load_dword s{16+k}, s[76:77], {128*k} glc")
        a("s_waitcnt lgkmcnt(0)")
        for k in range(nd // 2): a(f"s_xor_b64 s[{16+2*k}:{17+2*k}], s[{16+2*k}:{17+2*k}], s[90:91]")
        for k in range(1, nd // 2): a(f"s_or_b64 s[16:17], s[16:17], s[{16+2*k}:{17+2*k}]")
        a(f"s_cbranch_scc1 {L}")
        stamp(2)
        a(f"{F}:")
        issue()
        a("s_waitcnt vmcnt(0)")
        untag(48, 48, n)
        a(f"s_cbranch_vccnz {R}")
        stamp(3)

    def m_tag():
        a(f"""
        s_waitcnt lgkmcnt(0)
        s_add_u32 s52, s52, 1
        s_and_b32 s53, s52, 0xff
        v_mov_b32 v8, s53
        v_mov_b32 v13, {L_TAG}
        s_mov_b64 exec, 1
        v_mov_b32 v10, s52
        ds_write_b32 v13, v10 offset:{L_E1-L_TAG}
        ds_write_b32 v13, v8
        s_mov_b64 exec, -1
        s_mov_b32 s49, 4
        """)
    a("""
    L_M2:
    s_cmp_eq_u32 s5, 0
    s_cbranch_scc1 L_MA
    s_waitcnt vmcnt(0)
    """)
    stamp(2)
    X = 16
    for t in range(9):
        a(f"v_lshlrev_b32 v{X+2*t}, 16, v{108+t}")
        a(f"v_and_b32 v{X+2*t+1}, 0xffff0000, v{108+t}")
    a(f"v_pk_add_f32 v[34:35], {vr(X,2)}, {vr(X+2,2)}")
    for t in range(2, 9): a(f"v_pk_add_f32 v[34:35], v[34:35], {vr(X+2*t,2)}")
    a("v_add_f32 v34, v34, v35")
    def half_reduce(r):
        for mode in ("quad_perm:[1,0,3,2]", "quad_perm:[2,3,0,1]", "row_half_mirror", "row_mirror"):
            a(f"v_add_f32_dpp v{r}, v{r}, v{r} {mode} {DPPF}")
        a(f"v_mov_b32 v{r+1}, v{r}")
        a(f"v_permlane16_swap_b32 v{r}, v{r+1}")
        a(f"v_add_f32 v{r}, v{r}, v{r+1}")
    half_reduce(34)
    a(f"v_mul_f32 v34, {f32bits(1.0/576):#x}, v34")
    a("v_mov_b32 v35, v34")
    for t in range(9): a(f"v_pk_add_f32 {vr(36+2*t,2)}, {vr(X+2*t,2)}, v[34:35] neg_lo:[0,1] neg_hi:[0,1]")
    a("v_pk_mul_f32 v[54:55], v[36:37], v[36:37]")
    for t in range(1, 9): a(f"v_pk_fma_f32 v[54:55], {vr(36+2*t,2)}, {vr(36+2*t,2)}, v[54:55]")
    a("v_add_f32 v54, v54, v55")
    half_reduce(54)
    a(f"""
    v_mul_f32 v54, {f32bits(1.0/576):#x}, v54
    v_cvt_pk_bf16_f32 v34, v34, v54
    v_and_b32 v54, 0xffff0000, v34
    v_lshlrev_b32 v34, 16, v34
    v_mov_b32 v35, v34
    v_add_f32 v54, {f32bits(1e-5):#x}, v54
    v_cvt_pk_bf16_f32 v54, v54, v54
    v_and_b32 v54, 0xffff0000, v54
    v_sqrt_f32 v54, v54
    v_cvt_pk_bf16_f32 v54, v54, v54
    v_and_b32 v54, 0xffff0000, v54
    v_rcp_f32 v54, v54
    v_lshrrev_b32 v11, 5, v1
    v_mul_u32_u24 v11, 2304, v11
    v_and_b32 v13, 31, v1
    v_mul_u32_u24 v13, 72, v13
    v_add_u32 v11, v11, v13
    v_mov_b32 v55, v54
    """)
    for t in range(9): a(f"v_pk_add_f32 {vr(X+2*t,2)}, {vr(X+2*t,2)}, v[34:35] neg_lo:[0,1] neg_hi:[0,1]")
    for t in range(9): a(f"v_cvt_pk_bf16_f32 v{36+t}, v{X+2*t}, v{X+2*t+1}")
    m_tag()
    for t in range(9):
        a(f"v_lshlrev_b32 v{X+2*t}, 16, v{36+t}")
        a(f"v_and_b32 v{X+2*t+1}, 0xffff0000, v{36+t}")
        a(f"v_pk_mul_f32 {vr(X+2*t,2)}, {vr(X+2*t,2)}, v[54:55]")
        a(f"v_cvt_pk_bf16_f32 v{X+2*t}, v{X+2*t}, v{X+2*t}")
        a(f"v_cvt_pk_bf16_f32 v{X+2*t+1}, v{X+2*t+1}, v{X+2*t+1}")
        a(f"ds_write_b64 v11, {vr(X+2*t,2)} offset:{L_XNP+8*t}")
    stamp(3)
    a(f"""
    v_lshlrev_b32 v14, 4, v1
    v_mov_b32 v15, {L_CNT2}
    """ + q_head("s44") + f"""
    s_and_b32 s41, s6, 3
    s_lshl2_add_u32 s44, s44, s41
    s_lshl_b32 s44, s44, 10
    s_add_u32 s44, s44, {WS_QP}
    s_add_u32 s45, s44, {LOC}
    """)
    spin("\n".join(["ds_read_b32 v10, v15"] + tile_reads(L_BIG, 16, 14)), "v_cmp_ne_u32 vcc, 7, v10", sleep=0)
    add4(16, 16, 20); add4(24, 24, 28); add4(32, 32, 36); add4(40, 40, 44)
    add4(16, 16, 24); add4(32, 32, 40); add4(16, 16, 48); add4(16, 16, 32)
    tag4(16)
    a("buffer_store_dwordx4 v[16:19], v14, s[12:15], s45 offen")
    stamp(1)
    defer()
    a("buffer_store_dwordx4 v[16:19], v14, s[12:15], s44 offen sc1")
    done_target_g("s58")
    a("s_setprio 0")
    get_slot()
    a("""
    s_lshr_b32 s89, s4, 1
    s_add_u32 s89, s89, 32
    s_and_b32 s41, s4, 1
    s_lshl4_add_u32 s41, s41, s97
    s_cmp_eq_u32 s41, 29
    s_cbranch_scc1 L_R
    """)
    finish_wave()

    a(f"""
    L_MA:
    s_lshr_b32 s46, s7, 3
    s_lshl_b32 s46, s46, 13
    s_bfe_u32 s47, s6, 0x10002
    s_lshl_b32 s47, s47, 9
    s_add_u32 s46, s46, s47
    s_add_u32 s46, s46, {WS_QP}
    s_add_u32 s47, s46, {LOC}
    s_mov_b32 s48, 0
    v_lshrrev_b32 v11, 5, v1
    v_and_b32 v15, 31, v1
    v_lshlrev_b32 v14, 12, v11
    v_lshl_add_u32 v14, v15, 4, v14
    v_lshlrev_b32 v12, 8, v11
    v_lshl_add_u32 v12, v2, 4, v12
    v_and_b32 v9, 1, v3
    v_lshl_add_u32 v12, v9, 3, v12
    """)
    m_tag()
    def q_issue(r):
        a("s_add_u32 s48, s48, 1")
        a(f"s_and_b32 s41, s48, {opt['lmask']}")
        a("s_cselect_b32 s42, s47, s46")
        for i in range(4): a(f"buffer_load_dwordx4 {vr(r+4*i)}, v14, s[12:15], s42 offen offset:{i*1024} sc1")
    wait_flag(L_QGO, sleep=2)
    stamp(2)
    poll(opt["qsets"], 16, 16, 64, q_issue, 4, stag=opt["qstag"])
    add4(16, 16, 20); add4(24, 24, 28); add4(16, 16, 24)
    a(f"""
    v_cvt_pk_bf16_f32 v16, v16, v17
    v_cvt_pk_bf16_f32 v17, v18, v19
    ds_write_b64 v12, v[16:17] offset:{L_QL}
    """)
    set_flag(L_QFLAG)
    stamp(3)
    get_slot()
    a("""
    s_lshl2_add_u32 s89, s4, s97
    s_sub_u32 s89, s89, 12
    s_mov_b32 s58, 0
    s_cmp_lt_u32 s97, 12
    s_cbranch_scc1 L_wave_end
    """)

    a(f"""
    L_R:
    s_mul_i32 s46, s89, {FPS}
    s_lshl_b32 s41, s49, 11
    s_add_u32 s46, s46, s41
    s_add_u32 s46, s46, {WS_FP}
    v_lshlrev_b32 v14, 4, v1
    s_lshl_b32 s41, s49, 10
    v_add_u32 v15, s41, v14
    s_mul_i32 s41, s89, 43
    s_lshr_b32 s41, s41, 9
    s_mul_i32 s42, s41, 12
    s_sub_u32 s42, s89, s42
    s_mul_i32 s41, s41, 192
    s_cmp_ge_u32 s42, 8
    s_cbranch_scc1 L_R_hi
    s_lshr_b32 s43, s42, 2
    s_and_b32 s48, s42, 3
    s_lshl_b32 s48, s48, 5
    s_branch L_R_col
    L_R_hi:
    s_bfe_u32 s43, s42, 0x10001
    s_and_b32 s48, s42, 1
    s_lshl_b32 s48, s48, 5
    s_add_u32 s48, s48, 128
    L_R_col:
    s_mul_i32 s43, s43, 576
    s_add_u32 s41, s41, s43
    s_add_u32 s41, s41, s48
    s_lshl_b32 s41, s41, 1
    v_and_b32 v12, 7, v1
    v_lshlrev_b32 v12, 3, v12
    v_and_b32 v13, 1, v3
    v_lshl_add_u32 v12, v13, 2, v12
    v_add_u32 v12, s41, v12
    v_min_u32 v12, 2300, v12
    global_load_dword v13, v12, s[16:17]
    v_mov_b32 v48, 0
    v_mov_b32 v49, 0
    v_mov_b32 v50, 0
    v_mov_b32 v51, 0
    s_mov_b32 s43, {f32bits(-1.4426950408889634)}
    """)
    wait_value(L_DONE, "s58", sleep=2)
    if opt["cut"]:
        a(f"""
        s_cmp_lg_u32 s89, 0
        s_cbranch_scc1 L_wave_end
        s_mov_b64 exec, 1
        v_mov_b32 v18, {L_E1}
        ds_read_b32 v19, v18
        v_mov_b32 v18, {WS_EPOCH}
        s_waitcnt lgkmcnt(0)
        buffer_store_dword v19, v18, s[12:15], 0 offen
        s_endpgm
        """)
    stamp(4)
    a(f"""
    s_waitcnt vmcnt(0)
    v_lshlrev_b32 v22, 16, v13
    v_and_b32 v23, 0xffff0000, v13
    v_readfirstlane_b32 s90, v8
    s_mul_i32 s41, s89, 5
    s_add_u32 s41, s41, s49
    s_mul_i32 s41, s41, {128*16//WPL}
    s_add_u32 s41, s41, {WS_HINT}
    s_add_u32 s76, s38, s41
    s_addc_u32 s77, s39, 0
    s_mul_i32 s90, s90, 0x01010101
    s_mov_b32 s91, s90
    s_movk_i32 s53, 200
    s_mov_b32 s51, {SPIN}
    v_mov_b32 v20, {L_CNT3}
    v_mov_b32 v21, 1
    s_cmp_eq_u32 s49, 4
    s_cbranch_scc0 L_R_full
    s_mov_b32 exec_hi, 0
    """)
    collect(4 if opt["hb"] else 2, 4, lambda: a("buffer_load_dwordx4 v[48:51], v14, s[12:15], s46 offen sc1"))
    a("""
    s_mov_b32 exec_hi, -1
    s_branch L_R_put
    L_R_full:
    """)
    collect(16 if opt["hb"] else 8, 8, lambda: a("buffer_load_dwordx4 v[48:51], v14, s[12:15], s46 offen sc1\nbuffer_load_dwordx4 v[52:55], v14, s[12:15], s46 offen offset:1024 sc1"))
    add4(48, 48, 52)
    a("L_R_put:")
    a(f"ds_write_b128 v15, v[48:51] offset:{L_T3}")
    last_arriver(2, "L_wave_end", [f"ds_read_b128 {vr(r)}, v14 offset:{L_T3+1024*t}" for t, r in enumerate((16, 24, 32, 36, 40))], r0=20)
    stamp(5)
    a("s_waitcnt lgkmcnt(3)")
    add4(16, 16, 24)
    a("s_waitcnt lgkmcnt(1)")
    add4(32, 32, 36)
    a("s_waitcnt lgkmcnt(0)")
    add4(32, 32, 40)
    for r in range(4): a(f"v_permlane32_swap_b32 v{16+r}, v{32+r}")
    add4(16, 16, 32)
    a(f"""
    v_permlane16_swap_b32 v16, v18
    v_permlane16_swap_b32 v17, v19
    v_pk_add_f32 v[16:17], v[16:17], v[18:19]
    v_add_f32_dpp v16, v16, v16 row_ror:8 {DPPF}
    v_add_f32_dpp v17, v17, v17 row_ror:8 {DPPF}
    v_cvt_pk_bf16_f32 v16, v16, v17
    v_mov_b32 v17, v16
    v_permlane32_swap_b32 v16, v17
    v_lshlrev_b32 v18, 16, v17
    v_and_b32 v19, 0xffff0000, v17
    v_mul_f32 v20, s43, v18
    v_mul_f32 v21, s43, v19
    v_exp_f32 v20, v20
    v_exp_f32 v21, v21
    v_add_f32 v20, 1.0, v20
    v_add_f32 v21, 1.0, v21
    v_rcp_f32 v20, v20
    v_rcp_f32 v21, v21
    v_mul_f32 v18, v18, v20
    v_mul_f32 v19, v19, v21
    v_cvt_pk_bf16_f32 v17, v18, v19
    v_lshlrev_b32 v20, 16, v16
    v_and_b32 v21, 0xffff0000, v16
    v_lshlrev_b32 v18, 16, v17
    v_and_b32 v19, 0xffff0000, v17
    v_mul_f32 v18, v18, v20
    v_mul_f32 v19, v19, v21
    v_cvt_pk_bf16_f32 v17, v18, v19
    v_lshlrev_b32 v18, 16, v17
    v_and_b32 v19, 0xffff0000, v17
    v_add_f32 v18, v18, v22
    v_add_f32 v19, v19, v23
    s_mov_b32 exec_lo, 0x00ff00ff
    s_mov_b32 exec_hi, 0
    v_cvt_pk_bf16_f32 v17, v18, v19
    global_store_dword v12, v17, s[34:35]
    s_cmp_lg_u32 s89, 0
    s_cbranch_scc1 L_R_done
    s_mov_b64 exec, 1
    v_mov_b32 v18, {L_E1}
    ds_read_b32 v19, v18
    v_mov_b32 v18, {WS_EPOCH}
    s_waitcnt lgkmcnt(0)
    buffer_store_dword v19, v18, s[12:15], 0 offen
    L_R_done:
    """)
    stamp(6)
    finish_wave()

    a("L_abort:")
    if stamps:
        a("s_mov_b32 s74, -1")
        a(f"""
        L_dump:
        s_mov_b64 exec, -1
        s_waitcnt lgkmcnt(0)
        s_lshl_b32 s41, s2, 4
        s_add_u32 s41, s41, s3
        s_add_u32 s41, s41, 1
        s_lshl_b32 s41, s41, 5
        s_add_u32 s41, s41, {WS_STAMP}
        v_mov_b32 v9, s41
        """)
        for i in range(8): a(f"v_mov_b32 v{i}, s{60+2*i}")
        a("""
        s_mov_b64 exec, 1
        buffer_store_dwordx4 v[0:3], v9, s[12:15], 0 offen
        buffer_store_dwordx4 v[4:7], v9, s[12:15], 0 offen offset:16
        """)
    a("s_endpgm")
    body = a.finish()
    init = "\n".join(f"    s_mov_b32 s{60+2*i}, 0" for i in range(1, 8)) + "\n" if stamps else ""
    hdr = open("cdna_kernels/" + NAME + ".s.ref").read().split("; Override launch")[0]
    return f"""{hdr}; @launch grid=(256,1,1) block=({NW*64},1,1) lds={LDS_BYTES}
.amdgcn_target "amdgcn-amd-amdhsa--gfx950"
.text
.globl {NAME}_kernel
.p2align 12
.p2align 8
.type {NAME}_kernel,@function
{NAME}_kernel:
{init}{body}
KERNEL_END:
.section .rodata,"a"
.p2align 6
.amdhsa_kernel {NAME}_kernel
  .amdhsa_next_free_vgpr 128
  .amdhsa_next_free_sgpr 100
  .amdhsa_accum_offset 128
  .amdhsa_group_segment_fixed_size 0
  .amdhsa_kernarg_size 96
  .amdhsa_user_sgpr_count 2
  .amdhsa_user_sgpr_kernarg_segment_ptr 1
  .amdhsa_system_sgpr_workgroup_id_x 1
.end_amdhsa_kernel
"""

THREE = sum(1 << s for s in range(9) if (16 * s + 15) // 9 - (16 * s) // 9 == 2)

def emit(name, stamps, opt):
    import hb, subprocess
    open(name + ".s", "w").write(gen(stamps, opt)); hb.build(name + ".s")
    r = subprocess.run([sys.executable, "../cdna_kernels/cdna_unwritten_srd_check.py", name + ".co", "--entry", NAME + "_kernel"], capture_output=True, text=True)
    if ": ok:" not in r.stdout: print(r.stdout[-2500:])

if __name__ == "__main__":
    emit("k25", False, {}); emit("ks25", True, {})
    print("built", hex(THREE))
```

```python
import sys, struct
from asmlib import Asm

NAME = "recurrent_scan__sliding_block_cached__geglu_ffn__decode"
NW = 14
WS_EPOCH = 0
WS_QP = 0x1000
WS_ST = WS_QP + 128 * 1024
WS_GUP = WS_ST + 128 * 128
WS_OP = WS_GUP + 216 * 1024
LOC = 488 * 1024
WS_FP = WS_QP + 2 * LOC
FPS = 72 * 128
WS_HINT = WS_FP + 36 * FPS
WS_STAMP = 8 << 20
L_XNP = 0
L_VAL = 4608
L_STM, L_STL = 5632, 5664
L_TAG, L_QFLAG, L_CNT0, L_CNT1, L_CNT2, L_CNT3, L_DONE, L_QGO = 5760, 5764, 5768, 5772, 5776, 5780, 5784, 5788
L_KRDY, L_VISS, L_CGO, L_TK, L_E1, L_CNT4, L_FLUSH = 5792, 5808, 5812, 5816, 5820, 5824, 5828
L_QL = 7168
L_OT = 8192
L_T3 = 12288
L_BIG = 20480
L_GT = L_BIG + 9216
LDS_BYTES = 86016
SPIN = 1000000
MF = "v_mfma_f32_16x16x32_bf16"
SM = "v_smfmac_f32_16x16x64_bf16"
DPPF = "row_mask:0xf bank_mask:0xf"

def f32bits(x): return struct.unpack("<I", struct.pack("<f", x))[0]
def vr(r, n=4): return f"v[{r}:{r+n-1}]"

DEF = dict(wa0=4, wa=8, wg=2, wg2=3, gburst=8, wl=6, wlg=6, vd=3, gd=-2, qgo=6, qsets=2, qstag=12, lmask=7,
           warm=1, dyn=0, cda=12, cdg=5, fast4=1, perm=1, order=1, fake=0, hp=-1, hb=0, wpl=4, unev=0, cut=0, nog=0, dfr=1, kf=7, fd=1, stl=0, xp=0, pst=1, fw=0)

def gen(stamps=False, opt=None):
    o_ = dict(DEF); o_.update(opt or {}); opt = o_
    a = Asm()
    DYN = opt["dyn"]
    WPL = opt["wpl"]; NLN = 5 * 16 // WPL
    def stamp(i):
        if stamps: a(f"s_memrealtime s[{60+2*i}:{61+2*i}]")
    def finish_wave():
        if stamps:
            stamp(7); a("s_branch L_dump")
        else:
            a("s_endpgm")
    def spin(reads, check, sleep=1, preloaded=False):
        L = a.label("spin"); D = a.label("spun"); C = a.label("chk")
        a(f"s_mov_b32 s51, {SPIN}")
        if preloaded: a(f"s_branch {C}")
        a(f"{L}:")
        a(reads)
        if preloaded: a(f"{C}:")
        a("s_waitcnt lgkmcnt(0)")
        a(check)
        a(f"s_cbranch_vccz {D}")
        a("s_sub_u32 s51, s51, 1")
        a("s_cbranch_scc1 L_abort")
        if sleep: a(f"s_sleep {sleep}")
        a(f"s_branch {L}")
        a(f"{D}:")
    def chain(op3, op2, regs, tmp):
        out = []; rs = list(regs); cur = rs.pop(0)
        while rs:
            if len(rs) >= 2:
                out.append(f"{op3} v{tmp}, v{cur}, v{rs[0]}, v{rs[1]}"); rs = rs[2:]
            else:
                out.append(f"{op2} v{tmp}, v{cur}, v{rs[0]}"); rs = rs[1:]
            cur = tmp
        return out, cur
    def maxchain(regs):
        out, cur = chain("v_max3_u32", "v_max_u32", regs, 9)
        return "\n".join(out + [f"v_cmp_eq_u32 vcc, -2, v{cur}"])
    def untag(dst, src, n):
        for r in range(n): a(f"v_xor_b32 v{dst+r}, v{src+r}, v8")
        out, cur = chain("v_or3_b32", "v_or_b32", range(dst, dst + n), 9)
        a("\n".join(out + [f"v_and_b32 v9, 0xff, v{cur}", "v_cmp_ne_u32 vcc, 0, v9"]))
    def poll(nsets, n, canon, raw0, issue, nloads, stag=1):
        L = a.label("poll"); D = a.label("polled")
        a(f"s_mov_b32 s51, {SPIN}")
        for k in range(nsets):
            issue(raw0 + k * n)
            if k < nsets - 1: a(f"s_sleep {stag}")
        a(f"{L}:")
        for k in range(nsets):
            a(f"s_waitcnt vmcnt({(nsets-1)*nloads})")
            untag(canon, raw0 + k * n, n)
            a(f"s_cbranch_vccz {D}")
            issue(raw0 + k * n)
        a("s_sub_u32 s51, s51, 1")
        a("s_cbranch_scc1 L_abort")
        a(f"s_branch {L}")
        a(f"{D}:")
    def poll1(n, reg, issue):
        L = a.label("again"); F = a.label("first")
        a(f"""
        s_branch {F}
        {L}:
        s_sub_u32 s51, s51, 1
        s_cbranch_scc1 L_abort
        {F}:
        """)
        issue(reg)
        a("s_waitcnt vmcnt(0)")
        untag(reg, reg, n)
        a(f"s_cbranch_vccnz {L}")
    def sel_masks():
        a("""
        v_and_b32 v9, 1, v1
        v_lshlrev_b32 v9, 4, v9
        v_mov_b32 v10, 0xffff
        v_lshlrev_b32 v10, v9, v10
        v_bfe_u32 v9, v1, 1, 2
        v_cmp_eq_u32 s[76:77], 0, v9
        v_cmp_eq_u32 s[78:79], 1, v9
        v_cmp_eq_u32 s[80:81], 2, v9
        v_cmp_eq_u32 s[82:83], 3, v9
        v_cndmask_b32 v4, 0, v10, s[76:77]
        v_cndmask_b32 v5, 0, v10, s[78:79]
        v_cndmask_b32 v6, 0, v10, s[80:81]
        v_cndmask_b32 v7, 0, v10, s[82:83]
        """)
    def get_tag():
        a(f"v_mov_b32 v9, {L_TAG}")
        spin("ds_read_b32 v8, v9", "v_cmp_eq_u32 vcc, -2, v8")
    def wait_flag(addr, sleep=1):
        a(f"v_mov_b32 v9, {addr}")
        spin("ds_read_b32 v10, v9", "v_cmp_eq_u32 vcc, -2, v10", sleep=sleep)
    def wait_value(addr, val, sleep=1):
        a(f"v_mov_b32 v9, {addr}")
        spin("ds_read_b32 v10, v9", f"v_cmp_ne_u32 vcc, {val}, v10", sleep=sleep)
    def lane0(op, addr, val):
        a(f"""
        v_mov_b32 v9, {addr}
        v_mov_b32 v10, {val}
        s_mov_b64 exec, 1
        {op} v9, v10
        s_mov_b64 exec, -1
        """)
    def set_flag(addr, val=0): lane0("ds_write_b32", addr, val)
    def bump(addr): lane0("ds_add_u32", addr, 1)
    def build_op(dst, val):
        for t in range(4): a(f"v_and_b32 v{dst+t}, v{val}, v{4+t}")
    def tag4(r):
        for t in range(4): a(f"v_and_or_b32 v{r+t}, v{r+t}, s50, v8")
    def add4(d, x, y):
        a(f"v_pk_add_f32 {vr(d,2)}, {vr(x,2)}, {vr(y,2)}")
        a(f"v_pk_add_f32 {vr(d+2,2)}, {vr(x+2,2)}, {vr(y+2,2)}")
    def wave_reduce(op, regs):
        for mode in ("quad_perm:[1,0,3,2] row_mask:0xf", "quad_perm:[2,3,0,1] row_mask:0xf", "row_half_mirror row_mask:0xf",
                     "row_mirror row_mask:0xf", "row_bcast:15 row_mask:0xa", "row_bcast:31 row_mask:0xc"):
            for r in regs: a(f"{op}_dpp v{r}, v{r}, v{r} {mode} bank_mask:0xf")
    def la_prep(cnt):
        a(f"v_mov_b32 v9, {cnt}")
        a("v_mov_b32 v10, 1")
    def last_arriver(expect, skip, reads, r0=9):
        a(f"""
        s_mov_b64 exec, 1
        ds_add_rtn_u32 v11, v{r0}, v{r0+1}
        s_mov_b64 exec, -1
        """)
        for r in reads: a(r)
        a(f"""
        s_waitcnt lgkmcnt({len(reads)})
        v_readfirstlane_b32 s84, v11
        s_cmp_eq_u32 s84, {expect}
        s_cbranch_scc0 {skip}
        """)
    def lin_addr(r):
        a(f"""
        v_and_b32 v{r}, 33, v1
        v_mul_u32_u24 v{r}, 0x110, v{r}
        v_and_b32 v{r}, 0x300, v{r}
        v_bfe_u32 v9, v1, 1, 4
        v_lshl_add_u32 v{r}, v9, 4, v{r}
        """)
    def done_target_g(dst):
        a(f"""
        s_mul_i32 s41, s6, 9
        s_add_u32 s42, s41, 8
        s_lshr_b32 s41, s41, 4
        s_lshr_b32 s42, s42, 4
        s_sub_u32 {dst}, s42, s41
        s_sub_u32 {dst}, {dst}, 1
        """)
    def q_head(dst):
        if not opt["perm"]: return f"s_lshr_b32 {dst}, s7, 2"
        return f"""
        s_and_b32 {dst}, s6, 12
        s_lshr_b32 {dst}, 0x1320, {dst}
        s_and_b32 {dst}, {dst}, 3
        s_lshl2_add_u32 {dst}, s4, {dst}
        """
    def get_slot():
        if not DYN:
            a("s_mov_b32 s97, s6"); return
        wait_flag(L_TK, sleep=2)
        a("v_readfirstlane_b32 s97, v10")

    def defer(skip="L_wave_end"):
        if opt["dfr"]:
            a("s_setprio 0")
            if opt["xp"] & 1: a("s_branch " + skip); return
            wait_flag(L_FLUSH, sleep=4)
    WQ, WU, W3, OPR, V0, D0, D1, D2 = 16, 32, 68, 104, 116, 12, 48, 52
    AXQ, AXU, AXU2, ALN, AW, AW2 = 112, 113, 114, 115, 125, 126

    stamp(0)
    a(f"""
    s_cmp_ge_u32 s2, 256
    s_cbranch_scc1 L_exit
    s_load_dwordx16 s[16:31], s[0:1], 0
    s_load_dwordx8 s[32:39], s[0:1], 64
    s_load_dwordx2 s[12:13], s[0:1], 88
    s_getpc_b64 s[40:41]
    L_pc:
    v_lshlrev_b32 v9, 4, v0
    v_min_u32 v9, KERNEL_END-L_pc-4, v9
    global_load_dword v67, v9, s[40:41]
    v_lshrrev_b32 v2, 6, v0
    v_and_b32 v1, 63, v0
    v_readfirstlane_b32 s3, v2
    v_lshlrev_b32 v9, 3, v0
    v_mov_b32 v4, -2
    v_mov_b32 v5, -2
    ds_write_b64 v9, v[4:5]
    s_and_b32 s4, s2, 7
    s_lshr_b32 s6, s2, 4
    s_bfe_u32 s5, s2, 0x10003
    s_lshl_b32 s7, s4, 4
    s_add_u32 s7, s7, s6
    v_and_b32 v2, 15, v1
    v_lshrrev_b32 v3, 4, v1
    s_mov_b32 s50, 0xffffff00
    s_mov_b32 s11, 0x20000
    s_mov_b32 s14, 0x1000000
    s_mov_b32 s15, 0x20000
    s_sub_u32 s3, s3, 1
    s_cbranch_scc0 L_notM
    s_setprio 3
    v_lshrrev_b32 v11, 5, v1
    v_mul_u32_u24 v11, 1152, v11
    v_and_b32 v12, 31, v1
    v_mul_u32_u24 v12, 36, v12
    v_add_u32 v11, v11, v12
    s_cmp_eq_u32 s5, 0
    s_waitcnt lgkmcnt(0)
    s_cbranch_scc1 L_M_nox
    global_load_dwordx4 v[108:111], v11, s[16:17]
    global_load_dwordx4 v[112:115], v11, s[16:17] offset:16
    global_load_dword v116, v11, s[16:17] offset:32
    L_M_nox:
    s_load_dword s52, s[38:39], {WS_EPOCH}
    s_barrier
    s_branch L_M2
    L_notM:
    s_cmp_ge_u32 s3, 9
    s_cbranch_scc1 L_S
    s_cmp_eq_u32 s5, 1
    s_cbranch_scc1 L_X
    s_cmp_ge_u32 s3, 4
    s_cbranch_scc1 L_S
    s_bfe_u32 s40, s6, 0x10002
    s_lshl_b32 s40, s40, 4
    s_lshr_b32 s41, s7, 3
    s_add_u32 s40, s40, s41
    s_lshl_b32 s40, s40, 20
    s_and_b32 s41, s6, 3
    s_lshl_b32 s41, s41, 16
    s_add_u32 s40, s40, s41
    s_lshl_b32 s41, s3, 14
    s_add_u32 s40, s40, s41
    s_add_u32 s40, s40, {3072*256}
    s_mov_b32 s42, s40
    s_add_u32 s41, s41, {L_BIG}
    s_mov_b32 m0, s41
    v_lshlrev_b32 v9, 8, v3
    """)
    for q in range(4):
        a(f"v_add_u32 v{16+q}, {4*q}, v3")
        a(f"v_xor_b32 v{16+q}, v{16+q}, v2")
        a(f"v_lshl_add_u32 v{16+q}, v{16+q}, 4, v9")
    a("""
    s_mov_b32 s10, 33554432
    s_waitcnt lgkmcnt(0)
    s_mov_b32 s8, s18
    s_mov_b32 s9, s19
    """)
    stamp(1)
    def l_issue(i):
        if i < 16:
            if i and i % 4 == 0:
                a("s_add_u32 s41, s41, 4096"); a("s_mov_b32 m0, s41"); a("s_add_u32 s40, s40, 4096")
            a(f"buffer_load_dwordx4 v{16+i%4}, s[8:11], s40 offen offset:{(i%4)*1024} nt lds")
        else:
            k = i - 16
            if k == 0:
                a("s_mov_b32 s8, s20"); a("s_mov_b32 s9, s21")
            if k and k % 4 == 0: a("s_add_u32 s42, s42, 4096")
            a(f"buffer_load_dwordx4 {vr(64+4*k)}, v20, s[8:11], s42 offen offset:{(k%4)*256} nt")
    WA0, WA = opt["wa0"], opt["wa"]
    for i in range(WA0): l_issue(i)
    a("""
    s_barrier
    s_branch L_L
    L_X:
    s_and_b32 s40, s6, 3
    s_mul_i32 s40, s40, 144
    s_lshl_b32 s41, s3, 4
    s_add_u32 s47, s40, s41
    s_lshl_b32 s40, s47, 13
    """ + q_head("s41") + """
    s_lshl_b32 s41, s41, 8
    s_add_u32 s40, s40, s41
    v_lshlrev_b32 v11, 15, v3
    v_lshl_add_u32 v11, v2, 4, v11
    s_mov_b32 s10, 4718592
    s_movk_i32 s42, 0x2000
    s_waitcnt lgkmcnt(0)
    s_mov_b32 s8, s22
    s_mov_b32 s9, s23
    """)
    stamp(1)
    if opt["fake"] & 2:
        a("""
        s_mul_i32 s40, s7, 9
        s_add_u32 s40, s40, s3
        s_lshl_b32 s40, s40, 12
        s_movk_i32 s42, 1024
        v_lshlrev_b32 v11, 4, v1
        """)
    for i in range(4):
        a(f"buffer_load_dwordx4 {vr(WQ+4*i)}, v11, s[8:11], s40 offen nt")
        if i < 3: a("s_add_u32 s40, s40, s42")
    a("""
    s_barrier
    s_branch L_X2
    L_S:
    s_cmp_eq_u32 s5, 0
    s_cbranch_scc1 L_S_bar
    v_lshlrev_b32 v9, 4, v0
    v_mov_b32 v4, 0
    v_mov_b32 v5, 0
    v_mov_b32 v6, 0
    v_mov_b32 v7, 0
    """ + "\n".join(f"ds_write_b128 v9, v[4:7] offset:{L_GT-10240+4096*t}" for t in range(5)) + """
    L_S_bar:
    s_waitcnt lgkmcnt(0)
    s_barrier
    s_cmp_lt_u32 s3, 8
    s_cbranch_scc1 L_S2
    s_cmp_ge_u32 s3, 9
    s_cbranch_scc1 L_D
    L_exit:
    s_endpgm
    """)

    a(f"""
    L_L:
    s_setprio 3
    v_lshlrev_b32 v20, 10, v3
    v_lshl_add_u32 v20, v2, 4, v20
    s_lshl_b32 s44, s3, 2
    s_add_u32 s44, s44, {L_KRDY}
    """)
    sel_masks()
    landed = 0
    for n in range(WA0, 32):
        w = min(WA, WA0 + (n - WA0 + 1) // 2)
        prev = landed
        if n - landed >= w:
            a(f"s_waitcnt vmcnt({w-1})")
            landed = n - w + 1
        U = opt["unev"]
        if U and (n % 16) >= 16 - U:
            Lu = a.label("u")
            a("s_cmp_lt_u32 s6, 12")
            a(f"s_cbranch_scc1 {Lu}")
            for e in range(3):
                a(f"s_sub_u32 s48, s42, {262144 * (1 + e % 2) + 1024 * (n % 16) + 16384 * 4 * 0 + (e // 2) * 2048}")
                a(f"buffer_load_dwordx4 v[24:27], v20, s[8:11], s48 offen nt")
                a(f"s_waitcnt vmcnt({w-1})")
            l_issue(n)
            a(f"{Lu}:")
        else:
            l_issue(n)
        if prev < opt["qgo"] <= landed: set_flag(L_QGO)
        if prev < 16 <= landed: set_flag("s44")
        if DYN and n == 31 - opt["cda"]: bump(L_CGO)
        if n == 31 - opt["vd"]: bump(L_VISS)
    assert landed >= 16
    stamp(3)
    get_tag()
    a(f"""
    v_bfe_u32 v11, v1, 3, 1
    v_lshlrev_b32 v11, 10, v11
    v_lshl_add_u32 v11, v3, 4, v11
    s_lshl_b32 s41, s3, 8
    v_add_u32 v11, s41, v11
    s_lshl_b32 s45, s7, 10
    s_add_u32 s45, s45, {WS_OP}
    s_add_u32 s46, s45, {LOC}
    """)
    spin("\n".join(f"ds_read_b128 {vr(16+4*b)}, v11 offset:{L_XNP+64*b}" for b in range(4)), maxchain(range(16, 32)))
    stamp(4)
    for i in range(2): build_op(32 + 4 * i, 16 + i)
    nb = 2
    for i in range(16):
        a(f"s_waitcnt vmcnt({15-i})")
        a(f"{MF} v[12:15], {vr(32+4*(i%8))}, {vr(64+4*i)}, {'0' if i == 0 else 'v[12:15]'}")
        for _ in range(1 if i < 6 else 2):
            if nb < 16: build_op(32 + 4 * (nb % 8), 16 + nb); nb += 1
        if i == 11:
            a("""
            s_lshl_b32 s41, s3, 10
            v_lshlrev_b32 v17, 4, v1
            v_add_u32 v18, s41, v17
            """)
            lin_addr(19)
            if opt["stl"]:
                a("v_lshrrev_b32 v16, 5, v1")
                a("v_lshlrev_b32 v16, 4, v16")
                spin(f"ds_read_b128 v[20:23], v16 offset:{L_STM}\nds_read_b128 v[24:27], v16 offset:{L_STL}", maxchain(range(24, 28)), sleep=0)
                a(f"""
                v_max3_f32 v20, v20, v21, v22
                v_add_f32 v24, v24, v25
                v_add_f32 v26, v26, v27
                v_max_f32 v20, v20, v23
                v_add_f32 v24, v24, v26
                v_lshlrev_b32 v16, 2, v16
                v_lshl_add_u32 v16, v2, 4, v16
                v_and_or_b32 v28, v20, s50, v8
                v_lshl_or_b32 v29, v20, 8, v8
                v_and_or_b32 v30, v24, s50, v8
                v_mov_b32 v31, v8
                s_lshl_b32 s47, s7, 7
                s_add_u32 s47, s47, {WS_ST}
                s_add_u32 s48, s47, {LOC}
                """)
            la_prep(L_CNT0)
    stamp(5)
    a(f"ds_write_b128 v18, v[12:15] offset:{L_OT}")
    last_arriver(1, "L_wave_end", [f"ds_read_b128 {vr(32+4*t)}, v19 offset:{L_OT+1024*t}" for t in range(4)])
    def st_store(so, fl):
        if opt["stl"]:
            a(f"""
            s_mov_b32 exec_lo, 15
            s_mov_b32 exec_hi, 15
            buffer_store_dwordx4 v[28:31], v16, s[12:15], {so} offen {fl}
            s_mov_b64 exec, -1
            """)
    st_store("s48", "")
    a("s_waitcnt lgkmcnt(2)")
    add4(32, 32, 36)
    a("s_waitcnt lgkmcnt(0)")
    add4(40, 40, 44); add4(32, 32, 40)
    tag4(32)
    a("buffer_store_dwordx4 v[32:35], v17, s[12:15], s46 offen")
    set_flag(L_DONE)
    stamp(6)
    defer()
    st_store("s47", "sc1")
    a("buffer_store_dwordx4 v[32:35], v17, s[12:15], s45 offen sc1")
    finish_wave()

    a(f"""
    L_S2:
    s_sub_u32 s49, s3, 4
    s_lshl_b32 s41, s49, 14
    s_add_u32 s41, s41, {L_BIG}
    v_lshl_add_u32 v11, v2, 8, s41
    """)
    for st in range(4):
        a(f"v_or_b32 v{12+st}, {4*st}, v3")
        a(f"v_xor_b32 v{12+st}, v{12+st}, v2")
        a(f"v_lshl_add_u32 v{12+st}, v{12+st}, 4, v11")
    a(f"""
    v_cmp_eq_u32 s[54:55], 1, v3
    v_cmp_eq_u32 s[56:57], 2, v3
    v_cmp_eq_u32 s[58:59], 3, v3
    s_lshl_b32 s53, s49, 2
    s_add_u32 s47, s53, {L_KRDY}
    v_mov_b32 v4, s53
    v_mov_b32 v5, 0
    s_lshl_b32 s48, s49, 8
    v_lshl_add_u32 v6, v1, 2, s48
    """)
    get_tag()
    wait_flag("s47", sleep=2)
    stamp(4)
    a("s_waitcnt vmcnt(0)")
    for t in range(4):
        for st in range(4):
            a(f"ds_read_b128 {vr(64+16*t+4*st)}, v{12+st} offset:{t*4096}")
    a("""
    v_and_b32 v11, 1, v1
    v_lshlrev_b32 v11, 8, v11
    v_lshl_add_u32 v11, v3, 4, v11
    """)
    wait_flag(L_QFLAG)
    stamp(2)
    for st in range(4): a(f"ds_read_b128 {vr(16+4*st)}, v11 offset:{L_QL+64*st}")
    for st in range(4):
        a(f"s_waitcnt lgkmcnt({3-st})")
        for t in range(4):
            a(f"{MF} {vr(32+4*t)}, {vr(16+4*st)}, {vr(64+16*t+4*st)}, {'0' if st == 0 else vr(32+4*t)}")
    a(f"""
    s_mov_b32 s48, {f32bits(128**-0.5 * 1.4426950408889634)}
    v_cndmask_b32 v32, v32, v36, s[54:55]
    v_cndmask_b32 v33, v33, v37, s[54:55]
    v_cndmask_b32 v32, v32, v40, s[56:57]
    v_cndmask_b32 v33, v33, v41, s[56:57]
    v_cndmask_b32 v32, v32, v44, s[58:59]
    v_cndmask_b32 v33, v33, v45, s[58:59]
    v_mul_f32 v32, s48, v32
    v_mul_f32 v33, s48, v33
    v_mov_b32 v34, v32
    v_mov_b32 v35, v33
    """)
    wave_reduce("v_max_f32", (34, 35))
    a(f"""
    s_mov_b32 exec_lo, 0
    s_mov_b32 exec_hi, 0x80000000
    ds_write_b32 v4, v34 offset:{L_STM}
    ds_write_b32 v4, v35 offset:{L_STM+16}
    s_mov_b64 exec, -1
    """)
    spin(f"ds_read_b128 v[36:39], v5 offset:{L_STM}\nds_read_b128 v[40:43], v5 offset:{L_STM+16}", maxchain(range(36, 44)), sleep=0)
    a(f"""
    v_max3_f32 v36, v36, v37, v38
    v_max3_f32 v40, v40, v41, v42
    v_max_f32 v36, v36, v39
    v_max_f32 v40, v40, v43
    v_sub_f32 v32, v32, v36
    v_sub_f32 v33, v33, v40
    v_exp_f32 v32, v32
    v_exp_f32 v33, v33
    v_cvt_pk_bf16_f32 v32, v32, v32
    v_cvt_pk_bf16_f32 v33, v33, v33
    ds_write_b32 v6, v32 offset:{L_XNP}
    ds_write_b32 v6, v33 offset:{L_XNP+1024}
    v_and_b32 v34, 0xffff0000, v32
    v_and_b32 v35, 0xffff0000, v33
    """)
    stamp(3)
    wave_reduce("v_add_f32", (34, 35))
    if opt["stl"]:
        a(f"""
        s_mov_b32 exec_lo, 0
        s_mov_b32 exec_hi, 0x80000000
        ds_write_b32 v4, v34 offset:{L_STL}
        ds_write_b32 v4, v35 offset:{L_STL+16}
        """)
        finish_wave()
    else:
        la_prep(L_CNT1)
        a(f"""
        v_lshrrev_b32 v5, 5, v1
        v_lshlrev_b32 v5, 4, v5
        s_mov_b32 exec_lo, 0
        s_mov_b32 exec_hi, 0x80000000
        ds_write_b32 v4, v34 offset:{L_STL}
        ds_write_b32 v4, v35 offset:{L_STL+16}
        """)
        last_arriver(1, "L_wave_end", [f"ds_read_b128 v[44:47], v5 offset:{L_STL}"])
        a(f"""
        v_cmp_lt_u32 vcc, 31, v1
        v_lshlrev_b32 v5, 2, v5
        v_lshl_add_u32 v5, v2, 4, v5
        v_cndmask_b32 v36, v36, v40, vcc
        s_lshl_b32 s45, s7, 7
        s_add_u32 s45, s45, {WS_ST}
        s_add_u32 s46, s45, {LOC}
        s_waitcnt lgkmcnt(0)
        v_add_f32 v44, v44, v45
        v_add_f32 v46, v46, v47
        v_add_f32 v44, v44, v46
        v_and_or_b32 v28, v36, s50, v8
        v_lshl_or_b32 v29, v36, 8, v8
        v_and_or_b32 v30, v44, s50, v8
        v_mov_b32 v31, v8
        s_mov_b32 exec_lo, 15
        s_mov_b32 exec_hi, 15
        buffer_store_dwordx4 v[28:31], v5, s[12:15], s46 offen
        """)
        stamp(5)
        defer()
        a("buffer_store_dwordx4 v[28:31], v5, s[12:15], s45 offen sc1")
        finish_wave()

    a(f"""
    L_X2:
    s_setprio 3
    s_mul_i32 s57, s6, 9
    s_add_u32 s46, s57, s3
    s_lshr_b32 s52, s46, 4
    s_and_b32 s48, s46, 15
    s_mul_i32 s48, s48, 36
    s_and_b32 s43, s4, 1
    s_mul_i32 s41, s43, 5
    s_lshr_b32 s44, s52, 1
    s_add_u32 s41, s41, s44
    s_and_b32 s44, s52, 1
    s_cmp_eq_u32 s52, 8
    s_cselect_b32 s41, 4, s41
    s_cselect_b32 s43, s43, s44
    s_lshr_b32 s44, s4, 1
    s_mul_i32 s44, s44, 9
    s_add_u32 s41, s41, s44
    s_mul_i32 s44, s43, 36
    s_add_u32 s44, s44, s41
    s_cmp_eq_u32 s43, 1
    s_cselect_b32 s8, s30, s28
    s_cselect_b32 s9, s31, s29
    s_lshl_b32 s41, s41, 8
    s_mul_i32 s40, s48, 9216
    s_add_u32 s40, s40, s41
    s_mov_b32 s10, {576*9216}
    s_movk_i32 s42, 9216
    v_mul_u32_u24 v{AW2}, 9216, v3
    v_lshlrev_b32 v{AW}, 2, v{AW2}
    v_lshl_add_u32 v{AW}, v2, 4, v{AW}
    v_lshl_add_u32 v{AW2}, v2, 4, v{AW2}
    """)
    if opt["fake"] & 1:
        a(f"""
        s_lshr_b32 s41, s41, 4
        s_and_b32 s40, s46, 15
        s_add_u32 s40, s40, s41
        s_mul_i32 s40, s40, 9216
        s_movk_i32 s42, 1024
        v_lshlrev_b32 v{AW}, 4, v1
        v_lshlrev_b32 v{AW2}, 4, v1
        """)
    def g_issue(k):
        if opt["fake"] & 1:
            if k: a("s_add_u32 s40, s40, s42")
            a(f"buffer_load_dwordx4 {vr(WU+4*k)}, v{AW}, s[8:11], s40 offen nt")
            return
        if k: a(f"s_add_u32 s40, s40, {13*9216 if k % 4 == 0 else 's42'}")
        a(f"buffer_load_dwordx4 {vr(WU+4*k)}, v{AW if k < 8 else AW2}, s[8:11], s40 offen nt")
    sel_masks()
    a(f"""
    v_bfe_u32 v{AXQ}, v1, 3, 1
    v_mul_u32_u24 v{AXQ}, 2304, v{AXQ}
    s_lshl_b32 s41, s48, 2
    v_add_u32 v{AXU}, s41, v{AXQ}
    v_lshl_add_u32 v{AXU2}, v3, 2, v{AXU}
    v_add_u32 v{AXU2}, 128, v{AXU2}
    v_lshl_add_u32 v{AXU}, v3, 4, v{AXU}
    s_lshl_b32 s41, s47, 2
    v_add_u32 v{AXQ}, s41, v{AXQ}
    v_lshl_add_u32 v{AXQ}, v3, 4, v{AXQ}
    v_lshlrev_b32 v{ALN}, 4, v1
    s_lshl_b32 s53, s52, 4
    s_sub_i32 s54, s53, s57
    s_add_i32 s55, s54, 16
    s_max_i32 s54, s54, 0
    s_min_i32 s55, s55, 9
    s_sub_u32 s90, s3, s54
    s_lshl_b32 s90, s90, 10
    s_sub_i32 s54, s55, s54
    s_sub_i32 s54, s54, 3
    s_mul_i32 s59, s53, 7282
    s_lshr_b32 s59, s59, 16
    s_sub_u32 s59, s6, s59
    s_mul_i32 s56, s44, 3
    s_add_u32 s56, s56, s59
    s_lshl_b32 s56, s56, 10
    s_add_u32 s56, s56, {WS_GUP}
    s_add_u32 s59, s56, {LOC}
    s_lshr_b32 s57, s57, 4
    s_sub_u32 s55, s52, s57
    s_mul_i32 s53, s55, 9216
    s_add_u32 s90, s90, s53
    s_lshl_b32 s55, s55, 2
    s_add_u32 s55, s55, {L_CNT0}
    s_lshl_b32 s58, s3, 10
    """)
    def tile_reads(base, tmp, addr):
        return [f"ds_read_b128 {vr(tmp+4*t)}, v{addr} offset:{base+1024*t}" for t in range(9)]
    gu_vals = f"ds_read_b128 {vr(V0)}, v{AXU}\nds_read_b128 {vr(V0+4)}, v{AXU} offset:64\nds_read_b32 v{V0+8}, v{AXU2}"
    def q_block():
        spin(f"ds_read_b128 {vr(V0)}, v{AXQ}", maxchain(range(V0, V0 + 4)))
        a(f"v_mov_b32 v10, {L_TAG}")
        a("ds_read_b32 v8, v10")
        stamp(2)
        for i in range(2): build_op(OPR + 4 * i, V0 + i)
        for i in range(4):
            a(f"{MF} {vr(D0)}, {vr(OPR+4*(i%2))}, {vr(WQ+4*i)}, {'0' if i == 0 else vr(D0)}")
            if i < 2: build_op(OPR + 4 * i, V0 + 2 + i)
        a(gu_vals)
        a(f"v_add_u32 v11, s58, v{ALN}")
        a(f"ds_write_b128 v11, {vr(D0)} offset:{L_BIG}")
        bump(L_CNT2)
        stamp(3)
        spin(gu_vals, maxchain(range(V0, V0 + 9)), preloaded=True)
    def g_mfma(k, wait=None):
        build_op(OPR + 4 * (k % 2), V0 + k)
        if wait is not None: a(f"s_waitcnt vmcnt({wait})")
        a(f"{MF} {vr(D0)}, {vr(OPR+4*(k%2))}, {vr(WU+4*k)}, {'0' if k == 0 else vr(D0)}")
    done = 0; landed = 0; qdone = False
    for k in range(9):
        n = 4 + k
        w = opt["wg"] if k < opt["gburst"] else opt["wg2"]
        if opt["fast4"] and w < opt["wg2"] and qdone:
            Lb = a.label("f4")
            a("s_cmp_ge_u32 s6, 12")
            a(f"s_cbranch_scc1 {Lb}")
            a(f"s_waitcnt vmcnt({w-1})")
            a(f"{Lb}:")
            w = opt["wg2"]
        if n - landed >= w:
            a(f"s_waitcnt vmcnt({w-1})")
            landed = n - w + 1
        g_issue(k)
        if not qdone and landed >= 4:
            q_block(); qdone = True
        if DYN and k == 8 - opt["cdg"]: bump(L_CGO)
        if k == 8 - opt["gd"]: bump(L_VISS)
        while qdone and 4 + done < landed:
            g_mfma(done); done += 1
    stamp(4)
    a(f"v_add_u32 v{AXQ}, s90, v{ALN}")
    lin_addr(AXU)
    a(f"v_add_u32 v{AXU}, s53, v{AXU}")
    la_prep("s55")
    a(f"v_mov_b32 v{AXU2}, {L_VISS}")
    for k in range(done, 9):
        g_mfma(k, 8 - k)
        if opt["gd"] < 0 and k == 9 + opt["gd"]:
            a(f"""
            s_mov_b64 exec, 1
            ds_add_u32 v{AXU2}, v10
            s_mov_b64 exec, -1
            """)
    stamp(5)
    a(f"ds_write_b128 v{AXQ}, {vr(D0)} offset:{L_GT}")
    last_arriver("s54", "L_wave_end", tile_reads(L_GT, 68, AXU))
    for t in range(4):
        a(f"s_waitcnt lgkmcnt({7-2*t})")
        add4(68 + 8 * t, 68 + 8 * t, 72 + 8 * t)
        if t == 1: add4(68, 68, 76)
    add4(84, 84, 92)
    a("s_waitcnt lgkmcnt(0)")
    add4(68, 68, 100); add4(68, 68, 84)
    tag4(68)
    a(f"buffer_store_dwordx4 v[68:71], v{ALN}, s[12:15], s59 offen")
    bump(L_DONE)
    stamp(6)
    a("s_cmp_eq_u32 s52, 8")
    a("s_cbranch_scc1 L_X_now")
    defer()
    a("L_X_now:")
    a(f"buffer_store_dwordx4 v[68:71], v{ALN}, s[12:15], s56 offen sc1")
    finish_wave()

    a(f"""
    L_D:
    s_sub_u32 s49, s3, 9
    v_lshlrev_b32 v57, 4, v1
    s_lshl_b32 s41, s49, 11
    v_add_u32 v58, s41, v57
    """)
    lin_addr(57)
    a(f"""
    s_lshl_b32 s41, s49, 10
    v_add_u32 v57, s41, v57
    v_and_b32 v9, 7, v1
    v_lshlrev_b32 v9, 4, v9
    s_movk_i32 s41, {FPS}
    v_lshrrev_b32 v59, 3, v1
    v_mad_u32_u24 v59, v59, s41, v9
    v_bfe_u32 v60, v1, 3, 1
    v_and_b32 v10, 2, v3
    v_add3_u32 v60, v60, v10, 8
    v_mad_u32_u24 v60, v60, s41, v9
    s_cmp_eq_u32 s49, 1
    s_cselect_b32 s54, 0xffff, -1
    s_mov_b32 s55, s54
    s_cselect_b64 vcc, -1, 0
    v_cndmask_b32 v59, v59, v60, vcc
    v_bfe_u32 v9, v1, 2, 1
    v_cmp_eq_u32 vcc, 0, v9
    v_mov_b32 v10, 0xffff
    v_cndmask_b32 v4, 0, v10, vcc
    v_xor_b32 v5, v4, v10
    v_lshlrev_b32 v6, 16, v4
    v_lshlrev_b32 v7, 16, v5
    v_mov_b32 v122, {L_CNT3}
    v_mov_b32 v123, 1
    v_and_b32 v46, 3, v1
    v_mul_u32_u24 v46, 0x5555, v46
    v_mul_u32_u24 v44, {128*NLN}, v2
    s_lshl_b32 s41, s49, 7
    s_add_u32 s41, s41, {L_VAL}
    v_and_b32 v65, 1, v1
    v_lshlrev_b32 v65, 5, v65
    v_bfe_u32 v9, v1, 3, 1
    v_lshl_add_u32 v65, v9, 4, v65
    v_lshlrev_b32 v56, 6, v9
    v_bfe_u32 v9, v1, 4, 1
    v_lshl_add_u32 v65, v9, 3, v65
    v_bfe_u32 v9, v1, 1, 1
    v_lshl_add_u32 v65, v9, 2, v65
    v_bfe_u32 v9, v1, 2, 1
    v_lshl_add_u32 v65, v9, 1, v65
    v_lshrrev_b32 v120, 5, v1
    v_lshl_add_u32 v65, v120, 6, v65
    v_add_u32 v65, s41, v65
    v_lshl_add_u32 v56, v3, 4, v56
    v_add_u32 v56, s41, v56
    v_and_b32 v121, 31, v1
    v_mul_u32_u24 v{AW}, 4608, v3
    v_lshrrev_b32 v9, 3, v2
    v_mul_u32_u24 v9, {18432-128}, v9
    v_lshl_add_u32 v{AW}, v2, 4, v{AW}
    v_add_u32 v{AW2}, v9, v{AW}
    """)
    for r in list(range(D0, D0 + 4)) + list(range(D1, D1 + 8)): a(f"v_mov_b32 v{r}, 0")
    get_tag()
    a("""
    v_mul_u32_u24 v45, 0x101, v8
    s_cmp_eq_u32 s5, 1
    s_cbranch_scc1 L_DG
    """)
    def claim(role):
        if not DYN: return
        L = a.label("noclaim")
        a("s_cmp_lg_u32 s49, 0")
        a(f"s_cbranch_scc1 {L}")
        wait_value(L_CGO, (4, 9)[role] - 2, sleep=2)
        a(f"""
        s_lshl_b32 s41, s4, 2
        s_add_u32 s76, s36, s41
        s_addc_u32 s77, s37, 0
        s_mov_b32 s97, 1
        s_atomic_add s97, s[76:77], {128*role} glc
        s_waitcnt lgkmcnt(0)
        s_and_b32 s97, s97, 15
        """)
        if role == 1:
            a("""
            s_and_b32 s41, s4, 1
            s_sub_u32 s42, 14, s41
            s_add_u32 s43, s97, 12
            s_cmp_ge_u32 s43, s42
            s_cselect_b32 s41, s42, 0
            s_sub_u32 s43, s43, s41
            s_cmp_lt_u32 s97, s42
            s_cselect_b32 s97, s43, s97
            """)
        set_flag(L_TK, "s97")
        a(f"{L}:")
    def tile_scalars(role):
        ptr, nbytes = ((24, 4096 * 1152), (32, 4608 * 1152))[role]
        a(f"""
        s_add_u32 s40, s86, {32*role}
        s_lshl_b32 s43, s40, 7
        s_mul_i32 s41, s87, {12*FPS}
        s_add_u32 s43, s43, s41
        s_add_u32 s43, s43, {WS_FP}
        s_lshr_b32 s41, s40, {WPL.bit_length()-1}
        s_and_b32 s40, s40, {WPL-1}
        s_mul_i32 s42, s87, {12*NLN}
        s_add_u32 s41, s41, s42
        s_lshl_b32 s41, s41, 7
        {"s_lshl2_add_u32 s44, s40, s41" if opt["hb"] else "s_lshl1_add_u32 s44, s40, s41"}
        {"s_add_u32 s44, s44, s49" if opt["hb"] else ""}
        s_add_u32 s44, s44, {WS_HINT}
        s_lshl2_add_u32 s45, s86, s49
        s_mul_i32 s45, s45, 36864
        s_mul_i32 s41, s87, 384
        s_add_u32 s45, s45, s41
        s_add_u32 s46, s45, 18432
        s_mov_b32 s8, s{ptr}
        s_mov_b32 s9, s{ptr+1}
        s_mov_b32 s10, {nbytes}
        """)
    div3 = """
    s_mul_i32 s88, s97, 86
    s_lshr_b32 s88, s88, 8
    s_mul_i32 s87, s88, 3
    s_sub_u32 s87, s97, s87
    """
    ORDER = [[8, 9, 10, 11, 0, 1, 2, 3, 4, 5, 6, 7], [0, 8, 4, 1, 9, 5, 2, 10, 6, 3, 11, 7], [0, 1, 2, 3, 4, 5, 6, 7, 8, 9, 10, 11]][opt['order']]
    def tile_stream(role, p_issue, lo, n, mask, tail=None, quick=None):
        WL = opt["wlg" if role else "wl"]
        stamp(1)
        if opt["warm"] and not DYN: p_issue()
        wait_value(L_VISS, (4, 9)[role] - 2, sleep=1)
        stamp(2)
        if opt["fake"] & 4:
            a(f"""
            s_mul_i32 s45, s86, 3
            s_add_u32 s45, s45, s87
            s_lshl2_add_u32 s45, s45, s49
            s_mul_i32 s45, s45, 12288
            v_lshlrev_b32 v{AW}, 4, v1
            """)
        for k, j in enumerate(ORDER):
            if k >= WL: a(f"s_waitcnt vmcnt({WL-1})")
            if opt["fake"] & 4:
                a(f"buffer_load_dwordx4 {vr(W3+4*j)}, v{AW}, s[8:11], s45 offen nt")
                a("s_add_u32 s45, s45, 1024")
                continue
            if j < 8: a(f"buffer_load_dwordx4 {vr(W3+4*j)}, v{AW}, s[8:11], {'s45' if j < 4 else 's46'} offen offset:{(j%4)*1152} nt")
            else: a(f"buffer_load_dwordx4 {vr(W3+4*j)}, v{AW2}, s[8:11], s45 offen offset:{(j-8)*1152+256} nt")
        if tail: tail()
        stamp(3)
        if opt["cut"] == 1: a("s_waitcnt vmcnt(0)"); a("s_endpgm")
        wait_value(L_DONE, "s58", sleep=0)
        if quick: quick()
        hand(p_issue, lo, n, mask)
    def hand(p_issue, lo, n, mask, entry=None):
        L = a.label("hand"); F = a.label("first"); K = a.label("keep")
        a(f"""
        s_mov_b32 s51, 1
        s_branch {entry or F}
        {L}:
        s_add_u32 s51, s51, 1
        s_cmp_gt_u32 s51, {SPIN}
        s_cbranch_scc1 L_abort
        s_cmp_lg_u32 s51, {opt["kf"]}
        s_cbranch_scc1 {K}
        s_mov_b64 exec, 1
        ds_write_b32 v122, v123 offset:{L_FLUSH-L_CNT3}
        s_mov_b64 exec, -1
        {K}:
        s_and_b32 s41, s51, {mask}
        s_cselect_b32 s42, {LOC}, 0
        {F}:
        s_waitcnt vmcnt(0)
        """)
        p_issue()
        if entry: a(f"{entry}:")
        a("s_waitcnt vmcnt(0)")
        untag(lo, lo, n)
        a(f"s_cbranch_vccnz {L}")
        stamp(4)
        if opt["cut"] == 2: a("s_endpgm")
        if opt["hb"] == 1: byte_notice()
        elif not opt["hb"]:
            a("""
            s_mov_b64 exec, 1
            ds_add_rtn_u32 v11, v122, v123
            s_mov_b64 exec, -1
            """)
    def byte_notice():
        a("""
        s_mov_b64 exec, 0xfff
        buffer_store_byte v8, v44, s[12:15], s44 offen sc1
        s_mov_b64 exec, -1
        """)
    def tile_tail():
        def notice():
            if opt["xp"] & 8: return
            B = a.label("nohint")
            a(f"""
            v_readfirstlane_b32 s84, v11
            s_cmp_eq_u32 s84, 1
            s_cbranch_scc0 {B}
            s_mov_b64 exec, 0xfff
            buffer_store_short v45, v44, s[12:15], s44 offen sc1
            s_mov_b64 exec, -1
            """)
            stamp(1)
            a(f"{B}:")
        a(f"""
        v_cvt_pk_bf16_f32 v16, v16, v16
        ds_write_b16 v65, v16
        ds_read_b128 {vr(V0)}, v56
        """)
        if opt["hb"] == 2: byte_notice()
        if opt["hp"] < 0 and not opt["hb"]:
            a("s_waitcnt lgkmcnt(2)")
            notice()
        a("s_waitcnt lgkmcnt(0)")
        OP = [24, 28, 32, 36]
        k = 0
        for st in ["b0", "b2", (D1, 0, 32), "b1", (D2, 2, 32), "b3", (D1, 1, 40), (D2, 3, 40), (D0, 0, 0), (D0, 1, 8), (D0, 2, 16), (D0, 3, 24)]:
            if isinstance(st, str): build_op(OP[int(st[1])], V0 + int(st[1]))
            else:
                a(f"{SM} {vr(st[0])}, {vr(OP[st[1]])}, {vr(W3+st[2], 8)}, v46")
                k += 1
                if k == opt["hp"]: notice()
        stamp(5)
        L2 = a.label("sum"); F2 = a.label("sum1")
        for r in range(4): a(f"v_add_f32_dpp v{D1+r}, v{D2+r}, v{D1+r} row_ror:8 {DPPF}")
        a(f"""
        ds_write_b128 v58, {vr(D1)} offset:{L_T3+1024}
        ds_write_b128 v58, {vr(D0)} offset:{L_T3}
        s_mov_b64 exec, 1
        ds_add_u32 v122, v123 offset:{L_CNT4-L_CNT3}
        s_mov_b64 exec, s[54:55]
        s_cmp_ge_u32 s49, 2
        s_cbranch_scc1 L_wave_end
        s_mov_b32 s51, {SPIN}
        {L2}:
        ds_read_b32 v10, v122 offset:{L_CNT4-L_CNT3}
        """)
        for t in range(4): a(f"ds_read_b128 {vr(16+4*t)}, v57 offset:{L_T3+2048*t}")
        a(f"""
        s_sub_u32 s51, s51, 1
        s_cbranch_scc1 L_abort
        s_waitcnt lgkmcnt(4)
        v_cmp_ne_u32 vcc, 2, v10
        s_cbranch_vccnz {L2}
        s_waitcnt lgkmcnt(2)
        """)
        add4(16, 16, 20)
        a("s_waitcnt lgkmcnt(0)")
        add4(24, 24, 28); add4(16, 16, 24)
        tag4(16)
        a("buffer_store_dwordx4 v[16:19], v59, s[12:15], s43 offen sc1")
        a(f"""
        s_mov_b64 exec, 1
        ds_write_b32 v122, v123 offset:{L_FLUSH-L_CNT3}
        """)
        stamp(6)
        finish_wave()
    a(f"""
    v_lshlrev_b32 v61, 12, v120
    v_lshl_add_u32 v61, v121, 2, v61
    v_and_b32 v10, 3, v1
    v_lshl_add_u32 v62, v120, 2, v10
    v_lshlrev_b32 v62, 7, v62
    s_mov_b32 s57, 0x07060501
    s_mov_b32 s58, 0
    """)
    if DYN and opt["warm"]:
        a(f"""
        s_lshl_b32 s41, s7, 10
        s_add_u32 s41, s41, {WS_OP+LOC}
        s_lshl_b32 s42, s49, 8
        s_add_u32 s41, s41, s42
        v_lshlrev_b32 v9, 2, v1
        buffer_load_dword v20, v9, s[12:15], s41 offen sc1
        """)
    claim(0); get_slot()
    a(f"""
    s_lshl2_add_u32 s89, s4, s97
    s_sub_u32 s89, s89, 12
    s_cmp_ge_u32 s97, 12
    s_cbranch_scc1 L_free
    {div3}
    s_lshl2_add_u32 s86, s4, s88
    s_lshr_b32 s47, s86, 1
    s_lshl_b32 s48, s47, 10
    s_lshl_b32 s47, s47, 13
    s_and_b32 s41, s86, 1
    s_lshl_b32 s42, s41, 6
    s_add_u32 s48, s48, s42
    s_add_u32 s48, s48, {WS_ST}
    s_lshl_b32 s41, s41, 9
    s_add_u32 s47, s47, s41
    s_lshl_b32 s41, s49, 7
    s_add_u32 s47, s47, s41
    s_add_u32 s47, s47, {WS_OP}
    v_add_u32 v61, s47, v61
    v_add_u32 v62, s48, v62
    """)
    tile_scalars(0)
    a(f"s_mov_b32 s42, {LOC}")
    def st_load(): a("buffer_load_dwordx4 v[24:27], v62, s[12:15], s42 offen sc1")
    def o_loads():
        for k in range(4): a(f"buffer_load_dword v{20+k}, v61, s[12:15], s42 offen offset:{k*1024} sc1")
    weights = f"""
    v_perm_b32 v28, v24, v25, s57
    v_mov_b32 v29, v28
    v_max_f32_dpp v29, v29, v29 quad_perm:[1,0,3,2] {DPPF}
    v_max_f32_dpp v29, v29, v29 quad_perm:[2,3,0,1] {DPPF}
    v_sub_f32 v28, v28, v29
    v_exp_f32 v28, v28
    v_mul_f32 v26, v26, v28
    v_mov_b32_dpp v40, v28 quad_perm:[0,0,0,0] {DPPF}
    v_mov_b32_dpp v41, v28 quad_perm:[1,1,1,1] {DPPF}
    v_add_f32_dpp v26, v26, v26 quad_perm:[1,0,3,2] {DPPF}
    v_mov_b32_dpp v42, v28 quad_perm:[2,2,2,2] {DPPF}
    v_mov_b32_dpp v43, v28 quad_perm:[3,3,3,3] {DPPF}
    v_add_f32_dpp v26, v26, v26 quad_perm:[2,3,0,1] {DPPF}
    v_rcp_f32 v26, v26
    """
    def quick():
        a("s_waitcnt vmcnt(0)")
        o_loads()
        untag(24, 24, 4)
        a("s_cbranch_vccz L_o_quick")
    tile_stream(0, lambda: (st_load(), o_loads()), 20, 8, opt["lmask"], st_load if opt["pst"] else None, quick if opt["pst"] else None)
    a(weights)
    if opt["pst"]:
        a("s_branch L_o_sum")
        a("L_o_quick:")
        a(weights)
        hand(o_loads, 20, 4, opt["lmask"], entry="L_o_wait")
        a("L_o_sum:")
    a("""
    v_mul_f32 v16, v40, v20
    v_mul_f32 v18, v42, v22
    v_fmac_f32 v16, v41, v21
    v_fmac_f32 v18, v43, v23
    v_add_f32 v16, v16, v18
    v_mul_f32 v16, v16, v26
    """)
    tile_tail()
    c1 = -2.0 * 0.7978845608028654 * 1.4426950408889634
    a(f"""
    L_DG:
    v_lshlrev_b32 v47, 9, v120
    v_lshl_add_u32 v47, v121, 2, v47
    s_mov_b32 s59, {f32bits(0.044715 * c1)}
    v_mov_b32 v66, {f32bits(c1):#x}
    """)
    done_target_g("s58")
    claim(1); get_slot()
    a(f"""
    s_lshr_b32 s89, s4, 1
    s_add_u32 s89, s89, 32
    s_and_b32 s85, s4, 1
    s_lshl4_add_u32 s41, s85, s97
    s_cmp_eq_u32 s41, 29
    s_cbranch_scc1 L_free
    s_mov_b32 s89, -1
    s_cmp_ge_u32 s97, 14
    s_cbranch_scc1 L_free
    {div3}
    s_mul_i32 s86, s85, 5
    s_add_u32 s86, s86, s88
    s_lshl1_add_u32 s41, s85, s87
    s_cmp_lt_u32 s97, 12
    s_cselect_b32 s86, s86, 4
    s_cselect_b32 s87, s87, s41
    s_cselect_b32 s48, {opt["lmask"]}, 0
    s_lshr_b32 s41, s4, 1
    s_mul_i32 s41, s41, 9
    s_add_u32 s86, s86, s41
    s_lshl_b32 s56, s88, 1
    s_add_u32 s57, s56, 1
    s_min_u32 s57, s57, 8
    """)
    for sl, msk in (("s56", "s[90:91]"), ("s57", "s[92:93]")):
        a(f"""
        s_bitcmp1_b32 {THREE:#x}, {sl}
        s_cselect_b64 {msk}, -1, 0
        s_cselect_b32 {sl}, 2, 1
        s_lshl_b32 {sl}, {sl}, 10
        """)
    a(f"""
    s_mul_i32 s47, s86, 3072
    s_lshl_b32 s41, s49, 7
    s_add_u32 s47, s47, s41
    s_add_u32 s47, s47, {WS_GUP}
    v_add_u32 v61, s47, v47
    v_add_u32 v62, {36*3072}, v61
    v_add_u32 v63, s56, v61
    v_add_u32 v64, s57, v62
    """)
    tile_scalars(1)
    a("s_cmp_eq_u32 s48, 0")
    a(f"s_cselect_b32 s42, 0, {LOC}")
    def h_issue():
        a("""
        buffer_load_dword v16, v61, s[12:15], s42 offen sc1
        buffer_load_dword v17, v62, s[12:15], s42 offen sc1
        buffer_load_dword v18, v61, s[12:15], s42 offen offset:1024 sc1
        buffer_load_dword v19, v62, s[12:15], s42 offen offset:1024 sc1
        buffer_load_dword v20, v63, s[12:15], s42 offen sc1
        buffer_load_dword v21, v64, s[12:15], s42 offen sc1
        """)
    tile_stream(1, h_issue, 16, 6, "s48")
    a("""
    v_cndmask_b32 v20, 0, v20, s[90:91]
    v_cndmask_b32 v21, 0, v21, s[92:93]
    v_pk_add_f32 v[16:17], v[16:17], v[18:19]
    v_pk_add_f32 v[16:17], v[16:17], v[20:21]
    v_cvt_pk_bf16_f32 v17, v16, v17
    v_lshlrev_b32 v16, 16, v17
    v_and_b32 v17, 0xffff0000, v17
    v_mul_f32 v18, v16, v16
    v_fma_f32 v18, v18, s59, v66
    v_mul_f32 v18, v18, v16
    v_exp_f32 v18, v18
    v_add_f32 v18, 1.0, v18
    v_rcp_f32 v18, v18
    v_mul_f32 v16, v16, v18
    v_cvt_pk_bf16_f32 v16, v16, v16
    v_and_b32 v16, 0xffff0000, v16
    v_mul_f32 v16, v16, v17
    """)
    tile_tail()
    a("L_free:")
    if opt["fd"]: wait_value(L_DONE, "s58", sleep=2)
    if opt["xp"] & 4: a("s_sleep 40")
    set_flag(L_FLUSH)
    a("""
    s_cmp_lg_u32 s89, -1
    s_cbranch_scc1 L_R
    """)
    a("L_wave_end:")
    finish_wave()

    def collect(nd, n, issue):
        L = a.label("hint"); R = a.label("again"); F = a.label("read")
        a(f"""
        s_branch {L}
        {R}:
        s_sub_u32 s51, s51, 1
        s_cbranch_scc1 L_abort
        s_branch {F}
        {L}:
        s_sub_u32 s53, s53, 1
        s_cbranch_scc1 {F}
        """)
        per = min(nd, WPL // 2)
        for k in range(nd // per):
            a(f"s_load_dwordx{per} s[{16+per*k}:{15+per*k+per}], s[76:77], {128*k} glc" if per > 1 else f"s_load_dword s{16+k}, s[76:77], {128*k} glc")
        a("s_waitcnt lgkmcnt(0)")
        for k in range(nd // 2): a(f"s_xor_b64 s[{16+2*k}:{17+2*k}], s[{16+2*k}:{17+2*k}], s[90:91]")
        for k in range(1, nd // 2): a(f"s_or_b64 s[16:17], s[16:17], s[{16+2*k}:{17+2*k}]")
        a(f"s_cbranch_scc1 {L}")
        stamp(2)
        a(f"{F}:")
        issue()
        a("s_waitcnt vmcnt(0)")
        untag(48, 48, n)
        a(f"s_cbranch_vccnz {R}")
        stamp(3)

    def m_tag():
        a(f"""
        s_waitcnt lgkmcnt(0)
        s_add_u32 s52, s52, 1
        s_and_b32 s53, s52, 0xff
        v_mov_b32 v8, s53
        v_mov_b32 v13, {L_TAG}
        s_mov_b64 exec, 1
        v_mov_b32 v10, s52
        ds_write_b32 v13, v10 offset:{L_E1-L_TAG}
        ds_write_b32 v13, v8
        s_mov_b64 exec, -1
        s_mov_b32 s49, 4
        """)
    a("""
    L_M2:
    s_cmp_eq_u32 s5, 0
    s_cbranch_scc1 L_MA
    s_waitcnt vmcnt(0)
    """)
    stamp(2)
    X = 16
    for t in range(9):
        a(f"v_lshlrev_b32 v{X+2*t}, 16, v{108+t}")
        a(f"v_and_b32 v{X+2*t+1}, 0xffff0000, v{108+t}")
    a(f"v_pk_add_f32 v[34:35], {vr(X,2)}, {vr(X+2,2)}")
    for t in range(2, 9): a(f"v_pk_add_f32 v[34:35], v[34:35], {vr(X+2*t,2)}")
    a("v_add_f32 v34, v34, v35")
    def half_reduce(r):
        for mode in ("quad_perm:[1,0,3,2]", "quad_perm:[2,3,0,1]", "row_half_mirror", "row_mirror"):
            a(f"v_add_f32_dpp v{r}, v{r}, v{r} {mode} {DPPF}")
        a(f"v_mov_b32 v{r+1}, v{r}")
        a(f"v_permlane16_swap_b32 v{r}, v{r+1}")
        a(f"v_add_f32 v{r}, v{r}, v{r+1}")
    half_reduce(34)
    a(f"v_mul_f32 v34, {f32bits(1.0/576):#x}, v34")
    a("v_mov_b32 v35, v34")
    for t in range(9): a(f"v_pk_add_f32 {vr(36+2*t,2)}, {vr(X+2*t,2)}, v[34:35] neg_lo:[0,1] neg_hi:[0,1]")
    a("v_pk_mul_f32 v[54:55], v[36:37], v[36:37]")
    for t in range(1, 9): a(f"v_pk_fma_f32 v[54:55], {vr(36+2*t,2)}, {vr(36+2*t,2)}, v[54:55]")
    a("v_add_f32 v54, v54, v55")
    half_reduce(54)
    a(f"""
    v_mul_f32 v54, {f32bits(1.0/576):#x}, v54
    v_cvt_pk_bf16_f32 v34, v34, v54
    v_and_b32 v54, 0xffff0000, v34
    v_lshlrev_b32 v34, 16, v34
    v_mov_b32 v35, v34
    v_add_f32 v54, {f32bits(1e-5):#x}, v54
    v_cvt_pk_bf16_f32 v54, v54, v54
    v_and_b32 v54, 0xffff0000, v54
    v_sqrt_f32 v54, v54
    v_cvt_pk_bf16_f32 v54, v54, v54
    v_and_b32 v54, 0xffff0000, v54
    v_rcp_f32 v54, v54
    v_lshrrev_b32 v11, 5, v1
    v_mul_u32_u24 v11, 2304, v11
    v_and_b32 v13, 31, v1
    v_mul_u32_u24 v13, 72, v13
    v_add_u32 v11, v11, v13
    v_mov_b32 v55, v54
    """)
    for t in range(9): a(f"v_pk_add_f32 {vr(X+2*t,2)}, {vr(X+2*t,2)}, v[34:35] neg_lo:[0,1] neg_hi:[0,1]")
    for t in range(9): a(f"v_cvt_pk_bf16_f32 v{36+t}, v{X+2*t}, v{X+2*t+1}")
    m_tag()
    for t in range(9):
        a(f"v_lshlrev_b32 v{X+2*t}, 16, v{36+t}")
        a(f"v_and_b32 v{X+2*t+1}, 0xffff0000, v{36+t}")
        a(f"v_pk_mul_f32 {vr(X+2*t,2)}, {vr(X+2*t,2)}, v[54:55]")
        a(f"v_cvt_pk_bf16_f32 v{X+2*t}, v{X+2*t}, v{X+2*t}")
        a(f"v_cvt_pk_bf16_f32 v{X+2*t+1}, v{X+2*t+1}, v{X+2*t+1}")
        a(f"ds_write_b64 v11, {vr(X+2*t,2)} offset:{L_XNP+8*t}")
    stamp(3)
    a(f"""
    v_lshlrev_b32 v14, 4, v1
    v_mov_b32 v15, {L_CNT2}
    """ + q_head("s44") + f"""
    s_and_b32 s41, s6, 3
    s_lshl2_add_u32 s44, s44, s41
    s_lshl_b32 s44, s44, 10
    s_add_u32 s44, s44, {WS_QP}
    s_add_u32 s45, s44, {LOC}
    """)
    spin("\n".join(["ds_read_b32 v10, v15"] + tile_reads(L_BIG, 16, 14)), "v_cmp_ne_u32 vcc, 7, v10", sleep=0)
    add4(16, 16, 20); add4(24, 24, 28); add4(32, 32, 36); add4(40, 40, 44)
    add4(16, 16, 24); add4(32, 32, 40); add4(16, 16, 48); add4(16, 16, 32)
    tag4(16)
    a("buffer_store_dwordx4 v[16:19], v14, s[12:15], s45 offen")
    stamp(1)
    defer("L_M_q2")
    a("buffer_store_dwordx4 v[16:19], v14, s[12:15], s44 offen sc1")
    a("L_M_q2:")
    done_target_g("s58")
    a("s_setprio 0")
    get_slot()
    a("""
    s_lshr_b32 s89, s4, 1
    s_add_u32 s89, s89, 32
    s_and_b32 s41, s4, 1
    s_lshl4_add_u32 s41, s41, s97
    s_cmp_eq_u32 s41, 29
    s_cbranch_scc1 L_R
    """)
    finish_wave()

    a(f"""
    L_MA:
    s_lshr_b32 s46, s7, 3
    s_lshl_b32 s46, s46, 13
    s_bfe_u32 s47, s6, 0x10002
    s_lshl_b32 s47, s47, 9
    s_add_u32 s46, s46, s47
    s_add_u32 s46, s46, {WS_QP}
    s_add_u32 s47, s46, {LOC}
    s_mov_b32 s48, 0
    v_lshrrev_b32 v11, 5, v1
    v_and_b32 v15, 31, v1
    v_lshlrev_b32 v14, 12, v11
    v_lshl_add_u32 v14, v15, 4, v14
    v_lshlrev_b32 v12, 8, v11
    v_lshl_add_u32 v12, v2, 4, v12
    v_and_b32 v9, 1, v3
    v_lshl_add_u32 v12, v9, 3, v12
    """)
    m_tag()
    def q_issue(r):
        a("s_add_u32 s48, s48, 1")
        a(f"s_and_b32 s41, s48, {opt['lmask']}")
        a("s_cselect_b32 s42, s47, s46")
        for i in range(NQ): a(f"buffer_load_dwordx4 {vr(r+4*i)}, v14, s[12:15], s42 offen offset:{i*(1024 if NQ == 4 else 2048)} sc1")
    NQ = 2 if opt["xp"] & 16 else 4
    if NQ == 2:
        a("v_bfe_u32 v9, v1, 4, 1")
        a("v_lshl_add_u32 v14, v9, 10, v14")
    wait_flag(L_QGO, sleep=2)
    stamp(2)
    poll(opt["qsets"], 4 * NQ, 16, 64, q_issue, NQ, stag=opt["qstag"])
    add4(16, 16, 20); add4(24, 24, 28); add4(16, 16, 24)
    a(f"""
    v_cvt_pk_bf16_f32 v16, v16, v17
    v_cvt_pk_bf16_f32 v17, v18, v19
    ds_write_b64 v12, v[16:17] offset:{L_QL}
    """)
    set_flag(L_QFLAG)
    stamp(3)
    get_slot()
    a("""
    s_lshl2_add_u32 s89, s4, s97
    s_sub_u32 s89, s89, 12
    s_mov_b32 s58, 0
    s_cmp_lt_u32 s97, 12
    s_cbranch_scc1 L_wave_end
    """)

    a(f"""
    L_R:
    s_mul_i32 s46, s89, {FPS}
    s_lshl_b32 s41, s49, 11
    s_add_u32 s46, s46, s41
    s_add_u32 s46, s46, {WS_FP}
    v_lshlrev_b32 v14, 4, v1
    v_lshlrev_b32 v19, 2, v1
    s_lshl_b32 s41, s49, 8
    v_add_u32 v15, s41, v19
    s_mul_i32 s41, s89, 43
    s_lshr_b32 s41, s41, 9
    s_mul_i32 s42, s41, 12
    s_sub_u32 s42, s89, s42
    s_mul_i32 s41, s41, 192
    s_cmp_ge_u32 s42, 8
    s_cbranch_scc1 L_R_hi
    s_lshr_b32 s43, s42, 2
    s_and_b32 s48, s42, 3
    s_lshl_b32 s48, s48, 5
    s_branch L_R_col
    L_R_hi:
    s_bfe_u32 s43, s42, 0x10001
    s_and_b32 s48, s42, 1
    s_lshl_b32 s48, s48, 5
    s_add_u32 s48, s48, 128
    L_R_col:
    s_mul_i32 s43, s43, 576
    s_add_u32 s41, s41, s43
    s_add_u32 s41, s41, s48
    s_lshl_b32 s41, s41, 1
    v_and_b32 v12, 7, v1
    v_lshlrev_b32 v12, 3, v12
    v_lshl_add_u32 v12, v3, 1, v12
    v_add_u32 v12, s41, v12
    v_min_u32 v12, 2302, v12
    global_load_ushort v13, v12, s[16:17]
    v_mov_b32 v48, 0
    v_mov_b32 v49, 0
    v_mov_b32 v50, 0
    v_mov_b32 v51, 0
    s_mov_b32 s43, {f32bits(-1.4426950408889634)}
    """)
    if opt["fw"]:
        a("""
        s_waitcnt vmcnt(0)
        s_add_u32 s76, s38, s46
        s_addc_u32 s77, s39, 0
        """)
        for k in range(16): a(f"s_load_dword s{16+k}, s[76:77], {128*k} glc")
        a("s_waitcnt lgkmcnt(0)")
    wait_value(L_DONE, "s58", sleep=2)
    if opt["cut"]:
        a(f"""
        s_cmp_lg_u32 s89, 0
        s_cbranch_scc1 L_wave_end
        s_mov_b64 exec, 1
        v_mov_b32 v18, {L_E1}
        ds_read_b32 v19, v18
        v_mov_b32 v18, {WS_EPOCH}
        s_waitcnt lgkmcnt(0)
        buffer_store_dword v19, v18, s[12:15], 0 offen
        s_endpgm
        """)
    stamp(4)
    a(f"""
    s_waitcnt vmcnt(0)
    v_lshlrev_b32 v22, 16, v13
    v_readfirstlane_b32 s90, v8
    s_mul_i32 s41, s89, 5
    s_add_u32 s41, s41, s49
    s_mul_i32 s41, s41, {128*16//WPL}
    s_add_u32 s41, s41, {WS_HINT}
    s_add_u32 s76, s38, s41
    s_addc_u32 s77, s39, 0
    s_mul_i32 s90, s90, 0x01010101
    s_mov_b32 s91, s90
    s_movk_i32 s53, {0 if opt["xp"] & 8 else 200}
    s_mov_b32 s51, {SPIN}
    v_mov_b32 v20, {L_CNT3}
    v_mov_b32 v21, 1
    {"s_sleep 30" if opt["xp"] & 2 else ""}
    s_cmp_eq_u32 s49, 4
    s_cbranch_scc0 L_R_full
    s_mov_b32 exec_hi, 0
    """)
    collect(4 if opt["hb"] else 2, 4, lambda: a("buffer_load_dwordx4 v[48:51], v14, s[12:15], s46 offen sc1"))
    a("""
    s_mov_b32 exec_hi, -1
    s_branch L_R_put
    L_R_full:
    """)
    collect(16 if opt["hb"] else 8, 8, lambda: a("buffer_load_dwordx4 v[48:51], v14, s[12:15], s46 offen sc1\nbuffer_load_dwordx4 v[52:55], v14, s[12:15], s46 offen offset:1024 sc1"))
    add4(48, 48, 52)
    a("L_R_put:")
    a(f"""
    v_permlane32_swap_b32 v48, v50
    v_permlane32_swap_b32 v49, v51
    v_pk_add_f32 v[48:49], v[48:49], v[50:51]
    v_permlane16_swap_b32 v48, v49
    v_add_f32 v48, v48, v49
    v_add_f32_dpp v48, v48, v48 row_ror:8 {DPPF}
    ds_write_b32 v15, v48 offset:{L_T3}
    """)
    last_arriver(2, "L_wave_end", [f"ds_read2st64_b32 v[26:27], v19 offset0:{L_T3//256+2} offset1:{L_T3//256+3}",
                                   f"ds_read_b32 v28, v19 offset:{L_T3+1024}",
                                   f"ds_read2st64_b32 v[24:25], v19 offset0:{L_T3//256} offset1:{L_T3//256+1}"], r0=20)
    stamp(5)
    a(f"""
    s_mov_b32 exec_lo, 0x00ff00ff
    s_mov_b32 exec_hi, 0x00ff00ff
    s_waitcnt lgkmcnt(1)
    v_add_f32 v26, v26, v27
    v_add_f32 v26, v26, v28
    s_waitcnt lgkmcnt(0)
    v_add_f32 v24, v24, v25
    v_cvt_pk_bf16_f32 v24, v24, v26
    v_and_b32 v26, 0xffff0000, v24
    v_mul_f32 v27, s43, v26
    v_exp_f32 v27, v27
    v_lshlrev_b32 v24, 16, v24
    v_add_f32 v27, 1.0, v27
    v_rcp_f32 v27, v27
    v_mul_f32 v26, v26, v27
    v_cvt_pk_bf16_f32 v26, v26, v26
    v_and_b32 v26, 0xffff0000, v26
    v_mul_f32 v26, v26, v24
    v_cvt_pk_bf16_f32 v26, v26, v26
    v_and_b32 v26, 0xffff0000, v26
    v_add_f32 v26, v26, v22
    v_cvt_pk_bf16_f32 v26, v26, v26
    global_store_short v12, v26, s[34:35]
    s_cmp_lg_u32 s89, 0
    s_cbranch_scc1 L_R_done
    s_mov_b64 exec, 1
    v_mov_b32 v18, {L_E1}
    ds_read_b32 v19, v18
    v_mov_b32 v18, {WS_EPOCH}
    s_waitcnt lgkmcnt(0)
    buffer_store_dword v19, v18, s[12:15], 0 offen
    L_R_done:
    """)
    stamp(6)
    finish_wave()

    a("L_abort:")
    if stamps:
        a("s_mov_b32 s74, -1")
        a(f"""
        L_dump:
        s_mov_b64 exec, -1
        s_waitcnt lgkmcnt(0)
        s_lshl_b32 s41, s2, 4
        s_add_u32 s41, s41, s3
        s_add_u32 s41, s41, 1
        s_lshl_b32 s41, s41, 5
        s_add_u32 s41, s41, {WS_STAMP}
        v_mov_b32 v9, s41
        """)
        for i in range(8): a(f"v_mov_b32 v{i}, s{60+2*i}")
        a("""
        s_mov_b64 exec, 1
        buffer_store_dwordx4 v[0:3], v9, s[12:15], 0 offen
        buffer_store_dwordx4 v[4:7], v9, s[12:15], 0 offen offset:16
        """)
    a("s_endpgm")
    body = a.finish()
    init = "\n".join(f"    s_mov_b32 s{60+2*i}, 0" for i in range(1, 8)) + "\n" if stamps else ""
    hdr = open("cdna_kernels/" + NAME + ".s.ref").read().split("; Override launch")[0]
    return f"""{hdr}; @launch grid=(256,1,1) block=({NW*64},1,1) lds={LDS_BYTES}
.amdgcn_target "amdgcn-amd-amdhsa--gfx950"
.text
.globl {NAME}_kernel
.p2align 12
.p2align 8
.type {NAME}_kernel,@function
{NAME}_kernel:
{init}{body}
KERNEL_END:
.section .rodata,"a"
.p2align 6
.amdhsa_kernel {NAME}_kernel
  .amdhsa_next_free_vgpr 128
  .amdhsa_next_free_sgpr 100
  .amdhsa_accum_offset 128
  .amdhsa_group_segment_fixed_size 0
  .amdhsa_kernarg_size 96
  .amdhsa_user_sgpr_count 2
  .amdhsa_user_sgpr_kernarg_segment_ptr 1
  .amdhsa_system_sgpr_workgroup_id_x 1
.end_amdhsa_kernel
"""

THREE = sum(1 << s for s in range(9) if (16 * s + 15) // 9 - (16 * s) // 9 == 2)

def emit(name, stamps, opt):
    import hb, subprocess
    open(name + ".s", "w").write(gen(stamps, opt)); hb.build(name + ".s")
    r = subprocess.run([sys.executable, "../cdna_kernels/cdna_unwritten_srd_check.py", name + ".co", "--entry", NAME + "_kernel"], capture_output=True, text=True)
    if ": ok:" not in r.stdout: print(r.stdout[-2500:])

if __name__ == "__main__":
    emit("k26", False, {}); emit("ks26", True, {})
    print("built", hex(THREE))
```

```python
import sys, struct
from asmlib import Asm

NAME = "recurrent_scan__sliding_block_cached__geglu_ffn__decode"
NW = 14
WS_EPOCH = 0
WS_QP = 0x1000
WS_ST = WS_QP + 128 * 1024
WS_GUP = WS_ST + 128 * 128
WS_OP = WS_GUP + 216 * 1024
LOC = 488 * 1024
WS_FP = WS_QP + 2 * LOC
FPS = 72 * 128
WS_HINT = WS_FP + 36 * FPS
WS_STAMP = 8 << 20
L_XNP = 0
L_VAL = 4608
L_STM, L_STL = 5632, 5664
L_TAG, L_QFLAG, L_CNT0, L_CNT1, L_CNT2, L_CNT3, L_DONE, L_QGO = 5760, 5764, 5768, 5772, 5776, 5780, 5784, 5788
L_KRDY, L_VISS, L_CGO, L_TK, L_E1, L_CNT4, L_FLUSH = 5792, 5808, 5812, 5816, 5820, 5824, 5828
L_QL = 7168
L_OT = 8192
L_T3 = 12288
L_BIG = 20480
L_GT = L_BIG + 9216
LDS_BYTES = 86016
SPIN = 1000000
MF = "v_mfma_f32_16x16x32_bf16"
SM = "v_smfmac_f32_16x16x64_bf16"
DPPF = "row_mask:0xf bank_mask:0xf"

def f32bits(x): return struct.unpack("<I", struct.pack("<f", x))[0]
def vr(r, n=4): return f"v[{r}:{r+n-1}]"

DEF = dict(wa0=4, wa=8, wg=2, wg2=3, gburst=9, wl=6, wlg=6, vd=3, gd=0, qgo=6, qsets=2, qstag=12, lmask=7,
           warm=1, dyn=0, cda=12, cdg=5, fast4=1, perm=1, order=1, fake=0, hp=-1, hb=0, wpl=4, unev=0, cut=0, nog=0, dfr=1, kf=7, fd=1, stl=0, xp=0, pst=1, fw=0, hs=1, hst=4)

def gen(stamps=False, opt=None):
    o_ = dict(DEF); o_.update(opt or {}); opt = o_
    a = Asm()
    DYN = opt["dyn"]
    WPL = opt["wpl"]; NLN = 5 * 16 // WPL
    def stamp(i):
        if stamps: a(f"s_memrealtime s[{60+2*i}:{61+2*i}]")
    def finish_wave():
        if stamps:
            stamp(7); a("s_branch L_dump")
        else:
            a("s_endpgm")
    def spin(reads, check, sleep=1, preloaded=False):
        L = a.label("spin"); D = a.label("spun"); C = a.label("chk")
        a(f"s_mov_b32 s51, {SPIN}")
        if preloaded: a(f"s_branch {C}")
        a(f"{L}:")
        a(reads)
        if preloaded: a(f"{C}:")
        a("s_waitcnt lgkmcnt(0)")
        a(check)
        a(f"s_cbranch_vccz {D}")
        a("s_sub_u32 s51, s51, 1")
        a("s_cbranch_scc1 L_abort")
        if sleep: a(f"s_sleep {sleep}")
        a(f"s_branch {L}")
        a(f"{D}:")
    def chain(op3, op2, regs, tmp):
        out = []; rs = list(regs); cur = rs.pop(0)
        while rs:
            if len(rs) >= 2:
                out.append(f"{op3} v{tmp}, v{cur}, v{rs[0]}, v{rs[1]}"); rs = rs[2:]
            else:
                out.append(f"{op2} v{tmp}, v{cur}, v{rs[0]}"); rs = rs[1:]
            cur = tmp
        return out, cur
    def maxchain(regs):
        out, cur = chain("v_max3_u32", "v_max_u32", regs, 9)
        return "\n".join(out + [f"v_cmp_eq_u32 vcc, -2, v{cur}"])
    def untag(dst, src, n):
        for r in range(n): a(f"v_xor_b32 v{dst+r}, v{src+r}, v8")
        out, cur = chain("v_or3_b32", "v_or_b32", range(dst, dst + n), 9)
        a("\n".join(out + [f"v_and_b32 v9, 0xff, v{cur}", "v_cmp_ne_u32 vcc, 0, v9"]))
    def poll(nsets, n, canon, raw0, issue, nloads, stag=1):
        L = a.label("poll"); D = a.label("polled")
        a(f"s_mov_b32 s51, {SPIN}")
        for k in range(nsets):
            issue(raw0 + k * n)
            if k < nsets - 1: a(f"s_sleep {stag}")
        a(f"{L}:")
        for k in range(nsets):
            a(f"s_waitcnt vmcnt({(nsets-1)*nloads})")
            untag(canon, raw0 + k * n, n)
            a(f"s_cbranch_vccz {D}")
            issue(raw0 + k * n)
        a("s_sub_u32 s51, s51, 1")
        a("s_cbranch_scc1 L_abort")
        a(f"s_branch {L}")
        a(f"{D}:")
    def poll1(n, reg, issue):
        L = a.label("again"); F = a.label("first")
        a(f"""
        s_branch {F}
        {L}:
        s_sub_u32 s51, s51, 1
        s_cbranch_scc1 L_abort
        {F}:
        """)
        issue(reg)
        a("s_waitcnt vmcnt(0)")
        untag(reg, reg, n)
        a(f"s_cbranch_vccnz {L}")
    def sel_masks():
        a("""
        v_and_b32 v9, 1, v1
        v_lshlrev_b32 v9, 4, v9
        v_mov_b32 v10, 0xffff
        v_lshlrev_b32 v10, v9, v10
        v_bfe_u32 v9, v1, 1, 2
        v_cmp_eq_u32 s[76:77], 0, v9
        v_cmp_eq_u32 s[78:79], 1, v9
        v_cmp_eq_u32 s[80:81], 2, v9
        v_cmp_eq_u32 s[82:83], 3, v9
        v_cndmask_b32 v4, 0, v10, s[76:77]
        v_cndmask_b32 v5, 0, v10, s[78:79]
        v_cndmask_b32 v6, 0, v10, s[80:81]
        v_cndmask_b32 v7, 0, v10, s[82:83]
        """)
    def get_tag():
        a(f"v_mov_b32 v9, {L_TAG}")
        spin("ds_read_b32 v8, v9", "v_cmp_eq_u32 vcc, -2, v8")
    def wait_flag(addr, sleep=1):
        a(f"v_mov_b32 v9, {addr}")
        spin("ds_read_b32 v10, v9", "v_cmp_eq_u32 vcc, -2, v10", sleep=sleep)
    def wait_value(addr, val, sleep=1):
        a(f"v_mov_b32 v9, {addr}")
        spin("ds_read_b32 v10, v9", f"v_cmp_ne_u32 vcc, {val}, v10", sleep=sleep)
    def lane0(op, addr, val):
        a(f"""
        v_mov_b32 v9, {addr}
        v_mov_b32 v10, {val}
        s_mov_b64 exec, 1
        {op} v9, v10
        s_mov_b64 exec, -1
        """)
    def set_flag(addr, val=0): lane0("ds_write_b32", addr, val)
    def bump(addr): lane0("ds_add_u32", addr, 1)
    def build_op(dst, val):
        for t in range(4): a(f"v_and_b32 v{dst+t}, v{val}, v{4+t}")
    def tag4(r):
        for t in range(4): a(f"v_and_or_b32 v{r+t}, v{r+t}, s50, v8")
    def add4(d, x, y):
        a(f"v_pk_add_f32 {vr(d,2)}, {vr(x,2)}, {vr(y,2)}")
        a(f"v_pk_add_f32 {vr(d+2,2)}, {vr(x+2,2)}, {vr(y+2,2)}")
    def wave_reduce(op, regs):
        for mode in ("quad_perm:[1,0,3,2] row_mask:0xf", "quad_perm:[2,3,0,1] row_mask:0xf", "row_half_mirror row_mask:0xf",
                     "row_mirror row_mask:0xf", "row_bcast:15 row_mask:0xa", "row_bcast:31 row_mask:0xc"):
            for r in regs: a(f"{op}_dpp v{r}, v{r}, v{r} {mode} bank_mask:0xf")
    def la_prep(cnt):
        a(f"v_mov_b32 v9, {cnt}")
        a("v_mov_b32 v10, 1")
    def last_arriver(expect, skip, reads, r0=9):
        a(f"""
        s_mov_b64 exec, 1
        ds_add_rtn_u32 v11, v{r0}, v{r0+1}
        s_mov_b64 exec, -1
        """)
        for r in reads: a(r)
        a(f"""
        s_waitcnt lgkmcnt({len(reads)})
        v_readfirstlane_b32 s84, v11
        s_cmp_eq_u32 s84, {expect}
        s_cbranch_scc0 {skip}
        """)
    def lin_addr(r):
        a(f"""
        v_and_b32 v{r}, 33, v1
        v_mul_u32_u24 v{r}, 0x110, v{r}
        v_and_b32 v{r}, 0x300, v{r}
        v_bfe_u32 v9, v1, 1, 4
        v_lshl_add_u32 v{r}, v9, 4, v{r}
        """)
    def done_target_g(dst):
        a(f"""
        s_mul_i32 s41, s6, 9
        s_add_u32 s42, s41, 8
        s_lshr_b32 s41, s41, 4
        s_lshr_b32 s42, s42, 4
        s_sub_u32 {dst}, s42, s41
        s_sub_u32 {dst}, {dst}, 1
        """)
    def q_head(dst):
        if not opt["perm"]: return f"s_lshr_b32 {dst}, s7, 2"
        return f"""
        s_and_b32 {dst}, s6, 12
        s_lshr_b32 {dst}, 0x1320, {dst}
        s_and_b32 {dst}, {dst}, 3
        s_lshl2_add_u32 {dst}, s4, {dst}
        """
    def get_slot():
        if not DYN:
            a("s_mov_b32 s97, s6"); return
        wait_flag(L_TK, sleep=2)
        a("v_readfirstlane_b32 s97, v10")

    def defer(skip="L_wave_end"):
        if opt["dfr"]:
            a("s_setprio 0")
            if opt["xp"] & 1: a("s_branch " + skip); return
            wait_flag(L_FLUSH, sleep=4)
    WQ, WU, W3, OPR, V0, D0, D1, D2 = 16, 32, 68, 104, 116, 12, 48, 52
    AXQ, AXU, AXU2, ALN, AW, AW2 = 112, 113, 114, 115, 125, 126

    stamp(0)
    a(f"""
    s_cmp_ge_u32 s2, 256
    s_cbranch_scc1 L_exit
    s_load_dwordx16 s[16:31], s[0:1], 0
    s_load_dwordx8 s[32:39], s[0:1], 64
    s_load_dwordx2 s[12:13], s[0:1], 88
    s_getpc_b64 s[40:41]
    L_pc:
    v_lshlrev_b32 v9, 4, v0
    v_min_u32 v9, KERNEL_END-L_pc-4, v9
    global_load_dword v67, v9, s[40:41]
    v_lshrrev_b32 v2, 6, v0
    v_and_b32 v1, 63, v0
    v_readfirstlane_b32 s3, v2
    v_lshlrev_b32 v9, 3, v0
    v_mov_b32 v4, -2
    v_mov_b32 v5, -2
    ds_write_b64 v9, v[4:5]
    s_and_b32 s4, s2, 7
    s_lshr_b32 s6, s2, 4
    s_bfe_u32 s5, s2, 0x10003
    s_lshl_b32 s7, s4, 4
    s_add_u32 s7, s7, s6
    v_and_b32 v2, 15, v1
    v_lshrrev_b32 v3, 4, v1
    s_mov_b32 s50, 0xffffff00
    s_mov_b32 s11, 0x20000
    s_mov_b32 s14, 0x1000000
    s_mov_b32 s15, 0x20000
    s_sub_u32 s3, s3, 1
    s_cbranch_scc0 L_notM
    s_setprio 3
    v_lshrrev_b32 v11, 5, v1
    v_mul_u32_u24 v11, 1152, v11
    v_and_b32 v12, 31, v1
    v_mul_u32_u24 v12, 36, v12
    v_add_u32 v11, v11, v12
    s_cmp_eq_u32 s5, 0
    s_waitcnt lgkmcnt(0)
    s_cbranch_scc1 L_M_nox
    global_load_dwordx4 v[108:111], v11, s[16:17]
    global_load_dwordx4 v[112:115], v11, s[16:17] offset:16
    global_load_dword v116, v11, s[16:17] offset:32
    L_M_nox:
    s_load_dword s52, s[38:39], {WS_EPOCH}
    s_barrier
    s_branch L_M2
    L_notM:
    s_cmp_ge_u32 s3, 9
    s_cbranch_scc1 L_S
    s_cmp_eq_u32 s5, 1
    s_cbranch_scc1 L_X
    s_cmp_ge_u32 s3, 4
    s_cbranch_scc1 L_S
    s_bfe_u32 s40, s6, 0x10002
    s_lshl_b32 s40, s40, 4
    s_lshr_b32 s41, s7, 3
    s_add_u32 s40, s40, s41
    s_lshl_b32 s40, s40, 20
    s_and_b32 s41, s6, 3
    s_lshl_b32 s41, s41, 16
    s_add_u32 s40, s40, s41
    s_lshl_b32 s41, s3, 14
    s_add_u32 s40, s40, s41
    s_add_u32 s40, s40, {3072*256}
    s_mov_b32 s42, s40
    s_add_u32 s41, s41, {L_BIG}
    s_mov_b32 m0, s41
    v_lshlrev_b32 v9, 8, v3
    """)
    for q in range(4):
        a(f"v_add_u32 v{16+q}, {4*q}, v3")
        a(f"v_xor_b32 v{16+q}, v{16+q}, v2")
        a(f"v_lshl_add_u32 v{16+q}, v{16+q}, 4, v9")
    a("""
    s_mov_b32 s10, 33554432
    s_waitcnt lgkmcnt(0)
    s_mov_b32 s8, s18
    s_mov_b32 s9, s19
    """)
    stamp(1)
    def l_issue(i):
        if i < 16:
            if i and i % 4 == 0:
                a("s_add_u32 s41, s41, 4096"); a("s_mov_b32 m0, s41"); a("s_add_u32 s40, s40, 4096")
            a(f"buffer_load_dwordx4 v{16+i%4}, s[8:11], s40 offen offset:{(i%4)*1024} nt lds")
        else:
            k = i - 16
            if k == 0:
                a("s_mov_b32 s8, s20"); a("s_mov_b32 s9, s21")
            if k and k % 4 == 0: a("s_add_u32 s42, s42, 4096")
            a(f"buffer_load_dwordx4 {vr(64+4*k)}, v20, s[8:11], s42 offen offset:{(k%4)*256} nt")
    WA0, WA = opt["wa0"], opt["wa"]
    for i in range(WA0): l_issue(i)
    a("""
    s_barrier
    s_branch L_L
    L_X:
    s_and_b32 s40, s6, 3
    s_mul_i32 s40, s40, 144
    s_lshl_b32 s41, s3, 4
    s_add_u32 s47, s40, s41
    s_lshl_b32 s40, s47, 13
    """ + q_head("s41") + """
    s_lshl_b32 s41, s41, 8
    s_add_u32 s40, s40, s41
    v_lshlrev_b32 v11, 15, v3
    v_lshl_add_u32 v11, v2, 4, v11
    s_mov_b32 s10, 4718592
    s_movk_i32 s42, 0x2000
    s_waitcnt lgkmcnt(0)
    s_mov_b32 s8, s22
    s_mov_b32 s9, s23
    """)
    stamp(1)
    if opt["fake"] & 2:
        a("""
        s_mul_i32 s40, s7, 9
        s_add_u32 s40, s40, s3
        s_lshl_b32 s40, s40, 12
        s_movk_i32 s42, 1024
        v_lshlrev_b32 v11, 4, v1
        """)
    for i in range(4):
        a(f"buffer_load_dwordx4 {vr(WQ+4*i)}, v11, s[8:11], s40 offen nt")
        if i < 3: a("s_add_u32 s40, s40, s42")
    a("""
    s_barrier
    s_branch L_X2
    L_S:
    s_cmp_eq_u32 s5, 0
    s_cbranch_scc1 L_S_bar
    v_lshlrev_b32 v9, 4, v0
    v_mov_b32 v4, 0
    v_mov_b32 v5, 0
    v_mov_b32 v6, 0
    v_mov_b32 v7, 0
    """ + "\n".join(f"ds_write_b128 v9, v[4:7] offset:{L_GT-10240+4096*t}" for t in range(5)) + """
    L_S_bar:
    s_waitcnt lgkmcnt(0)
    s_barrier
    s_cmp_lt_u32 s3, 8
    s_cbranch_scc1 L_S2
    s_cmp_ge_u32 s3, 9
    s_cbranch_scc1 L_D
    L_exit:
    s_endpgm
    """)

    a(f"""
    L_L:
    s_setprio 3
    v_lshlrev_b32 v20, 10, v3
    v_lshl_add_u32 v20, v2, 4, v20
    s_lshl_b32 s44, s3, 2
    s_add_u32 s44, s44, {L_KRDY}
    """)
    sel_masks()
    landed = 0
    for n in range(WA0, 32):
        w = min(WA, WA0 + (n - WA0 + 1) // 2)
        prev = landed
        if n - landed >= w:
            a(f"s_waitcnt vmcnt({w-1})")
            landed = n - w + 1
        U = opt["unev"]
        if U and (n % 16) >= 16 - U:
            Lu = a.label("u")
            a("s_cmp_lt_u32 s6, 12")
            a(f"s_cbranch_scc1 {Lu}")
            for e in range(3):
                a(f"s_sub_u32 s48, s42, {262144 * (1 + e % 2) + 1024 * (n % 16) + 16384 * 4 * 0 + (e // 2) * 2048}")
                a(f"buffer_load_dwordx4 v[24:27], v20, s[8:11], s48 offen nt")
                a(f"s_waitcnt vmcnt({w-1})")
            l_issue(n)
            a(f"{Lu}:")
        else:
            l_issue(n)
        if prev < opt["qgo"] <= landed: set_flag(L_QGO)
        if prev < 16 <= landed: set_flag("s44")
        if DYN and n == 31 - opt["cda"]: bump(L_CGO)
        if n == 31 - opt["vd"]: bump(L_VISS)
    assert landed >= 16
    stamp(3)
    get_tag()
    a(f"""
    v_bfe_u32 v11, v1, 3, 1
    v_lshlrev_b32 v11, 10, v11
    v_lshl_add_u32 v11, v3, 4, v11
    s_lshl_b32 s41, s3, 8
    v_add_u32 v11, s41, v11
    s_lshl_b32 s45, s7, 10
    s_add_u32 s45, s45, {WS_OP}
    s_add_u32 s46, s45, {LOC}
    """)
    spin("\n".join(f"ds_read_b128 {vr(16+4*b)}, v11 offset:{L_XNP+64*b}" for b in range(4)), maxchain(range(16, 32)))
    stamp(4)
    for i in range(2): build_op(32 + 4 * i, 16 + i)
    nb = 2
    for i in range(16):
        a(f"s_waitcnt vmcnt({15-i})")
        a(f"{MF} v[12:15], {vr(32+4*(i%8))}, {vr(64+4*i)}, {'0' if i == 0 else 'v[12:15]'}")
        for _ in range(1 if i < 6 else 2):
            if nb < 16: build_op(32 + 4 * (nb % 8), 16 + nb); nb += 1
        if i == 11:
            a("""
            s_lshl_b32 s41, s3, 10
            v_lshlrev_b32 v17, 4, v1
            v_add_u32 v18, s41, v17
            """)
            lin_addr(19)
            if opt["stl"]:
                a("v_lshrrev_b32 v16, 5, v1")
                a("v_lshlrev_b32 v16, 4, v16")
                spin(f"ds_read_b128 v[20:23], v16 offset:{L_STM}\nds_read_b128 v[24:27], v16 offset:{L_STL}", maxchain(range(24, 28)), sleep=0)
                a(f"""
                v_max3_f32 v20, v20, v21, v22
                v_add_f32 v24, v24, v25
                v_add_f32 v26, v26, v27
                v_max_f32 v20, v20, v23
                v_add_f32 v24, v24, v26
                v_lshlrev_b32 v16, 2, v16
                v_lshl_add_u32 v16, v2, 4, v16
                v_and_or_b32 v28, v20, s50, v8
                v_lshl_or_b32 v29, v20, 8, v8
                v_and_or_b32 v30, v24, s50, v8
                v_mov_b32 v31, v8
                s_lshl_b32 s47, s7, 7
                s_add_u32 s47, s47, {WS_ST}
                s_add_u32 s48, s47, {LOC}
                """)
            la_prep(L_CNT0)
    stamp(5)
    a(f"ds_write_b128 v18, v[12:15] offset:{L_OT}")
    last_arriver(1, "L_wave_end", [f"ds_read_b128 {vr(32+4*t)}, v19 offset:{L_OT+1024*t}" for t in range(4)])
    def st_store(so, fl):
        if opt["stl"]:
            a(f"""
            s_mov_b32 exec_lo, 15
            s_mov_b32 exec_hi, 15
            buffer_store_dwordx4 v[28:31], v16, s[12:15], {so} offen {fl}
            s_mov_b64 exec, -1
            """)
    st_store("s48", "")
    a("s_waitcnt lgkmcnt(2)")
    add4(32, 32, 36)
    a("s_waitcnt lgkmcnt(0)")
    add4(40, 40, 44); add4(32, 32, 40)
    tag4(32)
    a("buffer_store_dwordx4 v[32:35], v17, s[12:15], s46 offen")
    set_flag(L_DONE)
    stamp(6)
    defer()
    st_store("s47", "sc1")
    a("buffer_store_dwordx4 v[32:35], v17, s[12:15], s45 offen sc1")
    finish_wave()

    a(f"""
    L_S2:
    s_sub_u32 s49, s3, 4
    s_lshl_b32 s41, s49, 14
    s_add_u32 s41, s41, {L_BIG}
    v_lshl_add_u32 v11, v2, 8, s41
    """)
    for st in range(4):
        a(f"v_or_b32 v{12+st}, {4*st}, v3")
        a(f"v_xor_b32 v{12+st}, v{12+st}, v2")
        a(f"v_lshl_add_u32 v{12+st}, v{12+st}, 4, v11")
    a(f"""
    v_cmp_eq_u32 s[54:55], 1, v3
    v_cmp_eq_u32 s[56:57], 2, v3
    v_cmp_eq_u32 s[58:59], 3, v3
    s_lshl_b32 s53, s49, 2
    s_add_u32 s47, s53, {L_KRDY}
    v_mov_b32 v4, s53
    v_mov_b32 v5, 0
    s_lshl_b32 s48, s49, 8
    v_lshl_add_u32 v6, v1, 2, s48
    """)
    get_tag()
    wait_flag("s47", sleep=2)
    stamp(4)
    a("s_waitcnt vmcnt(0)")
    for t in range(4):
        for st in range(4):
            a(f"ds_read_b128 {vr(64+16*t+4*st)}, v{12+st} offset:{t*4096}")
    a("""
    v_and_b32 v11, 1, v1
    v_lshlrev_b32 v11, 8, v11
    v_lshl_add_u32 v11, v3, 4, v11
    """)
    wait_flag(L_QFLAG)
    stamp(2)
    for st in range(4): a(f"ds_read_b128 {vr(16+4*st)}, v11 offset:{L_QL+64*st}")
    for st in range(4):
        a(f"s_waitcnt lgkmcnt({3-st})")
        for t in range(4):
            a(f"{MF} {vr(32+4*t)}, {vr(16+4*st)}, {vr(64+16*t+4*st)}, {'0' if st == 0 else vr(32+4*t)}")
    a(f"""
    s_mov_b32 s48, {f32bits(128**-0.5 * 1.4426950408889634)}
    v_cndmask_b32 v32, v32, v36, s[54:55]
    v_cndmask_b32 v33, v33, v37, s[54:55]
    v_cndmask_b32 v32, v32, v40, s[56:57]
    v_cndmask_b32 v33, v33, v41, s[56:57]
    v_cndmask_b32 v32, v32, v44, s[58:59]
    v_cndmask_b32 v33, v33, v45, s[58:59]
    v_mul_f32 v32, s48, v32
    v_mul_f32 v33, s48, v33
    v_mov_b32 v34, v32
    v_mov_b32 v35, v33
    """)
    wave_reduce("v_max_f32", (34, 35))
    a(f"""
    s_mov_b32 exec_lo, 0
    s_mov_b32 exec_hi, 0x80000000
    ds_write_b32 v4, v34 offset:{L_STM}
    ds_write_b32 v4, v35 offset:{L_STM+16}
    s_mov_b64 exec, -1
    """)
    spin(f"ds_read_b128 v[36:39], v5 offset:{L_STM}\nds_read_b128 v[40:43], v5 offset:{L_STM+16}", maxchain(range(36, 44)), sleep=0)
    a(f"""
    v_max3_f32 v36, v36, v37, v38
    v_max3_f32 v40, v40, v41, v42
    v_max_f32 v36, v36, v39
    v_max_f32 v40, v40, v43
    v_sub_f32 v32, v32, v36
    v_sub_f32 v33, v33, v40
    v_exp_f32 v32, v32
    v_exp_f32 v33, v33
    v_cvt_pk_bf16_f32 v32, v32, v32
    v_cvt_pk_bf16_f32 v33, v33, v33
    ds_write_b32 v6, v32 offset:{L_XNP}
    ds_write_b32 v6, v33 offset:{L_XNP+1024}
    v_and_b32 v34, 0xffff0000, v32
    v_and_b32 v35, 0xffff0000, v33
    """)
    stamp(3)
    wave_reduce("v_add_f32", (34, 35))
    if opt["stl"]:
        a(f"""
        s_mov_b32 exec_lo, 0
        s_mov_b32 exec_hi, 0x80000000
        ds_write_b32 v4, v34 offset:{L_STL}
        ds_write_b32 v4, v35 offset:{L_STL+16}
        """)
        finish_wave()
    else:
        la_prep(L_CNT1)
        a(f"""
        v_lshrrev_b32 v5, 5, v1
        v_lshlrev_b32 v5, 4, v5
        s_mov_b32 exec_lo, 0
        s_mov_b32 exec_hi, 0x80000000
        ds_write_b32 v4, v34 offset:{L_STL}
        ds_write_b32 v4, v35 offset:{L_STL+16}
        """)
        last_arriver(1, "L_wave_end", [f"ds_read_b128 v[44:47], v5 offset:{L_STL}"])
        a(f"""
        v_cmp_lt_u32 vcc, 31, v1
        v_lshlrev_b32 v5, 2, v5
        v_lshl_add_u32 v5, v2, 4, v5
        v_cndmask_b32 v36, v36, v40, vcc
        s_lshl_b32 s45, s7, 7
        s_add_u32 s45, s45, {WS_ST}
        s_add_u32 s46, s45, {LOC}
        s_waitcnt lgkmcnt(0)
        v_add_f32 v44, v44, v45
        v_add_f32 v46, v46, v47
        v_add_f32 v44, v44, v46
        v_and_or_b32 v28, v36, s50, v8
        v_lshl_or_b32 v29, v36, 8, v8
        v_and_or_b32 v30, v44, s50, v8
        v_mov_b32 v31, v8
        s_mov_b32 exec_lo, 15
        s_mov_b32 exec_hi, 15
        buffer_store_dwordx4 v[28:31], v5, s[12:15], s46 offen
        """)
        stamp(5)
        defer()
        a("buffer_store_dwordx4 v[28:31], v5, s[12:15], s45 offen sc1")
        finish_wave()

    a(f"""
    L_X2:
    s_setprio 3
    s_mul_i32 s57, s6, 9
    s_add_u32 s46, s57, s3
    s_lshr_b32 s52, s46, 4
    s_and_b32 s48, s46, 15
    s_mul_i32 s48, s48, 36
    s_and_b32 s43, s4, 1
    s_mul_i32 s41, s43, 5
    s_lshr_b32 s44, s52, 1
    s_add_u32 s41, s41, s44
    s_and_b32 s44, s52, 1
    s_cmp_eq_u32 s52, 8
    s_cselect_b32 s41, 4, s41
    s_cselect_b32 s43, s43, s44
    s_lshr_b32 s44, s4, 1
    s_mul_i32 s44, s44, 9
    s_add_u32 s41, s41, s44
    s_mul_i32 s44, s43, 36
    s_add_u32 s44, s44, s41
    s_cmp_eq_u32 s43, 1
    s_cselect_b32 s8, s30, s28
    s_cselect_b32 s9, s31, s29
    s_lshl_b32 s41, s41, 8
    s_mul_i32 s40, s48, 9216
    s_add_u32 s40, s40, s41
    s_mov_b32 s10, {576*9216}
    s_movk_i32 s42, 9216
    v_mul_u32_u24 v{AW2}, 9216, v3
    v_lshlrev_b32 v{AW}, 2, v{AW2}
    v_lshl_add_u32 v{AW}, v2, 4, v{AW}
    v_lshl_add_u32 v{AW2}, v2, 4, v{AW2}
    """)
    if opt["fake"] & 1:
        a(f"""
        s_lshr_b32 s41, s41, 4
        s_and_b32 s40, s46, 15
        s_add_u32 s40, s40, s41
        s_mul_i32 s40, s40, 9216
        s_movk_i32 s42, 1024
        v_lshlrev_b32 v{AW}, 4, v1
        v_lshlrev_b32 v{AW2}, 4, v1
        """)
    def g_issue(k):
        if opt["fake"] & 1:
            if k: a("s_add_u32 s40, s40, s42")
            a(f"buffer_load_dwordx4 {vr(WU+4*k)}, v{AW}, s[8:11], s40 offen nt")
            return
        if k: a(f"s_add_u32 s40, s40, {13*9216 if k % 4 == 0 else 's42'}")
        a(f"buffer_load_dwordx4 {vr(WU+4*k)}, v{AW if k < 8 else AW2}, s[8:11], s40 offen nt")
    sel_masks()
    a(f"""
    v_bfe_u32 v{AXQ}, v1, 3, 1
    v_mul_u32_u24 v{AXQ}, 2304, v{AXQ}
    s_lshl_b32 s41, s48, 2
    v_add_u32 v{AXU}, s41, v{AXQ}
    v_lshl_add_u32 v{AXU2}, v3, 2, v{AXU}
    v_add_u32 v{AXU2}, 128, v{AXU2}
    v_lshl_add_u32 v{AXU}, v3, 4, v{AXU}
    s_lshl_b32 s41, s47, 2
    v_add_u32 v{AXQ}, s41, v{AXQ}
    v_lshl_add_u32 v{AXQ}, v3, 4, v{AXQ}
    v_lshlrev_b32 v{ALN}, 4, v1
    s_lshl_b32 s53, s52, 4
    s_sub_i32 s54, s53, s57
    s_add_i32 s55, s54, 16
    s_max_i32 s54, s54, 0
    s_min_i32 s55, s55, 9
    s_sub_u32 s90, s3, s54
    s_lshl_b32 s90, s90, 10
    s_sub_i32 s54, s55, s54
    s_sub_i32 s54, s54, 3
    s_mul_i32 s59, s53, 7282
    s_lshr_b32 s59, s59, 16
    s_sub_u32 s59, s6, s59
    s_mul_i32 s56, s44, 3
    s_add_u32 s56, s56, s59
    s_lshl_b32 s56, s56, 10
    s_add_u32 s56, s56, {WS_GUP}
    s_add_u32 s59, s56, {LOC}
    s_lshr_b32 s57, s57, 4
    s_sub_u32 s55, s52, s57
    s_mul_i32 s53, s55, 9216
    s_add_u32 s90, s90, s53
    s_lshl_b32 s55, s55, 2
    s_add_u32 s55, s55, {L_CNT0}
    s_lshl_b32 s58, s3, 10
    """)
    def tile_reads(base, tmp, addr):
        return [f"ds_read_b128 {vr(tmp+4*t)}, v{addr} offset:{base+1024*t}" for t in range(9)]
    gu_vals = f"ds_read_b128 {vr(V0)}, v{AXU}\nds_read_b128 {vr(V0+4)}, v{AXU} offset:64\nds_read_b32 v{V0+8}, v{AXU2}"
    def q_block():
        spin(f"ds_read_b128 {vr(V0)}, v{AXQ}", maxchain(range(V0, V0 + 4)))
        a(f"v_mov_b32 v10, {L_TAG}")
        a("ds_read_b32 v8, v10")
        stamp(2)
        for i in range(2): build_op(OPR + 4 * i, V0 + i)
        for i in range(4):
            a(f"{MF} {vr(D0)}, {vr(OPR+4*(i%2))}, {vr(WQ+4*i)}, {'0' if i == 0 else vr(D0)}")
            if i < 2: build_op(OPR + 4 * i, V0 + 2 + i)
        a(gu_vals)
        a(f"v_add_u32 v11, s58, v{ALN}")
        a(f"ds_write_b128 v11, {vr(D0)} offset:{L_BIG}")
        bump(L_CNT2)
        stamp(3)
        spin(gu_vals, maxchain(range(V0, V0 + 9)), preloaded=True)
    def g_mfma(k, wait=None):
        build_op(OPR + 4 * (k % 2), V0 + k)
        if wait is not None: a(f"s_waitcnt vmcnt({wait})")
        a(f"{MF} {vr(D0)}, {vr(OPR+4*(k%2))}, {vr(WU+4*k)}, {'0' if k == 0 else vr(D0)}")
    done = 0; landed = 0; qdone = False
    for k in range(9):
        n = 4 + k
        w = opt["wg"] if k < opt["gburst"] else opt["wg2"]
        if opt["fast4"] and w < opt["wg2"] and qdone:
            Lb = a.label("f4")
            a("s_cmp_ge_u32 s6, 12")
            a(f"s_cbranch_scc1 {Lb}")
            a(f"s_waitcnt vmcnt({w-1})")
            a(f"{Lb}:")
            w = opt["wg2"]
        if n - landed >= w:
            a(f"s_waitcnt vmcnt({w-1})")
            landed = n - w + 1
        g_issue(k)
        if not qdone and landed >= 4:
            q_block(); qdone = True
        if DYN and k == 8 - opt["cdg"]: bump(L_CGO)
        if k == 8 - opt["gd"]: bump(L_VISS)
        while qdone and 4 + done < landed:
            g_mfma(done); done += 1
    stamp(4)
    a(f"v_add_u32 v{AXQ}, s90, v{ALN}")
    lin_addr(AXU)
    a(f"v_add_u32 v{AXU}, s53, v{AXU}")
    la_prep("s55")
    a(f"v_mov_b32 v{AXU2}, {L_VISS}")
    for k in range(done, 9):
        g_mfma(k, 8 - k)
        if opt["gd"] < 0 and k == 9 + opt["gd"]:
            a(f"""
            s_mov_b64 exec, 1
            ds_add_u32 v{AXU2}, v10
            s_mov_b64 exec, -1
            """)
    stamp(5)
    a(f"ds_write_b128 v{AXQ}, {vr(D0)} offset:{L_GT}")
    last_arriver("s54", "L_wave_end", tile_reads(L_GT, 68, AXU))
    for t in range(4):
        a(f"s_waitcnt lgkmcnt({7-2*t})")
        add4(68 + 8 * t, 68 + 8 * t, 72 + 8 * t)
        if t == 1: add4(68, 68, 76)
    add4(84, 84, 92)
    a("s_waitcnt lgkmcnt(0)")
    add4(68, 68, 100); add4(68, 68, 84)
    tag4(68)
    a(f"buffer_store_dwordx4 v[68:71], v{ALN}, s[12:15], s59 offen")
    bump(L_DONE)
    stamp(6)
    a("s_cmp_eq_u32 s52, 8")
    a("s_cbranch_scc1 L_X_now")
    defer()
    a("L_X_now:")
    a(f"buffer_store_dwordx4 v[68:71], v{ALN}, s[12:15], s56 offen sc1")
    finish_wave()

    a(f"""
    L_D:
    s_sub_u32 s49, s3, 9
    v_lshlrev_b32 v57, 4, v1
    s_lshl_b32 s41, s49, 11
    v_add_u32 v58, s41, v57
    """)
    lin_addr(57)
    a(f"""
    s_lshl_b32 s41, s49, 10
    v_add_u32 v57, s41, v57
    v_and_b32 v9, 7, v1
    v_lshlrev_b32 v9, 4, v9
    s_movk_i32 s41, {FPS}
    v_lshrrev_b32 v59, 3, v1
    v_mad_u32_u24 v59, v59, s41, v9
    v_bfe_u32 v60, v1, 3, 1
    v_and_b32 v10, 2, v3
    v_add3_u32 v60, v60, v10, 8
    v_mad_u32_u24 v60, v60, s41, v9
    s_cmp_eq_u32 s49, 1
    s_cselect_b32 s54, 0xffff, -1
    s_mov_b32 s55, s54
    s_cselect_b64 vcc, -1, 0
    v_cndmask_b32 v59, v59, v60, vcc
    v_bfe_u32 v9, v1, 2, 1
    v_cmp_eq_u32 vcc, 0, v9
    v_mov_b32 v10, 0xffff
    v_cndmask_b32 v4, 0, v10, vcc
    v_xor_b32 v5, v4, v10
    v_lshlrev_b32 v6, 16, v4
    v_lshlrev_b32 v7, 16, v5
    v_mov_b32 v122, {L_CNT3}
    v_mov_b32 v123, 1
    v_and_b32 v46, 3, v1
    v_mul_u32_u24 v46, 0x5555, v46
    v_mul_u32_u24 v44, {128*NLN}, v2
    s_lshl_b32 s41, s49, 7
    s_add_u32 s41, s41, {L_VAL}
    v_and_b32 v65, 1, v1
    v_lshlrev_b32 v65, 5, v65
    v_bfe_u32 v9, v1, 3, 1
    v_lshl_add_u32 v65, v9, 4, v65
    v_lshlrev_b32 v56, 6, v9
    v_bfe_u32 v9, v1, 4, 1
    v_lshl_add_u32 v65, v9, 3, v65
    v_bfe_u32 v9, v1, 1, 1
    v_lshl_add_u32 v65, v9, 2, v65
    v_bfe_u32 v9, v1, 2, 1
    v_lshl_add_u32 v65, v9, 1, v65
    v_lshrrev_b32 v120, 5, v1
    v_lshl_add_u32 v65, v120, 6, v65
    v_add_u32 v65, s41, v65
    v_lshl_add_u32 v56, v3, 4, v56
    v_add_u32 v56, s41, v56
    v_and_b32 v121, 31, v1
    v_mul_u32_u24 v{AW}, 4608, v3
    v_lshrrev_b32 v9, 3, v2
    v_mul_u32_u24 v9, {18432-128}, v9
    v_lshl_add_u32 v{AW}, v2, 4, v{AW}
    v_add_u32 v{AW2}, v9, v{AW}
    """)
    for r in list(range(D0, D0 + 4)) + list(range(D1, D1 + 8)): a(f"v_mov_b32 v{r}, 0")
    get_tag()
    a("""
    v_mul_u32_u24 v45, 0x101, v8
    s_cmp_eq_u32 s5, 1
    s_cbranch_scc1 L_DG
    """)
    def claim(role):
        if not DYN: return
        L = a.label("noclaim")
        a("s_cmp_lg_u32 s49, 0")
        a(f"s_cbranch_scc1 {L}")
        wait_value(L_CGO, (4, 9)[role] - 2, sleep=2)
        a(f"""
        s_lshl_b32 s41, s4, 2
        s_add_u32 s76, s36, s41
        s_addc_u32 s77, s37, 0
        s_mov_b32 s97, 1
        s_atomic_add s97, s[76:77], {128*role} glc
        s_waitcnt lgkmcnt(0)
        s_and_b32 s97, s97, 15
        """)
        if role == 1:
            a("""
            s_and_b32 s41, s4, 1
            s_sub_u32 s42, 14, s41
            s_add_u32 s43, s97, 12
            s_cmp_ge_u32 s43, s42
            s_cselect_b32 s41, s42, 0
            s_sub_u32 s43, s43, s41
            s_cmp_lt_u32 s97, s42
            s_cselect_b32 s97, s43, s97
            """)
        set_flag(L_TK, "s97")
        a(f"{L}:")
    def tile_scalars(role):
        ptr, nbytes = ((24, 4096 * 1152), (32, 4608 * 1152))[role]
        a(f"""
        s_add_u32 s40, s86, {32*role}
        s_lshl_b32 s43, s40, 7
        s_mul_i32 s41, s87, {12*FPS}
        s_add_u32 s43, s43, s41
        s_add_u32 s43, s43, {WS_FP}
        s_lshr_b32 s41, s40, {WPL.bit_length()-1}
        s_and_b32 s40, s40, {WPL-1}
        s_mul_i32 s42, s87, {12*NLN}
        s_add_u32 s41, s41, s42
        s_lshl_b32 s41, s41, 7
        {"s_lshl2_add_u32 s44, s40, s41" if opt["hb"] else "s_lshl1_add_u32 s44, s40, s41"}
        {"s_add_u32 s44, s44, s49" if opt["hb"] else ""}
        s_add_u32 s44, s44, {WS_HINT}
        s_lshl2_add_u32 s45, s86, s49
        s_mul_i32 s45, s45, 36864
        s_mul_i32 s41, s87, 384
        s_add_u32 s45, s45, s41
        s_add_u32 s46, s45, 18432
        s_mov_b32 s8, s{ptr}
        s_mov_b32 s9, s{ptr+1}
        s_mov_b32 s10, {nbytes}
        """)
    div3 = """
    s_mul_i32 s88, s97, 86
    s_lshr_b32 s88, s88, 8
    s_mul_i32 s87, s88, 3
    s_sub_u32 s87, s97, s87
    """
    ORDER = [[8, 9, 10, 11, 0, 1, 2, 3, 4, 5, 6, 7], [0, 8, 4, 1, 9, 5, 2, 10, 6, 3, 11, 7], [0, 1, 2, 3, 4, 5, 6, 7, 8, 9, 10, 11]][opt['order']]
    def tile_stream(role, p_issue, lo, n, mask, tail=None, quick=None):
        WL = opt["wlg" if role else "wl"]
        stamp(1)
        if opt["warm"] and not DYN: p_issue()
        wait_value(L_VISS, (4, 9)[role] - 2, sleep=1)
        stamp(2)
        if opt["fake"] & 4:
            a(f"""
            s_mul_i32 s45, s86, 3
            s_add_u32 s45, s45, s87
            s_lshl2_add_u32 s45, s45, s49
            s_mul_i32 s45, s45, 12288
            v_lshlrev_b32 v{AW}, 4, v1
            """)
        for k, j in enumerate(ORDER):
            if k >= WL: a(f"s_waitcnt vmcnt({WL-1})")
            if opt["fake"] & 4:
                a(f"buffer_load_dwordx4 {vr(W3+4*j)}, v{AW}, s[8:11], s45 offen nt")
                a("s_add_u32 s45, s45, 1024")
                continue
            if j < 8: a(f"buffer_load_dwordx4 {vr(W3+4*j)}, v{AW}, s[8:11], {'s45' if j < 4 else 's46'} offen offset:{(j%4)*1152} nt")
            else: a(f"buffer_load_dwordx4 {vr(W3+4*j)}, v{AW2}, s[8:11], s45 offen offset:{(j-8)*1152+256} nt")
        if tail: tail()
        stamp(3)
        if opt["cut"] == 1: a("s_waitcnt vmcnt(0)"); a("s_endpgm")
        wait_value(L_DONE, "s58", sleep=0)
        if quick: quick()
        hand(p_issue, lo, n, mask)
    def hand(p_issue, lo, n, mask, entry=None):
        L = a.label("hand"); F = a.label("first"); K = a.label("keep")
        a(f"""
        s_mov_b32 s51, 1
        s_branch {entry or F}
        {L}:
        s_add_u32 s51, s51, 1
        s_cmp_gt_u32 s51, {SPIN}
        s_cbranch_scc1 L_abort
        s_cmp_lg_u32 s51, {opt["kf"]}
        s_cbranch_scc1 {K}
        s_mov_b64 exec, 1
        ds_write_b32 v122, v123 offset:{L_FLUSH-L_CNT3}
        s_mov_b64 exec, -1
        {K}:
        s_and_b32 s41, s51, {mask}
        s_cselect_b32 s42, {LOC}, 0
        {F}:
        s_waitcnt vmcnt(0)
        """)
        p_issue()
        if entry: a(f"{entry}:")
        a("s_waitcnt vmcnt(0)")
        untag(lo, lo, n)
        a(f"s_cbranch_vccnz {L}")
        stamp(4)
        if opt["cut"] == 2: a("s_endpgm")
        if opt["hb"] == 1: byte_notice()
        elif not opt["hb"]:
            a("""
            s_mov_b64 exec, 1
            ds_add_rtn_u32 v11, v122, v123
            s_mov_b64 exec, -1
            """)
    def byte_notice():
        a("""
        s_mov_b64 exec, 0xfff
        buffer_store_byte v8, v44, s[12:15], s44 offen sc1
        s_mov_b64 exec, -1
        """)
    def tile_tail():
        def notice():
            if opt["xp"] & 8: return
            B = a.label("nohint")
            a(f"""
            v_readfirstlane_b32 s84, v11
            s_cmp_eq_u32 s84, 1
            s_cbranch_scc0 {B}
            s_mov_b64 exec, 0xfff
            buffer_store_short v45, v44, s[12:15], s44 offen sc1
            s_mov_b64 exec, -1
            """)
            stamp(1)
            a(f"{B}:")
        a(f"""
        v_cvt_pk_bf16_f32 v16, v16, v16
        ds_write_b16 v65, v16
        ds_read_b128 {vr(V0)}, v56
        """)
        if opt["hb"] == 2: byte_notice()
        if opt["hp"] < 0 and not opt["hb"]:
            a("s_waitcnt lgkmcnt(2)")
            notice()
        a("s_waitcnt lgkmcnt(0)")
        OP = [24, 28, 32, 36]
        k = 0
        for st in ["b0", "b2", (D1, 0, 32), "b1", (D2, 2, 32), "b3", (D1, 1, 40), (D2, 3, 40), (D0, 0, 0), (D0, 1, 8), (D0, 2, 16), (D0, 3, 24)]:
            if isinstance(st, str): build_op(OP[int(st[1])], V0 + int(st[1]))
            else:
                a(f"{SM} {vr(st[0])}, {vr(OP[st[1]])}, {vr(W3+st[2], 8)}, v46")
                k += 1
                if k == opt["hp"]: notice()
        stamp(5)
        L2 = a.label("sum"); F2 = a.label("sum1")
        for r in range(4): a(f"v_add_f32_dpp v{D1+r}, v{D2+r}, v{D1+r} row_ror:8 {DPPF}")
        a(f"""
        ds_write_b128 v58, {vr(D1)} offset:{L_T3+1024}
        ds_write_b128 v58, {vr(D0)} offset:{L_T3}
        s_mov_b64 exec, 1
        ds_add_u32 v122, v123 offset:{L_CNT4-L_CNT3}
        s_mov_b64 exec, s[54:55]
        s_cmp_ge_u32 s49, 2
        s_cbranch_scc1 L_wave_end
        s_mov_b32 s51, {SPIN}
        {L2}:
        ds_read_b32 v10, v122 offset:{L_CNT4-L_CNT3}
        """)
        for t in range(4): a(f"ds_read_b128 {vr(16+4*t)}, v57 offset:{L_T3+2048*t}")
        a(f"""
        s_sub_u32 s51, s51, 1
        s_cbranch_scc1 L_abort
        s_waitcnt lgkmcnt(4)
        v_cmp_ne_u32 vcc, 2, v10
        s_cbranch_vccnz {L2}
        s_waitcnt lgkmcnt(2)
        """)
        add4(16, 16, 20)
        a("s_waitcnt lgkmcnt(0)")
        add4(24, 24, 28); add4(16, 16, 24)
        tag4(16)
        a("buffer_store_dwordx4 v[16:19], v59, s[12:15], s43 offen sc1")
        a(f"""
        s_mov_b64 exec, 1
        ds_write_b32 v122, v123 offset:{L_FLUSH-L_CNT3}
        """)
        stamp(6)
        finish_wave()
    a(f"""
    v_lshlrev_b32 v61, 12, v120
    v_lshl_add_u32 v61, v121, 2, v61
    v_and_b32 v10, 3, v1
    v_lshl_add_u32 v62, v120, 2, v10
    v_lshlrev_b32 v62, 7, v62
    s_mov_b32 s57, 0x07060501
    s_mov_b32 s58, 0
    """)
    if DYN and opt["warm"]:
        a(f"""
        s_lshl_b32 s41, s7, 10
        s_add_u32 s41, s41, {WS_OP+LOC}
        s_lshl_b32 s42, s49, 8
        s_add_u32 s41, s41, s42
        v_lshlrev_b32 v9, 2, v1
        buffer_load_dword v20, v9, s[12:15], s41 offen sc1
        """)
    claim(0); get_slot()
    a(f"""
    s_lshl2_add_u32 s89, s4, s97
    s_sub_u32 s89, s89, 12
    s_cmp_ge_u32 s97, 12
    s_cbranch_scc1 L_free
    {div3}
    s_lshl2_add_u32 s86, s4, s88
    s_lshr_b32 s47, s86, 1
    s_lshl_b32 s48, s47, 10
    s_lshl_b32 s47, s47, 13
    s_and_b32 s41, s86, 1
    s_lshl_b32 s42, s41, 6
    s_add_u32 s48, s48, s42
    s_add_u32 s48, s48, {WS_ST}
    s_lshl_b32 s41, s41, 9
    s_add_u32 s47, s47, s41
    s_lshl_b32 s41, s49, 7
    s_add_u32 s47, s47, s41
    s_add_u32 s47, s47, {WS_OP}
    v_add_u32 v61, s47, v61
    v_add_u32 v62, s48, v62
    """)
    tile_scalars(0)
    a(f"s_mov_b32 s42, {LOC}")
    def st_load(): a("buffer_load_dwordx4 v[24:27], v62, s[12:15], s42 offen sc1")
    def o_loads():
        for k in range(4): a(f"buffer_load_dword v{20+k}, v61, s[12:15], s42 offen offset:{k*1024} sc1")
    weights = f"""
    v_perm_b32 v28, v24, v25, s57
    v_mov_b32 v29, v28
    v_max_f32_dpp v29, v29, v29 quad_perm:[1,0,3,2] {DPPF}
    v_max_f32_dpp v29, v29, v29 quad_perm:[2,3,0,1] {DPPF}
    v_sub_f32 v28, v28, v29
    v_exp_f32 v28, v28
    v_mul_f32 v26, v26, v28
    v_mov_b32_dpp v40, v28 quad_perm:[0,0,0,0] {DPPF}
    v_mov_b32_dpp v41, v28 quad_perm:[1,1,1,1] {DPPF}
    v_add_f32_dpp v26, v26, v26 quad_perm:[1,0,3,2] {DPPF}
    v_mov_b32_dpp v42, v28 quad_perm:[2,2,2,2] {DPPF}
    v_mov_b32_dpp v43, v28 quad_perm:[3,3,3,3] {DPPF}
    v_add_f32_dpp v26, v26, v26 quad_perm:[2,3,0,1] {DPPF}
    v_rcp_f32 v26, v26
    """
    def quick():
        a("s_waitcnt vmcnt(0)")
        o_loads()
        untag(24, 24, 4)
        a("s_cbranch_vccz L_o_quick")
    tile_stream(0, lambda: (st_load(), o_loads()), 20, 8, opt["lmask"], st_load if opt["pst"] else None, quick if opt["pst"] else None)
    a(weights)
    if opt["pst"]:
        a("s_branch L_o_sum")
        a("L_o_quick:")
        a(weights)
        hand(o_loads, 20, 4, opt["lmask"], entry="L_o_wait")
        a("L_o_sum:")
    a("""
    v_mul_f32 v16, v40, v20
    v_mul_f32 v18, v42, v22
    v_fmac_f32 v16, v41, v21
    v_fmac_f32 v18, v43, v23
    v_add_f32 v16, v16, v18
    v_mul_f32 v16, v16, v26
    """)
    tile_tail()
    c1 = -2.0 * 0.7978845608028654 * 1.4426950408889634
    a(f"""
    L_DG:
    v_lshlrev_b32 v47, 9, v120
    v_lshl_add_u32 v47, v121, 2, v47
    s_mov_b32 s59, {f32bits(0.044715 * c1)}
    v_mov_b32 v66, {f32bits(c1):#x}
    """)
    done_target_g("s58")
    claim(1); get_slot()
    a(f"""
    s_lshr_b32 s89, s4, 1
    s_add_u32 s89, s89, 32
    s_and_b32 s85, s4, 1
    s_lshl4_add_u32 s41, s85, s97
    s_cmp_eq_u32 s41, 29
    s_cbranch_scc1 L_free
    s_mov_b32 s89, -1
    s_cmp_ge_u32 s97, 14
    s_cbranch_scc1 L_free
    {div3}
    s_mul_i32 s86, s85, 5
    s_add_u32 s86, s86, s88
    s_lshl1_add_u32 s41, s85, s87
    s_cmp_lt_u32 s97, 12
    s_cselect_b32 s86, s86, 4
    s_cselect_b32 s87, s87, s41
    s_cselect_b32 s48, {opt["lmask"]}, 0
    s_lshr_b32 s41, s4, 1
    s_mul_i32 s41, s41, 9
    s_add_u32 s86, s86, s41
    s_lshl_b32 s56, s88, 1
    s_add_u32 s57, s56, 1
    s_min_u32 s57, s57, 8
    """)
    for sl, msk in (("s56", "s[90:91]"), ("s57", "s[92:93]")):
        a(f"""
        s_bitcmp1_b32 {THREE:#x}, {sl}
        s_cselect_b64 {msk}, -1, 0
        s_cselect_b32 {sl}, 2, 1
        s_lshl_b32 {sl}, {sl}, 10
        """)
    a(f"""
    s_mul_i32 s47, s86, 3072
    s_lshl_b32 s41, s49, 7
    s_add_u32 s47, s47, s41
    s_add_u32 s47, s47, {WS_GUP}
    v_add_u32 v61, s47, v47
    v_add_u32 v62, {36*3072}, v61
    v_add_u32 v63, s56, v61
    v_add_u32 v64, s57, v62
    """)
    tile_scalars(1)
    a("s_cmp_eq_u32 s48, 0")
    a(f"s_cselect_b32 s42, 0, {LOC}")
    def h_issue():
        a("""
        buffer_load_dword v16, v61, s[12:15], s42 offen sc1
        buffer_load_dword v17, v62, s[12:15], s42 offen sc1
        buffer_load_dword v18, v61, s[12:15], s42 offen offset:1024 sc1
        buffer_load_dword v19, v62, s[12:15], s42 offen offset:1024 sc1
        buffer_load_dword v20, v63, s[12:15], s42 offen sc1
        buffer_load_dword v21, v64, s[12:15], s42 offen sc1
        """)
    tile_stream(1, h_issue, 16, 6, "s48")
    a("""
    v_cndmask_b32 v20, 0, v20, s[90:91]
    v_cndmask_b32 v21, 0, v21, s[92:93]
    v_pk_add_f32 v[16:17], v[16:17], v[18:19]
    v_pk_add_f32 v[16:17], v[16:17], v[20:21]
    v_cvt_pk_bf16_f32 v17, v16, v17
    v_lshlrev_b32 v16, 16, v17
    v_and_b32 v17, 0xffff0000, v17
    v_mul_f32 v18, v16, v16
    v_fma_f32 v18, v18, s59, v66
    v_mul_f32 v18, v18, v16
    v_exp_f32 v18, v18
    v_add_f32 v18, 1.0, v18
    v_rcp_f32 v18, v18
    v_mul_f32 v16, v16, v18
    v_cvt_pk_bf16_f32 v16, v16, v16
    v_and_b32 v16, 0xffff0000, v16
    v_mul_f32 v16, v16, v17
    """)
    tile_tail()
    a("L_free:")
    if opt["fd"]: wait_value(L_DONE, "s58", sleep=2)
    if opt["xp"] & 4: a("s_sleep 40")
    set_flag(L_FLUSH)
    a("""
    s_cmp_lg_u32 s89, -1
    s_cbranch_scc1 L_R
    """)
    a("L_wave_end:")
    finish_wave()

    def collect(nd, n, issue):
        L = a.label("hint"); R = a.label("again"); F = a.label("read")
        if opt["hs"] > 1:
            assert WPL == 16
            HS = opt["hs"]; S = a.label("hstart")
            base = [16, 24, 80][:HS]
            ld = lambda k: a(f"s_load_dwordx{nd} s[{base[k]}:{base[k]+nd-1}], s[76:77], 0 glc")
            a(f"""
            s_branch {S}
            {R}:
            s_sub_u32 s51, s51, 1
            s_cbranch_scc1 L_abort
            s_branch {F}
            {S}:
            """)
            for k in range(HS):
                ld(k)
                if k < HS - 1: a(f"s_sleep {opt['hst']}")
            a(f"{L}:")
            for k in range(HS):
                a(f"s_waitcnt lgkmcnt({2*(HS-1)})")
                for j in range(nd // 2):
                    a(f"s_xor_b64 s[{'36:37' if j == 0 else '78:79'}], s[{base[k]+2*j}:{base[k]+2*j+1}], s[90:91]")
                    if j: a("s_or_b64 s[36:37], s[36:37], s[78:79]")
                a(f"s_cbranch_scc0 {F}")
                ld(k)
            a("s_sub_u32 s53, s53, 1")
            a(f"s_cbranch_scc0 {L}")
            a(f"{F}:")
            issue()
            a("s_waitcnt vmcnt(0) lgkmcnt(0)")
            untag(48, 48, n)
            a(f"s_cbranch_vccnz {R}")
            return
        a(f"""
        s_branch {L}
        {R}:
        s_sub_u32 s51, s51, 1
        s_cbranch_scc1 L_abort
        s_branch {F}
        {L}:
        s_sub_u32 s53, s53, 1
        s_cbranch_scc1 {F}
        """)
        per = min(nd, WPL // 2)
        for k in range(nd // per):
            a(f"s_load_dwordx{per} s[{16+per*k}:{15+per*k+per}], s[76:77], {128*k} glc" if per > 1 else f"s_load_dword s{16+k}, s[76:77], {128*k} glc")
        a("s_waitcnt lgkmcnt(0)")
        for k in range(nd // 2): a(f"s_xor_b64 s[{16+2*k}:{17+2*k}], s[{16+2*k}:{17+2*k}], s[90:91]")
        for k in range(1, nd // 2): a(f"s_or_b64 s[16:17], s[16:17], s[{16+2*k}:{17+2*k}]")
        a(f"s_cbranch_scc1 {L}")
        stamp(2)
        a(f"{F}:")
        issue()
        a("s_waitcnt vmcnt(0)")
        untag(48, 48, n)
        a(f"s_cbranch_vccnz {R}")
        stamp(3)

    def m_tag():
        a(f"""
        s_waitcnt lgkmcnt(0)
        s_add_u32 s52, s52, 1
        s_and_b32 s53, s52, 0xff
        v_mov_b32 v8, s53
        v_mov_b32 v13, {L_TAG}
        s_mov_b64 exec, 1
        v_mov_b32 v10, s52
        ds_write_b32 v13, v10 offset:{L_E1-L_TAG}
        ds_write_b32 v13, v8
        s_mov_b64 exec, -1
        s_mov_b32 s49, 4
        """)
    a("""
    L_M2:
    s_cmp_eq_u32 s5, 0
    s_cbranch_scc1 L_MA
    s_waitcnt vmcnt(0)
    """)
    stamp(2)
    X = 16
    for t in range(9):
        a(f"v_lshlrev_b32 v{X+2*t}, 16, v{108+t}")
        a(f"v_and_b32 v{X+2*t+1}, 0xffff0000, v{108+t}")
    a(f"v_pk_add_f32 v[34:35], {vr(X,2)}, {vr(X+2,2)}")
    for t in range(2, 9): a(f"v_pk_add_f32 v[34:35], v[34:35], {vr(X+2*t,2)}")
    a("v_add_f32 v34, v34, v35")
    def half_reduce(r):
        for mode in ("quad_perm:[1,0,3,2]", "quad_perm:[2,3,0,1]", "row_half_mirror", "row_mirror"):
            a(f"v_add_f32_dpp v{r}, v{r}, v{r} {mode} {DPPF}")
        a(f"v_mov_b32 v{r+1}, v{r}")
        a(f"v_permlane16_swap_b32 v{r}, v{r+1}")
        a(f"v_add_f32 v{r}, v{r}, v{r+1}")
    half_reduce(34)
    a(f"v_mul_f32 v34, {f32bits(1.0/576):#x}, v34")
    a("v_mov_b32 v35, v34")
    for t in range(9): a(f"v_pk_add_f32 {vr(36+2*t,2)}, {vr(X+2*t,2)}, v[34:35] neg_lo:[0,1] neg_hi:[0,1]")
    a("v_pk_mul_f32 v[54:55], v[36:37], v[36:37]")
    for t in range(1, 9): a(f"v_pk_fma_f32 v[54:55], {vr(36+2*t,2)}, {vr(36+2*t,2)}, v[54:55]")
    a("v_add_f32 v54, v54, v55")
    half_reduce(54)
    a(f"""
    v_mul_f32 v54, {f32bits(1.0/576):#x}, v54
    v_cvt_pk_bf16_f32 v34, v34, v54
    v_and_b32 v54, 0xffff0000, v34
    v_lshlrev_b32 v34, 16, v34
    v_mov_b32 v35, v34
    v_add_f32 v54, {f32bits(1e-5):#x}, v54
    v_cvt_pk_bf16_f32 v54, v54, v54
    v_and_b32 v54, 0xffff0000, v54
    v_sqrt_f32 v54, v54
    v_cvt_pk_bf16_f32 v54, v54, v54
    v_and_b32 v54, 0xffff0000, v54
    v_rcp_f32 v54, v54
    v_lshrrev_b32 v11, 5, v1
    v_mul_u32_u24 v11, 2304, v11
    v_and_b32 v13, 31, v1
    v_mul_u32_u24 v13, 72, v13
    v_add_u32 v11, v11, v13
    v_mov_b32 v55, v54
    """)
    for t in range(9): a(f"v_pk_add_f32 {vr(X+2*t,2)}, {vr(X+2*t,2)}, v[34:35] neg_lo:[0,1] neg_hi:[0,1]")
    for t in range(9): a(f"v_cvt_pk_bf16_f32 v{36+t}, v{X+2*t}, v{X+2*t+1}")
    m_tag()
    for t in range(9):
        a(f"v_lshlrev_b32 v{X+2*t}, 16, v{36+t}")
        a(f"v_and_b32 v{X+2*t+1}, 0xffff0000, v{36+t}")
        a(f"v_pk_mul_f32 {vr(X+2*t,2)}, {vr(X+2*t,2)}, v[54:55]")
        a(f"v_cvt_pk_bf16_f32 v{X+2*t}, v{X+2*t}, v{X+2*t}")
        a(f"v_cvt_pk_bf16_f32 v{X+2*t+1}, v{X+2*t+1}, v{X+2*t+1}")
        a(f"ds_write_b64 v11, {vr(X+2*t,2)} offset:{L_XNP+8*t}")
    stamp(3)
    a(f"""
    v_lshlrev_b32 v14, 4, v1
    v_mov_b32 v15, {L_CNT2}
    """ + q_head("s44") + f"""
    s_and_b32 s41, s6, 3
    s_lshl2_add_u32 s44, s44, s41
    s_lshl_b32 s44, s44, 10
    s_add_u32 s44, s44, {WS_QP}
    s_add_u32 s45, s44, {LOC}
    """)
    spin("\n".join(["ds_read_b32 v10, v15"] + tile_reads(L_BIG, 16, 14)), "v_cmp_ne_u32 vcc, 7, v10", sleep=0)
    add4(16, 16, 20); add4(24, 24, 28); add4(32, 32, 36); add4(40, 40, 44)
    add4(16, 16, 24); add4(32, 32, 40); add4(16, 16, 48); add4(16, 16, 32)
    tag4(16)
    a("buffer_store_dwordx4 v[16:19], v14, s[12:15], s45 offen")
    stamp(1)
    defer("L_M_q2")
    a("buffer_store_dwordx4 v[16:19], v14, s[12:15], s44 offen sc1")
    a("L_M_q2:")
    done_target_g("s58")
    a("s_setprio 0")
    get_slot()
    a("""
    s_lshr_b32 s89, s4, 1
    s_add_u32 s89, s89, 32
    s_and_b32 s41, s4, 1
    s_lshl4_add_u32 s41, s41, s97
    s_cmp_eq_u32 s41, 29
    s_cbranch_scc1 L_R
    """)
    finish_wave()

    a(f"""
    L_MA:
    s_lshr_b32 s46, s7, 3
    s_lshl_b32 s46, s46, 13
    s_bfe_u32 s47, s6, 0x10002
    s_lshl_b32 s47, s47, 9
    s_add_u32 s46, s46, s47
    s_add_u32 s46, s46, {WS_QP}
    s_add_u32 s47, s46, {LOC}
    s_mov_b32 s48, 0
    v_lshrrev_b32 v11, 5, v1
    v_and_b32 v15, 31, v1
    v_lshlrev_b32 v14, 12, v11
    v_lshl_add_u32 v14, v15, 4, v14
    v_lshlrev_b32 v12, 8, v11
    v_lshl_add_u32 v12, v2, 4, v12
    v_and_b32 v9, 1, v3
    v_lshl_add_u32 v12, v9, 3, v12
    """)
    m_tag()
    def q_issue(r):
        a("s_add_u32 s48, s48, 1")
        a(f"s_and_b32 s41, s48, {opt['lmask']}")
        a("s_cselect_b32 s42, s47, s46")
        for i in range(NQ): a(f"buffer_load_dwordx4 {vr(r+4*i)}, v14, s[12:15], s42 offen offset:{i*(1024 if NQ == 4 else 2048)} sc1")
    NQ = 2 if opt["xp"] & 16 else 4
    if NQ == 2:
        a("v_bfe_u32 v9, v1, 4, 1")
        a("v_lshl_add_u32 v14, v9, 10, v14")
    wait_flag(L_QGO, sleep=2)
    stamp(2)
    poll(opt["qsets"], 4 * NQ, 16, 64, q_issue, NQ, stag=opt["qstag"])
    add4(16, 16, 20); add4(24, 24, 28); add4(16, 16, 24)
    a(f"""
    v_cvt_pk_bf16_f32 v16, v16, v17
    v_cvt_pk_bf16_f32 v17, v18, v19
    ds_write_b64 v12, v[16:17] offset:{L_QL}
    """)
    set_flag(L_QFLAG)
    stamp(3)
    get_slot()
    a("""
    s_lshl2_add_u32 s89, s4, s97
    s_sub_u32 s89, s89, 12
    s_mov_b32 s58, 0
    s_cmp_lt_u32 s97, 12
    s_cbranch_scc1 L_wave_end
    """)

    a(f"""
    L_R:
    s_mul_i32 s46, s89, {FPS}
    s_lshl_b32 s41, s49, 11
    s_add_u32 s46, s46, s41
    s_add_u32 s46, s46, {WS_FP}
    v_lshlrev_b32 v14, 4, v1
    v_lshlrev_b32 v19, 2, v1
    s_lshl_b32 s41, s49, 8
    v_add_u32 v15, s41, v19
    s_mul_i32 s41, s89, 43
    s_lshr_b32 s41, s41, 9
    s_mul_i32 s42, s41, 12
    s_sub_u32 s42, s89, s42
    s_mul_i32 s41, s41, 192
    s_cmp_ge_u32 s42, 8
    s_cbranch_scc1 L_R_hi
    s_lshr_b32 s43, s42, 2
    s_and_b32 s48, s42, 3
    s_lshl_b32 s48, s48, 5
    s_branch L_R_col
    L_R_hi:
    s_bfe_u32 s43, s42, 0x10001
    s_and_b32 s48, s42, 1
    s_lshl_b32 s48, s48, 5
    s_add_u32 s48, s48, 128
    L_R_col:
    s_mul_i32 s43, s43, 576
    s_add_u32 s41, s41, s43
    s_add_u32 s41, s41, s48
    s_lshl_b32 s41, s41, 1
    v_and_b32 v12, 7, v1
    v_lshlrev_b32 v12, 3, v12
    v_lshl_add_u32 v12, v3, 1, v12
    v_add_u32 v12, s41, v12
    v_min_u32 v12, 2302, v12
    global_load_ushort v13, v12, s[16:17]
    v_mov_b32 v48, 0
    v_mov_b32 v49, 0
    v_mov_b32 v50, 0
    v_mov_b32 v51, 0
    s_mov_b32 s43, {f32bits(-1.4426950408889634)}
    """)
    if opt["fw"]:
        a("""
        s_waitcnt vmcnt(0)
        s_add_u32 s76, s38, s46
        s_addc_u32 s77, s39, 0
        """)
        for k in range(16): a(f"s_load_dword s{16+k}, s[76:77], {128*k} glc")
        a("s_waitcnt lgkmcnt(0)")
    wait_value(L_DONE, "s58", sleep=2)
    if opt["cut"]:
        a(f"""
        s_cmp_lg_u32 s89, 0
        s_cbranch_scc1 L_wave_end
        s_mov_b64 exec, 1
        v_mov_b32 v18, {L_E1}
        ds_read_b32 v19, v18
        v_mov_b32 v18, {WS_EPOCH}
        s_waitcnt lgkmcnt(0)
        buffer_store_dword v19, v18, s[12:15], 0 offen
        s_endpgm
        """)
    stamp(4)
    a(f"""
    s_waitcnt vmcnt(0)
    v_lshlrev_b32 v22, 16, v13
    v_readfirstlane_b32 s90, v8
    s_mul_i32 s41, s89, 5
    s_add_u32 s41, s41, s49
    s_mul_i32 s41, s41, {128*16//WPL}
    s_add_u32 s41, s41, {WS_HINT}
    s_add_u32 s76, s38, s41
    s_addc_u32 s77, s39, 0
    s_mul_i32 s90, s90, 0x01010101
    s_mov_b32 s91, s90
    s_movk_i32 s53, {0 if opt["xp"] & 8 else 200}
    s_mov_b32 s51, {SPIN}
    v_mov_b32 v20, {L_CNT3}
    v_mov_b32 v21, 1
    {"s_sleep 30" if opt["xp"] & 2 else ""}
    s_cmp_eq_u32 s49, 4
    s_cbranch_scc0 L_R_full
    s_mov_b32 exec_hi, 0
    """)
    collect(4 if opt["hb"] else 2, 4, lambda: a("buffer_load_dwordx4 v[48:51], v14, s[12:15], s46 offen sc1"))
    a("""
    s_mov_b32 exec_hi, -1
    s_branch L_R_put
    L_R_full:
    """)
    collect(16 if opt["hb"] else 8, 8, lambda: a("buffer_load_dwordx4 v[48:51], v14, s[12:15], s46 offen sc1\nbuffer_load_dwordx4 v[52:55], v14, s[12:15], s46 offen offset:1024 sc1"))
    add4(48, 48, 52)
    a("L_R_put:")
    a(f"""
    v_permlane32_swap_b32 v48, v50
    v_permlane32_swap_b32 v49, v51
    v_pk_add_f32 v[48:49], v[48:49], v[50:51]
    v_permlane16_swap_b32 v48, v49
    v_add_f32 v48, v48, v49
    v_add_f32_dpp v48, v48, v48 row_ror:8 {DPPF}
    ds_write_b32 v15, v48 offset:{L_T3}
    """)
    last_arriver(2, "L_wave_end", [f"ds_read2st64_b32 v[26:27], v19 offset0:{L_T3//256+2} offset1:{L_T3//256+3}",
                                   f"ds_read_b32 v28, v19 offset:{L_T3+1024}",
                                   f"ds_read2st64_b32 v[24:25], v19 offset0:{L_T3//256} offset1:{L_T3//256+1}"], r0=20)
    stamp(5)
    a(f"""
    s_mov_b32 exec_lo, 0x00ff00ff
    s_mov_b32 exec_hi, 0x00ff00ff
    s_waitcnt lgkmcnt(1)
    v_add_f32 v26, v26, v27
    v_add_f32 v26, v26, v28
    s_waitcnt lgkmcnt(0)
    v_add_f32 v24, v24, v25
    v_cvt_pk_bf16_f32 v24, v24, v26
    v_and_b32 v26, 0xffff0000, v24
    v_mul_f32 v27, s43, v26
    v_exp_f32 v27, v27
    v_lshlrev_b32 v24, 16, v24
    v_add_f32 v27, 1.0, v27
    v_rcp_f32 v27, v27
    v_mul_f32 v26, v26, v27
    v_cvt_pk_bf16_f32 v26, v26, v26
    v_and_b32 v26, 0xffff0000, v26
    v_mul_f32 v26, v26, v24
    v_cvt_pk_bf16_f32 v26, v26, v26
    v_and_b32 v26, 0xffff0000, v26
    v_add_f32 v26, v26, v22
    v_cvt_pk_bf16_f32 v26, v26, v26
    global_store_short v12, v26, s[34:35]
    s_cmp_lg_u32 s89, 0
    s_cbranch_scc1 L_R_done
    s_mov_b64 exec, 1
    v_mov_b32 v18, {L_E1}
    ds_read_b32 v19, v18
    v_mov_b32 v18, {WS_EPOCH}
    s_waitcnt lgkmcnt(0)
    buffer_store_dword v19, v18, s[12:15], 0 offen
    L_R_done:
    """)
    stamp(6)
    finish_wave()

    a("L_abort:")
    if stamps:
        a("s_mov_b32 s74, -1")
        a(f"""
        L_dump:
        s_mov_b64 exec, -1
        s_waitcnt lgkmcnt(0)
        s_lshl_b32 s41, s2, 4
        s_add_u32 s41, s41, s3
        s_add_u32 s41, s41, 1
        s_lshl_b32 s41, s41, 5
        s_add_u32 s41, s41, {WS_STAMP}
        v_mov_b32 v9, s41
        """)
        for i in range(8): a(f"v_mov_b32 v{i}, s{60+2*i}")
        a("""
        s_mov_b64 exec, 1
        buffer_store_dwordx4 v[0:3], v9, s[12:15], 0 offen
        buffer_store_dwordx4 v[4:7], v9, s[12:15], 0 offen offset:16
        """)
    a("s_endpgm")
    body = a.finish()
    init = "\n".join(f"    s_mov_b32 s{60+2*i}, 0" for i in range(1, 8)) + "\n" if stamps else ""
    hdr = open("cdna_kernels/" + NAME + ".s.ref").read().split("; Override launch")[0]
    return f"""{hdr}; @launch grid=(256,1,1) block=({NW*64},1,1) lds={LDS_BYTES}
.amdgcn_target "amdgcn-amd-amdhsa--gfx950"
.text
.globl {NAME}_kernel
.p2align 12
.p2align 8
.type {NAME}_kernel,@function
{NAME}_kernel:
{init}{body}
KERNEL_END:
.section .rodata,"a"
.p2align 6
.amdhsa_kernel {NAME}_kernel
  .amdhsa_next_free_vgpr 128
  .amdhsa_next_free_sgpr 100
  .amdhsa_accum_offset 128
  .amdhsa_group_segment_fixed_size 0
  .amdhsa_kernarg_size 96
  .amdhsa_user_sgpr_count 2
  .amdhsa_user_sgpr_kernarg_segment_ptr 1
  .amdhsa_system_sgpr_workgroup_id_x 1
.end_amdhsa_kernel
"""

THREE = sum(1 << s for s in range(9) if (16 * s + 15) // 9 - (16 * s) // 9 == 2)

def emit(name, stamps, opt):
    import hb, subprocess
    open(name + ".s", "w").write(gen(stamps, opt)); hb.build(name + ".s")
    r = subprocess.run([sys.executable, "../cdna_kernels/cdna_unwritten_srd_check.py", name + ".co", "--entry", NAME + "_kernel"], capture_output=True, text=True)
    if ": ok:" not in r.stdout: print(r.stdout[-2500:])

if __name__ == "__main__":
    emit("k26", False, {}); emit("ks26", True, {})
    print("built", hex(THREE))
```

```python
import sys, struct
from asmlib import Asm

NAME = "recurrent_scan__sliding_block_cached__geglu_ffn__decode"
NW = 14
WS_EPOCH = 0
WS_QP = 0x1000
WS_ST = WS_QP + 128 * 1024
WS_GUP = WS_ST + 128 * 128
WS_OP = WS_GUP + 216 * 1024
LOC = 488 * 1024
WS_FP = WS_QP + 2 * LOC
FPS = 72 * 128
WS_HINT = WS_FP + 36 * FPS
WS_STAMP = 8 << 20
L_XNP = 0
L_VAL = 4608
L_STM, L_STL = 5632, 5664
L_TAG, L_QFLAG, L_CNT0, L_CNT1, L_CNT2, L_CNT3, L_DONE, L_QGO = 5760, 5764, 5768, 5772, 5776, 5780, 5784, 5788
L_KRDY, L_VISS, L_CGO, L_TK = 5792, 5808, 5812, 5816
L_QL = 7168
L_OT = 8192
L_T3 = 12288
L_BIG = 20480
L_GT = L_BIG + 9216
LDS_BYTES = 86016
SPIN = 1000000
MF = "v_mfma_f32_16x16x32_bf16"
SM = "v_smfmac_f32_16x16x64_bf16"
DPPF = "row_mask:0xf bank_mask:0xf"

def f32bits(x): return struct.unpack("<I", struct.pack("<f", x))[0]
def vr(r, n=4): return f"v[{r}:{r+n-1}]"

DEF = dict(wa0=4, wa=8, wg=2, wg2=3, gburst=8, wl=6, wlg=6, vd=3, gd=0, qgo=6, qsets=2, qstag=12, lmask=7,
           warm=1, dyn=0, cda=12, cdg=5, fast4=1, perm=1, order=1, fake=0)

def gen(stamps=False, opt=None):
    o_ = dict(DEF); o_.update(opt or {}); opt = o_
    a = Asm()
    DYN = opt["dyn"]
    def stamp(i):
        if stamps: a(f"s_memrealtime s[{60+2*i}:{61+2*i}]")
    def finish_wave():
        if stamps:
            stamp(7); a("s_branch L_dump")
        else:
            a("s_endpgm")
    def spin(reads, check, sleep=1, preloaded=False):
        L = a.label("spin"); D = a.label("spun"); C = a.label("chk")
        a(f"s_mov_b32 s51, {SPIN}")
        if preloaded: a(f"s_branch {C}")
        a(f"{L}:")
        a(reads)
        if preloaded: a(f"{C}:")
        a("s_waitcnt lgkmcnt(0)")
        a(check)
        a(f"s_cbranch_vccz {D}")
        a("s_sub_u32 s51, s51, 1")
        a("s_cbranch_scc1 L_abort")
        if sleep: a(f"s_sleep {sleep}")
        a(f"s_branch {L}")
        a(f"{D}:")
    def chain(op3, op2, regs, tmp):
        out = []; rs = list(regs); cur = rs.pop(0)
        while rs:
            if len(rs) >= 2:
                out.append(f"{op3} v{tmp}, v{cur}, v{rs[0]}, v{rs[1]}"); rs = rs[2:]
            else:
                out.append(f"{op2} v{tmp}, v{cur}, v{rs[0]}"); rs = rs[1:]
            cur = tmp
        return out, cur
    def maxchain(regs):
        out, cur = chain("v_max3_u32", "v_max_u32", regs, 9)
        return "\n".join(out + [f"v_cmp_eq_u32 vcc, -2, v{cur}"])
    def untag(dst, src, n):
        for r in range(n): a(f"v_xor_b32 v{dst+r}, v{src+r}, v8")
        out, cur = chain("v_or3_b32", "v_or_b32", range(dst, dst + n), 9)
        a("\n".join(out + [f"v_and_b32 v9, 0xff, v{cur}", "v_cmp_ne_u32 vcc, 0, v9"]))
    def poll(nsets, n, canon, raw0, issue, nloads, stag=1):
        L = a.label("poll"); D = a.label("polled")
        a(f"s_mov_b32 s51, {SPIN}")
        for k in range(nsets):
            issue(raw0 + k * n)
            if k < nsets - 1: a(f"s_sleep {stag}")
        a(f"{L}:")
        for k in range(nsets):
            a(f"s_waitcnt vmcnt({(nsets-1)*nloads})")
            untag(canon, raw0 + k * n, n)
            a(f"s_cbranch_vccz {D}")
            issue(raw0 + k * n)
        a("s_sub_u32 s51, s51, 1")
        a("s_cbranch_scc1 L_abort")
        a(f"s_branch {L}")
        a(f"{D}:")
    def sel_masks():
        a("""
        v_and_b32 v9, 1, v1
        v_lshlrev_b32 v9, 4, v9
        v_mov_b32 v10, 0xffff
        v_lshlrev_b32 v10, v9, v10
        v_bfe_u32 v9, v1, 1, 2
        v_cmp_eq_u32 s[76:77], 0, v9
        v_cmp_eq_u32 s[78:79], 1, v9
        v_cmp_eq_u32 s[80:81], 2, v9
        v_cmp_eq_u32 s[82:83], 3, v9
        v_cndmask_b32 v4, 0, v10, s[76:77]
        v_cndmask_b32 v5, 0, v10, s[78:79]
        v_cndmask_b32 v6, 0, v10, s[80:81]
        v_cndmask_b32 v7, 0, v10, s[82:83]
        """)
    def get_tag():
        a(f"v_mov_b32 v9, {L_TAG}")
        spin("ds_read_b32 v8, v9", "v_cmp_eq_u32 vcc, -2, v8")
    def wait_flag(addr, sleep=1):
        a(f"v_mov_b32 v9, {addr}")
        spin("ds_read_b32 v10, v9", "v_cmp_eq_u32 vcc, -2, v10", sleep=sleep)
    def wait_value(addr, val, sleep=1):
        a(f"v_mov_b32 v9, {addr}")
        spin("ds_read_b32 v10, v9", f"v_cmp_ne_u32 vcc, {val}, v10", sleep=sleep)
    def lane0(op, addr, val):
        a(f"""
        v_mov_b32 v9, {addr}
        v_mov_b32 v10, {val}
        s_mov_b64 exec, 1
        {op} v9, v10
        s_mov_b64 exec, -1
        """)
    def set_flag(addr, val=0): lane0("ds_write_b32", addr, val)
    def bump(addr): lane0("ds_add_u32", addr, 1)
    def build_op(dst, val):
        for t in range(4): a(f"v_and_b32 v{dst+t}, v{val}, v{4+t}")
    def tag4(r):
        for t in range(4): a(f"v_and_or_b32 v{r+t}, v{r+t}, s50, v8")
    def add4(d, x, y):
        a(f"v_pk_add_f32 {vr(d,2)}, {vr(x,2)}, {vr(y,2)}")
        a(f"v_pk_add_f32 {vr(d+2,2)}, {vr(x+2,2)}, {vr(y+2,2)}")
    def wave_reduce(op, regs):
        for mode in ("quad_perm:[1,0,3,2] row_mask:0xf", "quad_perm:[2,3,0,1] row_mask:0xf", "row_half_mirror row_mask:0xf",
                     "row_mirror row_mask:0xf", "row_bcast:15 row_mask:0xa", "row_bcast:31 row_mask:0xc"):
            for r in regs: a(f"{op}_dpp v{r}, v{r}, v{r} {mode} bank_mask:0xf")
    def la_prep(cnt):
        a(f"v_mov_b32 v9, {cnt}")
        a("v_mov_b32 v10, 1")
    def last_arriver(expect, skip, reads):
        a("""
        s_mov_b64 exec, 1
        ds_add_rtn_u32 v11, v9, v10
        s_mov_b64 exec, -1
        """)
        for r in reads: a(r)
        a(f"""
        s_waitcnt lgkmcnt({len(reads)})
        v_readfirstlane_b32 s84, v11
        s_cmp_eq_u32 s84, {expect}
        s_cbranch_scc0 {skip}
        """)
    def lin_addr(r):
        a(f"""
        v_and_b32 v{r}, 33, v1
        v_mul_u32_u24 v{r}, 0x110, v{r}
        v_and_b32 v{r}, 0x300, v{r}
        v_bfe_u32 v9, v1, 1, 4
        v_lshl_add_u32 v{r}, v9, 4, v{r}
        """)
    def done_target_g(dst):
        a(f"""
        s_mul_i32 s41, s6, 9
        s_add_u32 s42, s41, 8
        s_lshr_b32 s41, s41, 4
        s_lshr_b32 s42, s42, 4
        s_sub_u32 {dst}, s42, s41
        s_sub_u32 {dst}, {dst}, 1
        """)
    def q_head(dst):
        if not opt["perm"]: return f"s_lshr_b32 {dst}, s7, 2"
        return f"""
        s_and_b32 {dst}, s6, 12
        s_lshr_b32 {dst}, 0x1320, {dst}
        s_and_b32 {dst}, {dst}, 3
        s_lshl2_add_u32 {dst}, s4, {dst}
        """
    def get_slot():
        if not DYN:
            a("s_mov_b32 s97, s6"); return
        wait_flag(L_TK, sleep=2)
        a("v_readfirstlane_b32 s97, v10")

    WQ, WU, W3, OPR, V0, D0, D1, D2 = 16, 32, 68, 104, 116, 12, 48, 52
    AXQ, AXU, AXU2, ALN, AW, AW2 = 112, 113, 114, 115, 125, 126

    stamp(0)
    a(f"""
    s_cmp_ge_u32 s2, 256
    s_cbranch_scc1 L_exit
    s_load_dwordx16 s[16:31], s[0:1], 0
    s_load_dwordx8 s[32:39], s[0:1], 64
    s_load_dwordx2 s[12:13], s[0:1], 88
    s_getpc_b64 s[40:41]
    L_pc:
    v_lshlrev_b32 v9, 4, v0
    v_min_u32 v9, KERNEL_END-L_pc-4, v9
    global_load_dword v67, v9, s[40:41]
    v_lshrrev_b32 v2, 6, v0
    v_and_b32 v1, 63, v0
    v_readfirstlane_b32 s3, v2
    v_lshlrev_b32 v9, 3, v0
    v_mov_b32 v4, -2
    v_mov_b32 v5, -2
    ds_write_b64 v9, v[4:5]
    s_and_b32 s4, s2, 7
    s_lshr_b32 s6, s2, 4
    s_bfe_u32 s5, s2, 0x10003
    s_lshl_b32 s7, s4, 4
    s_add_u32 s7, s7, s6
    v_and_b32 v2, 15, v1
    v_lshrrev_b32 v3, 4, v1
    s_mov_b32 s50, 0xffffff00
    s_mov_b32 s11, 0x20000
    s_mov_b32 s14, 0x1000000
    s_mov_b32 s15, 0x20000
    s_sub_u32 s3, s3, 1
    s_cbranch_scc0 L_notM
    s_setprio 3
    v_lshrrev_b32 v11, 5, v1
    v_mul_u32_u24 v11, 1152, v11
    v_and_b32 v12, 31, v1
    v_mul_u32_u24 v12, 36, v12
    v_add_u32 v11, v11, v12
    s_cmp_eq_u32 s5, 0
    s_waitcnt lgkmcnt(0)
    s_cbranch_scc1 L_M_nox
    global_load_dwordx4 v[108:111], v11, s[16:17]
    global_load_dwordx4 v[112:115], v11, s[16:17] offset:16
    global_load_dword v116, v11, s[16:17] offset:32
    L_M_nox:
    s_load_dword s52, s[38:39], {WS_EPOCH}
    s_barrier
    s_branch L_M2
    L_notM:
    s_cmp_ge_u32 s3, 9
    s_cbranch_scc1 L_S
    s_cmp_eq_u32 s5, 1
    s_cbranch_scc1 L_X
    s_cmp_ge_u32 s3, 4
    s_cbranch_scc1 L_S
    s_bfe_u32 s40, s6, 0x10002
    s_lshl_b32 s40, s40, 4
    s_lshr_b32 s41, s7, 3
    s_add_u32 s40, s40, s41
    s_lshl_b32 s40, s40, 20
    s_and_b32 s41, s6, 3
    s_lshl_b32 s41, s41, 16
    s_add_u32 s40, s40, s41
    s_lshl_b32 s41, s3, 14
    s_add_u32 s40, s40, s41
    s_add_u32 s40, s40, {3072*256}
    s_mov_b32 s42, s40
    s_add_u32 s41, s41, {L_BIG}
    s_mov_b32 m0, s41
    v_lshlrev_b32 v9, 8, v3
    """)
    for q in range(4):
        a(f"v_add_u32 v{16+q}, {4*q}, v3")
        a(f"v_xor_b32 v{16+q}, v{16+q}, v2")
        a(f"v_lshl_add_u32 v{16+q}, v{16+q}, 4, v9")
    a("""
    s_mov_b32 s10, 33554432
    s_waitcnt lgkmcnt(0)
    s_mov_b32 s8, s18
    s_mov_b32 s9, s19
    """)
    stamp(1)
    def l_issue(i):
        if i < 16:
            if i and i % 4 == 0:
                a("s_add_u32 s41, s41, 4096"); a("s_mov_b32 m0, s41"); a("s_add_u32 s40, s40, 4096")
            a(f"buffer_load_dwordx4 v{16+i%4}, s[8:11], s40 offen offset:{(i%4)*1024} nt lds")
        else:
            k = i - 16
            if k == 0:
                a("s_mov_b32 s8, s20"); a("s_mov_b32 s9, s21")
            if k and k % 4 == 0: a("s_add_u32 s42, s42, 4096")
            a(f"buffer_load_dwordx4 {vr(64+4*k)}, v20, s[8:11], s42 offen offset:{(k%4)*256} nt")
    WA0, WA = opt["wa0"], opt["wa"]
    for i in range(WA0): l_issue(i)
    a("""
    s_barrier
    s_branch L_L
    L_X:
    s_and_b32 s40, s6, 3
    s_mul_i32 s40, s40, 144
    s_lshl_b32 s41, s3, 4
    s_add_u32 s47, s40, s41
    s_lshl_b32 s40, s47, 13
    """ + q_head("s41") + """
    s_lshl_b32 s41, s41, 8
    s_add_u32 s40, s40, s41
    v_lshlrev_b32 v11, 15, v3
    v_lshl_add_u32 v11, v2, 4, v11
    s_mov_b32 s10, 4718592
    s_movk_i32 s42, 0x2000
    s_waitcnt lgkmcnt(0)
    s_mov_b32 s8, s22
    s_mov_b32 s9, s23
    """)
    stamp(1)
    if opt["fake"] & 2:
        a("""
        s_mul_i32 s40, s7, 9
        s_add_u32 s40, s40, s3
        s_lshl_b32 s40, s40, 12
        s_movk_i32 s42, 1024
        v_lshlrev_b32 v11, 4, v1
        """)
    for i in range(4):
        a(f"buffer_load_dwordx4 {vr(WQ+4*i)}, v11, s[8:11], s40 offen nt")
        if i < 3: a("s_add_u32 s40, s40, s42")
    a("""
    s_barrier
    s_branch L_X2
    L_S:
    s_cmp_eq_u32 s5, 0
    s_cbranch_scc1 L_S_bar
    v_lshlrev_b32 v9, 4, v0
    v_mov_b32 v4, 0
    v_mov_b32 v5, 0
    v_mov_b32 v6, 0
    v_mov_b32 v7, 0
    """ + "\n".join(f"ds_write_b128 v9, v[4:7] offset:{L_GT-10240+4096*t}" for t in range(5)) + """
    L_S_bar:
    s_waitcnt lgkmcnt(0)
    s_barrier
    s_cmp_lt_u32 s3, 8
    s_cbranch_scc1 L_S2
    s_cmp_ge_u32 s3, 9
    s_cbranch_scc1 L_D
    L_exit:
    s_endpgm
    """)

    a(f"""
    L_L:
    s_setprio 3
    v_lshlrev_b32 v20, 10, v3
    v_lshl_add_u32 v20, v2, 4, v20
    s_lshl_b32 s44, s3, 2
    s_add_u32 s44, s44, {L_KRDY}
    """)
    sel_masks()
    landed = 0
    for n in range(WA0, 32):
        w = min(WA, WA0 + (n - WA0 + 1) // 2)
        prev = landed
        if n - landed >= w:
            a(f"s_waitcnt vmcnt({w-1})")
            landed = n - w + 1
        l_issue(n)
        if prev < opt["qgo"] <= landed: set_flag(L_QGO)
        if prev < 16 <= landed: set_flag("s44")
        if DYN and n == 31 - opt["cda"]: bump(L_CGO)
        if n == 31 - opt["vd"]: bump(L_VISS)
    assert landed >= 16
    stamp(3)
    get_tag()
    a(f"""
    v_bfe_u32 v11, v1, 3, 1
    v_lshlrev_b32 v11, 10, v11
    v_lshl_add_u32 v11, v3, 4, v11
    s_lshl_b32 s41, s3, 8
    v_add_u32 v11, s41, v11
    s_lshl_b32 s45, s7, 10
    s_add_u32 s45, s45, {WS_OP}
    s_add_u32 s46, s45, {LOC}
    """)
    spin("\n".join(f"ds_read_b128 {vr(16+4*b)}, v11 offset:{L_XNP+64*b}" for b in range(4)), maxchain(range(16, 32)))
    stamp(4)
    for i in range(2): build_op(32 + 4 * i, 16 + i)
    nb = 2
    for i in range(16):
        a(f"s_waitcnt vmcnt({15-i})")
        a(f"{MF} v[12:15], {vr(32+4*(i%8))}, {vr(64+4*i)}, {'0' if i == 0 else 'v[12:15]'}")
        for _ in range(1 if i < 6 else 2):
            if nb < 16: build_op(32 + 4 * (nb % 8), 16 + nb); nb += 1
        if i == 11:
            a("""
            s_lshl_b32 s41, s3, 10
            v_lshlrev_b32 v17, 4, v1
            v_add_u32 v18, s41, v17
            """)
            lin_addr(19)
            la_prep(L_CNT0)
    stamp(5)
    a(f"ds_write_b128 v18, v[12:15] offset:{L_OT}")
    last_arriver(1, "L_wave_end", [f"ds_read_b128 {vr(32+4*t)}, v19 offset:{L_OT+1024*t}" for t in range(4)])
    a("s_waitcnt lgkmcnt(2)")
    add4(32, 32, 36)
    a("s_waitcnt lgkmcnt(0)")
    add4(40, 40, 44); add4(32, 32, 40)
    tag4(32)
    a("buffer_store_dwordx4 v[32:35], v17, s[12:15], s46 offen")
    set_flag(L_DONE)
    a("buffer_store_dwordx4 v[32:35], v17, s[12:15], s45 offen sc1")
    stamp(6)
    finish_wave()

    a(f"""
    L_S2:
    s_sub_u32 s49, s3, 4
    s_lshl_b32 s41, s49, 14
    s_add_u32 s41, s41, {L_BIG}
    v_lshl_add_u32 v11, v2, 8, s41
    """)
    for st in range(4):
        a(f"v_or_b32 v{12+st}, {4*st}, v3")
        a(f"v_xor_b32 v{12+st}, v{12+st}, v2")
        a(f"v_lshl_add_u32 v{12+st}, v{12+st}, 4, v11")
    a(f"""
    v_cmp_eq_u32 s[54:55], 1, v3
    v_cmp_eq_u32 s[56:57], 2, v3
    v_cmp_eq_u32 s[58:59], 3, v3
    s_lshl_b32 s53, s49, 2
    s_add_u32 s47, s53, {L_KRDY}
    v_mov_b32 v4, s53
    v_mov_b32 v5, 0
    s_lshl_b32 s48, s49, 8
    v_lshl_add_u32 v6, v1, 2, s48
    """)
    get_tag()
    wait_flag("s47", sleep=2)
    stamp(4)
    a("s_waitcnt vmcnt(0)")
    for t in range(4):
        for st in range(4):
            a(f"ds_read_b128 {vr(64+16*t+4*st)}, v{12+st} offset:{t*4096}")
    a("""
    v_and_b32 v11, 1, v1
    v_lshlrev_b32 v11, 8, v11
    v_lshl_add_u32 v11, v3, 4, v11
    """)
    wait_flag(L_QFLAG)
    stamp(2)
    for st in range(4): a(f"ds_read_b128 {vr(16+4*st)}, v11 offset:{L_QL+64*st}")
    for st in range(4):
        a(f"s_waitcnt lgkmcnt({3-st})")
        for t in range(4):
            a(f"{MF} {vr(32+4*t)}, {vr(16+4*st)}, {vr(64+16*t+4*st)}, {'0' if st == 0 else vr(32+4*t)}")
    a(f"""
    s_mov_b32 s48, {f32bits(128**-0.5 * 1.4426950408889634)}
    v_cndmask_b32 v32, v32, v36, s[54:55]
    v_cndmask_b32 v33, v33, v37, s[54:55]
    v_cndmask_b32 v32, v32, v40, s[56:57]
    v_cndmask_b32 v33, v33, v41, s[56:57]
    v_cndmask_b32 v32, v32, v44, s[58:59]
    v_cndmask_b32 v33, v33, v45, s[58:59]
    v_mul_f32 v32, s48, v32
    v_mul_f32 v33, s48, v33
    v_mov_b32 v34, v32
    v_mov_b32 v35, v33
    """)
    wave_reduce("v_max_f32", (34, 35))
    a(f"""
    s_mov_b32 exec_lo, 0
    s_mov_b32 exec_hi, 0x80000000
    ds_write_b32 v4, v34 offset:{L_STM}
    ds_write_b32 v4, v35 offset:{L_STM+16}
    s_mov_b64 exec, -1
    """)
    spin(f"ds_read_b128 v[36:39], v5 offset:{L_STM}\nds_read_b128 v[40:43], v5 offset:{L_STM+16}", maxchain(range(36, 44)), sleep=0)
    a(f"""
    v_max3_f32 v36, v36, v37, v38
    v_max3_f32 v40, v40, v41, v42
    v_max_f32 v36, v36, v39
    v_max_f32 v40, v40, v43
    v_sub_f32 v32, v32, v36
    v_sub_f32 v33, v33, v40
    v_exp_f32 v32, v32
    v_exp_f32 v33, v33
    v_cvt_pk_bf16_f32 v32, v32, v32
    v_cvt_pk_bf16_f32 v33, v33, v33
    ds_write_b32 v6, v32 offset:{L_XNP}
    ds_write_b32 v6, v33 offset:{L_XNP+1024}
    v_and_b32 v34, 0xffff0000, v32
    v_and_b32 v35, 0xffff0000, v33
    """)
    stamp(3)
    wave_reduce("v_add_f32", (34, 35))
    la_prep(L_CNT1)
    a(f"""
    v_lshrrev_b32 v5, 5, v1
    v_lshlrev_b32 v5, 4, v5
    s_mov_b32 exec_lo, 0
    s_mov_b32 exec_hi, 0x80000000
    ds_write_b32 v4, v34 offset:{L_STL}
    ds_write_b32 v4, v35 offset:{L_STL+16}
    """)
    last_arriver(1, "L_wave_end", [f"ds_read_b128 v[44:47], v5 offset:{L_STL}"])
    a(f"""
    v_cmp_lt_u32 vcc, 31, v1
    v_lshlrev_b32 v5, 2, v5
    v_lshl_add_u32 v5, v2, 4, v5
    v_cndmask_b32 v36, v36, v40, vcc
    s_lshl_b32 s45, s7, 7
    s_add_u32 s45, s45, {WS_ST}
    s_add_u32 s46, s45, {LOC}
    s_waitcnt lgkmcnt(0)
    v_add_f32 v44, v44, v45
    v_add_f32 v46, v46, v47
    v_add_f32 v44, v44, v46
    v_and_or_b32 v28, v36, s50, v8
    v_lshl_or_b32 v29, v36, 8, v8
    v_and_or_b32 v30, v44, s50, v8
    v_mov_b32 v31, v8
    s_mov_b32 exec_lo, 15
    s_mov_b32 exec_hi, 15
    buffer_store_dwordx4 v[28:31], v5, s[12:15], s46 offen
    buffer_store_dwordx4 v[28:31], v5, s[12:15], s45 offen sc1
    s_mov_b64 exec, -1
    """)
    stamp(5)
    finish_wave()

    a(f"""
    L_X2:
    s_setprio 3
    s_mul_i32 s57, s6, 9
    s_add_u32 s46, s57, s3
    s_lshr_b32 s52, s46, 4
    s_and_b32 s48, s46, 15
    s_mul_i32 s48, s48, 36
    s_and_b32 s43, s4, 1
    s_mul_i32 s41, s43, 5
    s_lshr_b32 s44, s52, 1
    s_add_u32 s41, s41, s44
    s_and_b32 s44, s52, 1
    s_cmp_eq_u32 s52, 8
    s_cselect_b32 s41, 4, s41
    s_cselect_b32 s43, s43, s44
    s_lshr_b32 s44, s4, 1
    s_mul_i32 s44, s44, 9
    s_add_u32 s41, s41, s44
    s_mul_i32 s44, s43, 36
    s_add_u32 s44, s44, s41
    s_cmp_eq_u32 s43, 1
    s_cselect_b32 s8, s30, s28
    s_cselect_b32 s9, s31, s29
    s_lshl_b32 s41, s41, 8
    s_mul_i32 s40, s48, 9216
    s_add_u32 s40, s40, s41
    s_mov_b32 s10, {576*9216}
    s_movk_i32 s42, 9216
    v_mul_u32_u24 v{AW2}, 9216, v3
    v_lshlrev_b32 v{AW}, 2, v{AW2}
    v_lshl_add_u32 v{AW}, v2, 4, v{AW}
    v_lshl_add_u32 v{AW2}, v2, 4, v{AW2}
    """)
    if opt["fake"] & 1:
        a(f"""
        s_lshr_b32 s41, s41, 4
        s_and_b32 s40, s46, 15
        s_add_u32 s40, s40, s41
        s_mul_i32 s40, s40, 9216
        s_movk_i32 s42, 1024
        v_lshlrev_b32 v{AW}, 4, v1
        v_lshlrev_b32 v{AW2}, 4, v1
        """)
    def g_issue(k):
        if opt["fake"] & 1:
            if k: a("s_add_u32 s40, s40, s42")
            a(f"buffer_load_dwordx4 {vr(WU+4*k)}, v{AW}, s[8:11], s40 offen nt")
            return
        if k: a(f"s_add_u32 s40, s40, {13*9216 if k % 4 == 0 else 's42'}")
        a(f"buffer_load_dwordx4 {vr(WU+4*k)}, v{AW if k < 8 else AW2}, s[8:11], s40 offen nt")
    sel_masks()
    a(f"""
    v_bfe_u32 v{AXQ}, v1, 3, 1
    v_mul_u32_u24 v{AXQ}, 2304, v{AXQ}
    s_lshl_b32 s41, s48, 2
    v_add_u32 v{AXU}, s41, v{AXQ}
    v_lshl_add_u32 v{AXU2}, v3, 2, v{AXU}
    v_add_u32 v{AXU2}, 128, v{AXU2}
    v_lshl_add_u32 v{AXU}, v3, 4, v{AXU}
    s_lshl_b32 s41, s47, 2
    v_add_u32 v{AXQ}, s41, v{AXQ}
    v_lshl_add_u32 v{AXQ}, v3, 4, v{AXQ}
    v_lshlrev_b32 v{ALN}, 4, v1
    s_lshl_b32 s53, s52, 4
    s_sub_i32 s54, s53, s57
    s_add_i32 s55, s54, 16
    s_max_i32 s54, s54, 0
    s_min_i32 s55, s55, 9
    s_sub_u32 s90, s3, s54
    s_lshl_b32 s90, s90, 10
    s_sub_i32 s54, s55, s54
    s_sub_i32 s54, s54, 3
    s_mul_i32 s59, s53, 7282
    s_lshr_b32 s59, s59, 16
    s_sub_u32 s59, s6, s59
    s_mul_i32 s56, s44, 3
    s_add_u32 s56, s56, s59
    s_lshl_b32 s56, s56, 10
    s_add_u32 s56, s56, {WS_GUP}
    s_add_u32 s59, s56, {LOC}
    s_lshr_b32 s57, s57, 4
    s_sub_u32 s55, s52, s57
    s_mul_i32 s53, s55, 9216
    s_add_u32 s90, s90, s53
    s_lshl_b32 s55, s55, 2
    s_add_u32 s55, s55, {L_CNT0}
    s_lshl_b32 s58, s3, 10
    """)
    def tile_reads(base, tmp, addr):
        return [f"ds_read_b128 {vr(tmp+4*t)}, v{addr} offset:{base+1024*t}" for t in range(9)]
    gu_vals = f"ds_read_b128 {vr(V0)}, v{AXU}\nds_read_b128 {vr(V0+4)}, v{AXU} offset:64\nds_read_b32 v{V0+8}, v{AXU2}"
    def q_block():
        spin(f"ds_read_b128 {vr(V0)}, v{AXQ}", maxchain(range(V0, V0 + 4)))
        a(f"v_mov_b32 v10, {L_TAG}")
        a("ds_read_b32 v8, v10")
        stamp(2)
        for i in range(2): build_op(OPR + 4 * i, V0 + i)
        for i in range(4):
            a(f"{MF} {vr(D0)}, {vr(OPR+4*(i%2))}, {vr(WQ+4*i)}, {'0' if i == 0 else vr(D0)}")
            if i < 2: build_op(OPR + 4 * i, V0 + 2 + i)
        a(gu_vals)
        a(f"v_add_u32 v11, s58, v{ALN}")
        a(f"ds_write_b128 v11, {vr(D0)} offset:{L_BIG}")
        bump(L_CNT2)
        stamp(3)
        spin(gu_vals, maxchain(range(V0, V0 + 9)), preloaded=True)
    def g_mfma(k, wait=None):
        build_op(OPR + 4 * (k % 2), V0 + k)
        if wait is not None: a(f"s_waitcnt vmcnt({wait})")
        a(f"{MF} {vr(D0)}, {vr(OPR+4*(k%2))}, {vr(WU+4*k)}, {'0' if k == 0 else vr(D0)}")
    done = 0; landed = 0; qdone = False
    for k in range(9):
        n = 4 + k
        w = opt["wg"] if k < opt["gburst"] else opt["wg2"]
        if opt["fast4"] and w < opt["wg2"] and qdone:
            Lb = a.label("f4")
            a("s_cmp_ge_u32 s6, 12")
            a(f"s_cbranch_scc1 {Lb}")
            a(f"s_waitcnt vmcnt({w-1})")
            a(f"{Lb}:")
            w = opt["wg2"]
        if n - landed >= w:
            a(f"s_waitcnt vmcnt({w-1})")
            landed = n - w + 1
        g_issue(k)
        if not qdone and landed >= 4:
            q_block(); qdone = True
        if DYN and k == 8 - opt["cdg"]: bump(L_CGO)
        if k == 8 - opt["gd"]: bump(L_VISS)
        while qdone and 4 + done < landed:
            g_mfma(done); done += 1
    stamp(4)
    a(f"v_add_u32 v{AXQ}, s90, v{ALN}")
    lin_addr(AXU)
    a(f"v_add_u32 v{AXU}, s53, v{AXU}")
    la_prep("s55")
    for k in range(done, 9): g_mfma(k, 8 - k)
    stamp(5)
    a(f"ds_write_b128 v{AXQ}, {vr(D0)} offset:{L_GT}")
    last_arriver("s54", "L_wave_end", tile_reads(L_GT, 68, AXU))
    for t in range(4):
        a(f"s_waitcnt lgkmcnt({7-2*t})")
        add4(68 + 8 * t, 68 + 8 * t, 72 + 8 * t)
        if t == 1: add4(68, 68, 76)
    add4(84, 84, 92)
    a("s_waitcnt lgkmcnt(0)")
    add4(68, 68, 100); add4(68, 68, 84)
    tag4(68)
    a(f"buffer_store_dwordx4 v[68:71], v{ALN}, s[12:15], s59 offen")
    bump(L_DONE)
    a(f"buffer_store_dwordx4 v[68:71], v{ALN}, s[12:15], s56 offen sc1")
    stamp(6)
    finish_wave()

    a(f"""
    L_D:
    s_sub_u32 s49, s3, 9
    v_lshlrev_b32 v57, 4, v1
    s_lshl_b32 s41, s49, 11
    v_add_u32 v58, s41, v57
    """)
    lin_addr(57)
    a(f"""
    s_lshl_b32 s41, s49, 10
    v_add_u32 v57, s41, v57
    v_and_b32 v9, 7, v1
    v_lshlrev_b32 v9, 4, v9
    s_movk_i32 s41, {FPS}
    v_lshrrev_b32 v59, 3, v1
    v_mad_u32_u24 v59, v59, s41, v9
    v_bfe_u32 v60, v1, 3, 1
    v_and_b32 v10, 2, v3
    v_add3_u32 v60, v60, v10, 8
    v_mad_u32_u24 v60, v60, s41, v9
    s_cmp_eq_u32 s49, 1
    s_cselect_b32 s54, 0xffff, -1
    s_mov_b32 s55, s54
    s_cselect_b64 vcc, -1, 0
    v_cndmask_b32 v59, v59, v60, vcc
    v_bfe_u32 v9, v1, 2, 1
    v_cmp_eq_u32 vcc, 0, v9
    v_mov_b32 v10, 0xffff
    v_cndmask_b32 v4, 0, v10, vcc
    v_xor_b32 v5, v4, v10
    v_lshlrev_b32 v6, 16, v4
    v_lshlrev_b32 v7, 16, v5
    v_mov_b32 v122, {L_CNT3}
    v_mov_b32 v123, 1
    v_and_b32 v46, 3, v1
    v_mul_u32_u24 v46, 0x5555, v46
    v_mul_u32_u24 v44, 640, v2
    s_lshl_b32 s41, s49, 7
    s_add_u32 s41, s41, {L_VAL}
    v_and_b32 v65, 1, v1
    v_lshlrev_b32 v65, 5, v65
    v_bfe_u32 v9, v1, 3, 1
    v_lshl_add_u32 v65, v9, 4, v65
    v_lshlrev_b32 v56, 6, v9
    v_bfe_u32 v9, v1, 4, 1
    v_lshl_add_u32 v65, v9, 3, v65
    v_bfe_u32 v9, v1, 1, 1
    v_lshl_add_u32 v65, v9, 2, v65
    v_bfe_u32 v9, v1, 2, 1
    v_lshl_add_u32 v65, v9, 1, v65
    v_lshrrev_b32 v120, 5, v1
    v_lshl_add_u32 v65, v120, 6, v65
    v_add_u32 v65, s41, v65
    v_lshl_add_u32 v56, v3, 4, v56
    v_add_u32 v56, s41, v56
    v_and_b32 v121, 31, v1
    v_mul_u32_u24 v{AW}, 4608, v3
    v_lshrrev_b32 v9, 3, v2
    v_mul_u32_u24 v9, {18432-128}, v9
    v_lshl_add_u32 v{AW}, v2, 4, v{AW}
    v_add_u32 v{AW2}, v9, v{AW}
    """)
    for r in list(range(D0, D0 + 4)) + list(range(D1, D1 + 8)): a(f"v_mov_b32 v{r}, 0")
    get_tag()
    a("""
    s_mov_b32 s40, 0x01010101
    v_mul_lo_u32 v45, v8, s40
    s_cmp_eq_u32 s5, 1
    s_cbranch_scc1 L_DG
    """)
    def claim(role):
        if not DYN: return
        L = a.label("noclaim")
        a("s_cmp_lg_u32 s49, 0")
        a(f"s_cbranch_scc1 {L}")
        wait_value(L_CGO, (4, 9)[role] - 2, sleep=2)
        a(f"""
        s_lshl_b32 s41, s4, 2
        s_add_u32 s76, s36, s41
        s_addc_u32 s77, s37, 0
        s_mov_b32 s97, 1
        s_atomic_add s97, s[76:77], {128*role} glc
        s_waitcnt lgkmcnt(0)
        s_and_b32 s97, s97, 15
        """)
        if role == 1:
            a("""
            s_and_b32 s41, s4, 1
            s_sub_u32 s42, 14, s41
            s_add_u32 s43, s97, 12
            s_cmp_ge_u32 s43, s42
            s_cselect_b32 s41, s42, 0
            s_sub_u32 s43, s43, s41
            s_cmp_lt_u32 s97, s42
            s_cselect_b32 s97, s43, s97
            """)
        set_flag(L_TK, "s97")
        a(f"{L}:")
    def tile_scalars(role):
        ptr, nbytes = ((24, 4096 * 1152), (32, 4608 * 1152))[role]
        a(f"""
        s_add_u32 s40, s86, {32*role}
        s_lshl_b32 s43, s40, 7
        s_mul_i32 s41, s87, {12*FPS}
        s_add_u32 s43, s43, s41
        s_add_u32 s43, s43, {WS_FP}
        s_lshr_b32 s41, s40, 4
        s_and_b32 s40, s40, 15
        s_mul_i32 s42, s87, 60
        s_add_u32 s41, s41, s42
        s_lshl_b32 s41, s41, 7
        s_lshl2_add_u32 s44, s40, s41
        s_add_u32 s44, s44, {WS_HINT}
        s_lshl2_add_u32 s45, s86, s49
        s_mul_i32 s45, s45, 36864
        s_mul_i32 s41, s87, 384
        s_add_u32 s45, s45, s41
        s_add_u32 s46, s45, 18432
        s_mov_b32 s8, s{ptr}
        s_mov_b32 s9, s{ptr+1}
        s_mov_b32 s10, {nbytes}
        """)
    div3 = """
    s_mul_i32 s88, s97, 86
    s_lshr_b32 s88, s88, 8
    s_mul_i32 s87, s88, 3
    s_sub_u32 s87, s97, s87
    """
    ORDER = [[8, 9, 10, 11, 0, 1, 2, 3, 4, 5, 6, 7], [0, 8, 4, 1, 9, 5, 2, 10, 6, 3, 11, 7], [0, 1, 2, 3, 4, 5, 6, 7, 8, 9, 10, 11]][opt['order']]
    def tile_stream(role, p_issue, lo, n, mask):
        WL = opt["wlg" if role else "wl"]
        stamp(1)
        if opt["warm"] and not DYN: p_issue()
        wait_value(L_VISS, (4, 9)[role] - 2, sleep=1)
        stamp(2)
        if opt["fake"] & 4:
            a(f"""
            s_mul_i32 s45, s86, 3
            s_add_u32 s45, s45, s87
            s_lshl2_add_u32 s45, s45, s49
            s_mul_i32 s45, s45, 12288
            v_lshlrev_b32 v{AW}, 4, v1
            """)
        for k, j in enumerate(ORDER):
            if k >= WL: a(f"s_waitcnt vmcnt({WL-1})")
            if opt["fake"] & 4:
                a(f"buffer_load_dwordx4 {vr(W3+4*j)}, v{AW}, s[8:11], s45 offen nt")
                a("s_add_u32 s45, s45, 1024")
                continue
            if j < 8: a(f"buffer_load_dwordx4 {vr(W3+4*j)}, v{AW}, s[8:11], {'s45' if j < 4 else 's46'} offen offset:{(j%4)*1152} nt")
            else: a(f"buffer_load_dwordx4 {vr(W3+4*j)}, v{AW2}, s[8:11], s45 offen offset:{(j-8)*1152+256} nt")
        stamp(3)
        wait_value(L_DONE, "s58", sleep=0)
        L = a.label("hand")
        a(f"""
        s_waitcnt vmcnt(0)
        s_mov_b32 s51, 0
        {L}:
        s_add_u32 s51, s51, 1
        s_cmp_gt_u32 s51, {SPIN}
        s_cbranch_scc1 L_abort
        s_and_b32 s41, s51, {mask}
        s_cselect_b32 s42, {LOC}, 0
        """)
        p_issue()
        a("s_waitcnt vmcnt(0)")
        untag(lo, lo, n)
        a(f"s_cbranch_vccnz {L}")
        stamp(4)
        a("""
        s_mov_b64 exec, 1
        ds_add_rtn_u32 v11, v122, v123
        s_mov_b64 exec, -1
        """)
    def tile_tail():
        B = a.label("nohint")
        a(f"""
        v_cvt_pk_bf16_f32 v16, v16, v16
        ds_write_b16 v65, v16
        ds_read_b128 {vr(V0)}, v56
        s_waitcnt lgkmcnt(2)
        v_readfirstlane_b32 s84, v11
        s_cmp_eq_u32 s84, 1
        s_cbranch_scc0 {B}
        s_mov_b64 exec, 0xfff
        buffer_store_dword v45, v44, s[12:15], s44 offen sc1
        s_mov_b64 exec, -1
        {B}:
        s_waitcnt lgkmcnt(0)
        """)
        OP = [24, 28, 32, 36]
        for st in ["b0", "b2", (D1, 0, 32), "b1", (D2, 2, 32), "b3", (D1, 1, 40), (D2, 3, 40), (D0, 0, 0), (D0, 1, 8), (D0, 2, 16), (D0, 3, 24)]:
            if isinstance(st, str): build_op(OP[int(st[1])], V0 + int(st[1]))
            else: a(f"{SM} {vr(st[0])}, {vr(OP[st[1]])}, {vr(W3+st[2], 8)}, v46")
        stamp(5)
        for r in range(4): a(f"v_add_f32_dpp v{D1+r}, v{D2+r}, v{D1+r} row_ror:8 {DPPF}")
        a(f"""
        ds_write_b128 v58, {vr(D1)} offset:{L_T3+1024}
        ds_write_b128 v58, {vr(D0)} offset:{L_T3}
        s_cmp_ge_u32 s49, 2
        s_waitcnt lgkmcnt(0)
        s_barrier
        s_cbranch_scc1 L_wave_end
        """)
        for t in range(4): a(f"ds_read_b128 {vr(16+4*t)}, v57 offset:{L_T3+2048*t}")
        a("s_mov_b64 exec, s[54:55]")
        a("s_waitcnt lgkmcnt(2)")
        add4(16, 16, 20)
        a("s_waitcnt lgkmcnt(0)")
        add4(24, 24, 28); add4(16, 16, 24)
        tag4(16)
        a("buffer_store_dwordx4 v[16:19], v59, s[12:15], s43 offen sc1")
        stamp(6)
        finish_wave()
    a(f"""
    v_lshlrev_b32 v61, 12, v120
    v_lshl_add_u32 v61, v121, 2, v61
    v_and_b32 v10, 3, v1
    v_lshl_add_u32 v62, v120, 2, v10
    v_lshlrev_b32 v62, 7, v62
    s_mov_b32 s57, 0x07060501
    s_mov_b32 s58, 0
    """)
    if DYN and opt["warm"]:
        a(f"""
        s_lshl_b32 s41, s7, 10
        s_add_u32 s41, s41, {WS_OP+LOC}
        s_lshl_b32 s42, s49, 8
        s_add_u32 s41, s41, s42
        v_lshlrev_b32 v9, 2, v1
        buffer_load_dword v20, v9, s[12:15], s41 offen sc1
        """)
    claim(0); get_slot()
    a(f"""
    s_lshl2_add_u32 s89, s4, s97
    s_sub_u32 s89, s89, 12
    s_cmp_ge_u32 s97, 12
    s_cbranch_scc1 L_RD
    {div3}
    s_lshl2_add_u32 s86, s4, s88
    s_lshr_b32 s47, s86, 1
    s_lshl_b32 s48, s47, 10
    s_lshl_b32 s47, s47, 13
    s_and_b32 s41, s86, 1
    s_lshl_b32 s42, s41, 6
    s_add_u32 s48, s48, s42
    s_add_u32 s48, s48, {WS_ST}
    s_lshl_b32 s41, s41, 9
    s_add_u32 s47, s47, s41
    s_lshl_b32 s41, s49, 7
    s_add_u32 s47, s47, s41
    s_add_u32 s47, s47, {WS_OP}
    v_add_u32 v61, s47, v61
    v_add_u32 v62, s48, v62
    """)
    tile_scalars(0)
    a(f"s_mov_b32 s42, {LOC}")
    def o_issue():
        a("buffer_load_dwordx4 v[24:27], v62, s[12:15], s42 offen sc1")
        for k in range(4): a(f"buffer_load_dword v{20+k}, v61, s[12:15], s42 offen offset:{k*1024} sc1")
    tile_stream(0, o_issue, 20, 8, opt["lmask"])
    a(f"""
    v_perm_b32 v28, v24, v25, s57
    v_mov_b32 v29, v28
    v_max_f32_dpp v29, v29, v29 quad_perm:[1,0,3,2] {DPPF}
    v_max_f32_dpp v29, v29, v29 quad_perm:[2,3,0,1] {DPPF}
    v_sub_f32 v28, v28, v29
    v_exp_f32 v28, v28
    v_mul_f32 v26, v26, v28
    v_mul_f32_dpp v16, v28, v20 quad_perm:[0,0,0,0] {DPPF}
    v_mul_f32_dpp v18, v28, v22 quad_perm:[2,2,2,2] {DPPF}
    v_add_f32_dpp v26, v26, v26 quad_perm:[1,0,3,2] {DPPF}
    v_fmac_f32_dpp v16, v28, v21 quad_perm:[1,1,1,1] {DPPF}
    v_fmac_f32_dpp v18, v28, v23 quad_perm:[3,3,3,3] {DPPF}
    v_add_f32_dpp v26, v26, v26 quad_perm:[2,3,0,1] {DPPF}
    v_rcp_f32 v26, v26
    v_add_f32 v16, v16, v18
    v_mul_f32 v16, v16, v26
    """)
    tile_tail()
    c1 = -2.0 * 0.7978845608028654 * 1.4426950408889634
    a(f"""
    L_DG:
    v_lshlrev_b32 v47, 9, v120
    v_lshl_add_u32 v47, v121, 2, v47
    s_mov_b32 s59, {f32bits(0.044715 * c1)}
    v_mov_b32 v66, {f32bits(c1):#x}
    """)
    done_target_g("s58")
    claim(1); get_slot()
    a(f"""
    s_lshr_b32 s89, s4, 1
    s_add_u32 s89, s89, 32
    s_and_b32 s85, s4, 1
    s_lshl4_add_u32 s41, s85, s97
    s_cmp_eq_u32 s41, 29
    s_cbranch_scc1 L_RD
    s_cmp_ge_u32 s97, 14
    s_cbranch_scc1 L_wave_end
    {div3}
    s_mul_i32 s86, s85, 5
    s_add_u32 s86, s86, s88
    s_lshl1_add_u32 s41, s85, s87
    s_cmp_lt_u32 s97, 12
    s_cselect_b32 s86, s86, 4
    s_cselect_b32 s87, s87, s41
    s_cselect_b32 s48, {opt["lmask"]}, 0
    s_lshr_b32 s41, s4, 1
    s_mul_i32 s41, s41, 9
    s_add_u32 s86, s86, s41
    s_lshl_b32 s56, s88, 1
    s_add_u32 s57, s56, 1
    s_min_u32 s57, s57, 8
    """)
    for sl, msk in (("s56", "s[90:91]"), ("s57", "s[92:93]")):
        a(f"""
        s_bitcmp1_b32 {THREE:#x}, {sl}
        s_cselect_b64 {msk}, -1, 0
        s_cselect_b32 {sl}, 2, 1
        s_lshl_b32 {sl}, {sl}, 10
        """)
    a(f"""
    s_mul_i32 s47, s86, 3072
    s_lshl_b32 s41, s49, 7
    s_add_u32 s47, s47, s41
    s_add_u32 s47, s47, {WS_GUP}
    v_add_u32 v61, s47, v47
    v_add_u32 v62, {36*3072}, v61
    v_add_u32 v63, s56, v61
    v_add_u32 v64, s57, v62
    """)
    tile_scalars(1)
    a("s_cmp_eq_u32 s48, 0")
    a(f"s_cselect_b32 s42, 0, {LOC}")
    def h_issue():
        a("""
        buffer_load_dword v16, v61, s[12:15], s42 offen sc1
        buffer_load_dword v17, v62, s[12:15], s42 offen sc1
        buffer_load_dword v18, v61, s[12:15], s42 offen offset:1024 sc1
        buffer_load_dword v19, v62, s[12:15], s42 offen offset:1024 sc1
        buffer_load_dword v20, v63, s[12:15], s42 offen sc1
        buffer_load_dword v21, v64, s[12:15], s42 offen sc1
        """)
    tile_stream(1, h_issue, 16, 6, "s48")
    a("""
    v_cndmask_b32 v20, 0, v20, s[90:91]
    v_cndmask_b32 v21, 0, v21, s[92:93]
    v_pk_add_f32 v[16:17], v[16:17], v[18:19]
    v_pk_add_f32 v[16:17], v[16:17], v[20:21]
    v_cvt_pk_bf16_f32 v17, v16, v17
    v_lshlrev_b32 v16, 16, v17
    v_and_b32 v17, 0xffff0000, v17
    v_mul_f32 v18, v16, v16
    v_fma_f32 v18, v18, s59, v66
    v_mul_f32 v18, v18, v16
    v_exp_f32 v18, v18
    v_add_f32 v18, 1.0, v18
    v_rcp_f32 v18, v18
    v_mul_f32 v16, v16, v18
    v_cvt_pk_bf16_f32 v16, v16, v16
    v_and_b32 v16, 0xffff0000, v16
    v_mul_f32 v16, v16, v17
    """)
    tile_tail()
    a("L_wave_end:")
    finish_wave()

    def wait_hint(group, n):
        L = a.label("hint"); D = a.label("hinted")
        a(f"""
        v_readfirstlane_b32 s90, v8
        s_mul_i32 s41, s89, 5
        s_add_u32 s41, s41, {group}
        s_lshl_b32 s41, s41, 7
        s_add_u32 s41, s41, {WS_HINT}
        s_add_u32 s76, s38, s41
        s_addc_u32 s77, s39, 0
        s_mul_i32 s90, s90, 0x01010101
        s_mov_b32 s91, s90
        s_movk_i32 s51, 200
        {L}:
        s_load_dwordx{n} s[16:{15+n}], s[76:77], 0 glc
        s_sub_u32 s51, s51, 1
        s_cbranch_scc1 {D}
        s_waitcnt lgkmcnt(0)
        """)
        for k in range(n // 2): a(f"s_xor_b64 s[{16+2*k}:{17+2*k}], s[{16+2*k}:{17+2*k}], s[90:91]")
        for k in range(1, n // 2): a(f"s_or_b64 s[16:17], s[16:17], s[{16+2*k}:{17+2*k}]")
        a(f"s_cbranch_scc1 {L}")
        a(f"{D}:")
        a("s_waitcnt lgkmcnt(0)")
    a(f"""
    L_RD:
    s_mul_i32 s44, s89, {FPS}
    s_lshl_b32 s41, s49, 11
    s_add_u32 s44, s44, s41
    s_add_u32 s44, s44, {WS_FP}
    v_lshlrev_b32 v14, 4, v1
    s_lshl_b32 s41, s49, 10
    v_add_u32 v15, s41, v14
    """)
    wait_value(L_DONE, "s58", sleep=2)
    wait_hint("s49", 16)
    def fd_issue(r):
        a(f"buffer_load_dwordx4 {vr(r)}, v14, s[12:15], s44 offen sc1")
        a(f"buffer_load_dwordx4 {vr(r+4)}, v14, s[12:15], s44 offen offset:1024 sc1")
    poll(1, 8, 24, 24, fd_issue, 2)
    add4(24, 24, 28)
    a(f"""
    ds_write_b128 v15, v[24:27] offset:{L_T3}
    s_mov_b64 exec, 1
    ds_add_u32 v122, v123
    s_mov_b64 exec, -1
    """)
    finish_wave()

    def m_tag():
        a(f"""
        s_waitcnt lgkmcnt(0)
        s_add_u32 s52, s52, 1
        s_and_b32 s53, s52, 0xff
        v_mov_b32 v8, s53
        v_mov_b32 v13, {L_TAG}
        s_mov_b64 exec, 1
        ds_write_b32 v13, v8
        s_mov_b64 exec, -1
        """)
    a("""
    L_M2:
    s_cmp_eq_u32 s5, 0
    s_cbranch_scc1 L_MA
    s_waitcnt vmcnt(0)
    """)
    stamp(2)
    X = 16
    for t in range(9):
        a(f"v_lshlrev_b32 v{X+2*t}, 16, v{108+t}")
        a(f"v_and_b32 v{X+2*t+1}, 0xffff0000, v{108+t}")
    a(f"v_pk_add_f32 v[34:35], {vr(X,2)}, {vr(X+2,2)}")
    for t in range(2, 9): a(f"v_pk_add_f32 v[34:35], v[34:35], {vr(X+2*t,2)}")
    a("v_add_f32 v34, v34, v35")
    def half_reduce(r):
        for mode in ("quad_perm:[1,0,3,2]", "quad_perm:[2,3,0,1]", "row_half_mirror", "row_mirror"):
            a(f"v_add_f32_dpp v{r}, v{r}, v{r} {mode} {DPPF}")
        a(f"v_mov_b32 v{r+1}, v{r}")
        a(f"v_permlane16_swap_b32 v{r}, v{r+1}")
        a(f"v_add_f32 v{r}, v{r}, v{r+1}")
    half_reduce(34)
    a(f"v_mul_f32 v34, {f32bits(1.0/576):#x}, v34")
    a("v_mov_b32 v35, v34")
    for t in range(9): a(f"v_pk_add_f32 {vr(36+2*t,2)}, {vr(X+2*t,2)}, v[34:35] neg_lo:[0,1] neg_hi:[0,1]")
    a("v_pk_mul_f32 v[54:55], v[36:37], v[36:37]")
    for t in range(1, 9): a(f"v_pk_fma_f32 v[54:55], {vr(36+2*t,2)}, {vr(36+2*t,2)}, v[54:55]")
    a("v_add_f32 v54, v54, v55")
    half_reduce(54)
    a(f"""
    v_mul_f32 v54, {f32bits(1.0/576):#x}, v54
    v_cvt_pk_bf16_f32 v34, v34, v54
    v_and_b32 v54, 0xffff0000, v34
    v_lshlrev_b32 v34, 16, v34
    v_mov_b32 v35, v34
    v_add_f32 v54, {f32bits(1e-5):#x}, v54
    v_cvt_pk_bf16_f32 v54, v54, v54
    v_and_b32 v54, 0xffff0000, v54
    v_sqrt_f32 v54, v54
    v_cvt_pk_bf16_f32 v54, v54, v54
    v_and_b32 v54, 0xffff0000, v54
    v_rcp_f32 v54, v54
    v_lshrrev_b32 v11, 5, v1
    v_mul_u32_u24 v11, 2304, v11
    v_and_b32 v13, 31, v1
    v_mul_u32_u24 v13, 72, v13
    v_add_u32 v11, v11, v13
    v_mov_b32 v55, v54
    """)
    for t in range(9): a(f"v_pk_add_f32 {vr(X+2*t,2)}, {vr(X+2*t,2)}, v[34:35] neg_lo:[0,1] neg_hi:[0,1]")
    for t in range(9): a(f"v_cvt_pk_bf16_f32 v{36+t}, v{X+2*t}, v{X+2*t+1}")
    m_tag()
    for t in range(9):
        a(f"v_lshlrev_b32 v{X+2*t}, 16, v{36+t}")
        a(f"v_and_b32 v{X+2*t+1}, 0xffff0000, v{36+t}")
        a(f"v_pk_mul_f32 {vr(X+2*t,2)}, {vr(X+2*t,2)}, v[54:55]")
        a(f"v_cvt_pk_bf16_f32 v{X+2*t}, v{X+2*t}, v{X+2*t}")
        a(f"v_cvt_pk_bf16_f32 v{X+2*t+1}, v{X+2*t+1}, v{X+2*t+1}")
        a(f"ds_write_b64 v11, {vr(X+2*t,2)} offset:{L_XNP+8*t}")
    stamp(3)
    a(f"""
    v_lshlrev_b32 v14, 4, v1
    v_mov_b32 v15, {L_CNT2}
    """ + q_head("s44") + f"""
    s_and_b32 s41, s6, 3
    s_lshl2_add_u32 s44, s44, s41
    s_lshl_b32 s44, s44, 10
    s_add_u32 s44, s44, {WS_QP}
    s_add_u32 s45, s44, {LOC}
    """)
    spin("\n".join(["ds_read_b32 v10, v15"] + tile_reads(L_BIG, 16, 14)), "v_cmp_ne_u32 vcc, 7, v10", sleep=0)
    add4(16, 16, 20); add4(24, 24, 28); add4(32, 32, 36); add4(40, 40, 44)
    add4(16, 16, 24); add4(32, 32, 40); add4(16, 16, 48); add4(16, 16, 32)
    tag4(16)
    a("buffer_store_dwordx4 v[16:19], v14, s[12:15], s45 offen")
    a("buffer_store_dwordx4 v[16:19], v14, s[12:15], s44 offen sc1")
    stamp(1)
    done_target_g("s56")
    a("s_setprio 0")
    get_slot()
    a("""
    s_lshr_b32 s89, s4, 1
    s_add_u32 s89, s89, 32
    s_and_b32 s41, s4, 1
    s_lshl4_add_u32 s41, s41, s97
    s_cmp_eq_u32 s41, 29
    s_cbranch_scc1 L_R
    """)
    finish_wave()

    a(f"""
    L_MA:
    s_lshr_b32 s46, s7, 3
    s_lshl_b32 s46, s46, 13
    s_bfe_u32 s47, s6, 0x10002
    s_lshl_b32 s47, s47, 9
    s_add_u32 s46, s46, s47
    s_add_u32 s46, s46, {WS_QP}
    s_add_u32 s47, s46, {LOC}
    s_mov_b32 s48, 0
    v_lshrrev_b32 v11, 5, v1
    v_and_b32 v15, 31, v1
    v_lshlrev_b32 v14, 12, v11
    v_lshl_add_u32 v14, v15, 4, v14
    v_lshlrev_b32 v12, 8, v11
    v_lshl_add_u32 v12, v2, 4, v12
    v_and_b32 v9, 1, v3
    v_lshl_add_u32 v12, v9, 3, v12
    """)
    m_tag()
    def q_issue(r):
        a("s_add_u32 s48, s48, 1")
        a(f"s_and_b32 s41, s48, {opt['lmask']}")
        a("s_cselect_b32 s42, s47, s46")
        for i in range(4): a(f"buffer_load_dwordx4 {vr(r+4*i)}, v14, s[12:15], s42 offen offset:{i*1024} sc1")
    wait_flag(L_QGO, sleep=2)
    stamp(2)
    poll(opt["qsets"], 16, 16, 64, q_issue, 4, stag=opt["qstag"])
    add4(16, 16, 20); add4(24, 24, 28); add4(16, 16, 24)
    a(f"""
    v_cvt_pk_bf16_f32 v16, v16, v17
    v_cvt_pk_bf16_f32 v17, v18, v19
    ds_write_b64 v12, v[16:17] offset:{L_QL}
    """)
    set_flag(L_QFLAG)
    stamp(3)
    get_slot()
    a("""
    s_lshl2_add_u32 s89, s4, s97
    s_sub_u32 s89, s89, 12
    s_mov_b32 s56, 0
    s_cmp_lt_u32 s97, 12
    s_cbranch_scc1 L_wave_end
    """)

    a(f"""
    L_R:
    s_mul_i32 s46, s89, {FPS}
    s_add_u32 s46, s46, {WS_FP+8192}
    v_lshlrev_b32 v14, 4, v1
    s_mul_i32 s41, s89, 43
    s_lshr_b32 s41, s41, 9
    s_mul_i32 s42, s41, 12
    s_sub_u32 s42, s89, s42
    s_mul_i32 s41, s41, 192
    s_cmp_ge_u32 s42, 8
    s_cbranch_scc1 L_R_hi
    s_lshr_b32 s43, s42, 2
    s_and_b32 s48, s42, 3
    s_lshl_b32 s48, s48, 5
    s_branch L_R_col
    L_R_hi:
    s_bfe_u32 s43, s42, 0x10001
    s_and_b32 s48, s42, 1
    s_lshl_b32 s48, s48, 5
    s_add_u32 s48, s48, 128
    L_R_col:
    s_mul_i32 s43, s43, 576
    s_add_u32 s41, s41, s43
    s_add_u32 s41, s41, s48
    s_lshl_b32 s41, s41, 1
    v_and_b32 v12, 7, v1
    v_lshlrev_b32 v12, 3, v12
    v_and_b32 v13, 1, v3
    v_lshl_add_u32 v12, v13, 2, v12
    v_add_u32 v12, s41, v12
    v_min_u32 v12, 2300, v12
    global_load_dword v13, v12, s[16:17]
    v_mov_b32 v48, 0
    v_mov_b32 v49, 0
    v_mov_b32 v50, 0
    v_mov_b32 v51, 0
    v_mov_b32 v15, {L_CNT3}
    s_mov_b32 s43, {f32bits(-1.4426950408889634)}
    """)
    wait_value(L_DONE, "s56", sleep=2)
    stamp(4)
    wait_hint(4, 4)
    a("s_mov_b32 exec_hi, 0")
    poll(1, 4, 48, 48, lambda r: a(f"buffer_load_dwordx4 {vr(r)}, v14, s[12:15], s46 offen sc1"), 1)
    a("""
    s_mov_b32 exec_hi, -1
    v_lshlrev_b32 v22, 16, v13
    v_and_b32 v23, 0xffff0000, v13
    """)
    spin("\n".join(["ds_read_b32 v10, v15"] + [f"ds_read_b128 {vr(r)}, v14 offset:{L_T3+1024*t}" for t, r in enumerate((16, 24, 32, 36))]),
         "v_cmp_ne_u32 vcc, 2, v10", sleep=0)
    stamp(5)
    add4(16, 16, 24); add4(32, 32, 36); add4(32, 32, 48)
    for r in range(4): a(f"v_permlane32_swap_b32 v{16+r}, v{32+r}")
    add4(16, 16, 32)
    a(f"""
    v_permlane16_swap_b32 v16, v18
    v_permlane16_swap_b32 v17, v19
    v_pk_add_f32 v[16:17], v[16:17], v[18:19]
    v_add_f32_dpp v16, v16, v16 row_ror:8 {DPPF}
    v_add_f32_dpp v17, v17, v17 row_ror:8 {DPPF}
    v_cvt_pk_bf16_f32 v16, v16, v17
    v_mov_b32 v17, v16
    v_permlane32_swap_b32 v16, v17
    v_lshlrev_b32 v18, 16, v17
    v_and_b32 v19, 0xffff0000, v17
    v_mul_f32 v20, s43, v18
    v_mul_f32 v21, s43, v19
    v_exp_f32 v20, v20
    v_exp_f32 v21, v21
    v_add_f32 v20, 1.0, v20
    v_add_f32 v21, 1.0, v21
    v_rcp_f32 v20, v20
    v_rcp_f32 v21, v21
    v_mul_f32 v18, v18, v20
    v_mul_f32 v19, v19, v21
    v_cvt_pk_bf16_f32 v17, v18, v19
    v_lshlrev_b32 v20, 16, v16
    v_and_b32 v21, 0xffff0000, v16
    v_lshlrev_b32 v18, 16, v17
    v_and_b32 v19, 0xffff0000, v17
    v_mul_f32 v18, v18, v20
    v_mul_f32 v19, v19, v21
    v_cvt_pk_bf16_f32 v17, v18, v19
    v_lshlrev_b32 v18, 16, v17
    v_and_b32 v19, 0xffff0000, v17
    v_add_f32 v18, v18, v22
    v_add_f32 v19, v19, v23
    s_mov_b32 exec_lo, 0x00ff00ff
    s_mov_b32 exec_hi, 0
    v_cvt_pk_bf16_f32 v17, v18, v19
    global_store_dword v12, v17, s[34:35]
    s_cmp_lg_u32 s89, 0
    s_cbranch_scc1 L_R_done
    s_mov_b64 exec, 1
    v_mov_b32 v18, {WS_EPOCH}
    v_mov_b32 v19, s52
    buffer_store_dword v19, v18, s[12:15], 0 offen
    L_R_done:
    """)
    stamp(6)
    finish_wave()

    a("L_abort:")
    if stamps:
        a("s_mov_b32 s74, -1")
        a(f"""
        L_dump:
        s_mov_b64 exec, -1
        s_waitcnt lgkmcnt(0)
        s_lshl_b32 s41, s2, 4
        s_add_u32 s41, s41, s3
        s_add_u32 s41, s41, 1
        s_lshl_b32 s41, s41, 5
        s_add_u32 s41, s41, {WS_STAMP}
        v_mov_b32 v9, s41
        """)
        for i in range(8): a(f"v_mov_b32 v{i}, s{60+2*i}")
        a("""
        s_mov_b64 exec, 1
        buffer_store_dwordx4 v[0:3], v9, s[12:15], 0 offen
        buffer_store_dwordx4 v[4:7], v9, s[12:15], 0 offen offset:16
        """)
    a("s_endpgm")
    body = a.finish()
    init = "\n".join(f"    s_mov_b32 s{60+2*i}, 0" for i in range(1, 8)) + "\n" if stamps else ""
    hdr = open("cdna_kernels/" + NAME + ".s.ref").read().split("; Override launch")[0]
    return f"""{hdr}; @launch grid=(256,1,1) block=({NW*64},1,1) lds={LDS_BYTES}
.amdgcn_target "amdgcn-amd-amdhsa--gfx950"
.text
.globl {NAME}_kernel
.p2align 12
.p2align 8
.type {NAME}_kernel,@function
{NAME}_kernel:
{init}{body}
KERNEL_END:
.section .rodata,"a"
.p2align 6
.amdhsa_kernel {NAME}_kernel
  .amdhsa_next_free_vgpr 128
  .amdhsa_next_free_sgpr 100
  .amdhsa_accum_offset 128
  .amdhsa_group_segment_fixed_size 0
  .amdhsa_kernarg_size 96
  .amdhsa_user_sgpr_count 2
  .amdhsa_user_sgpr_kernarg_segment_ptr 1
  .amdhsa_system_sgpr_workgroup_id_x 1
.end_amdhsa_kernel
"""

THREE = sum(1 << s for s in range(9) if (16 * s + 15) // 9 - (16 * s) // 9 == 2)

def emit(name, stamps, opt):
    import hb, subprocess
    open(name + ".s", "w").write(gen(stamps, opt)); hb.build(name + ".s")
    r = subprocess.run([sys.executable, "../cdna_kernels/cdna_unwritten_srd_check.py", name + ".co", "--entry", NAME + "_kernel"], capture_output=True, text=True)
    if ": ok:" not in r.stdout: print(r.stdout[-2500:])

if __name__ == "__main__":
    emit("k20", False, {}); emit("ks20", True, {})
    print("built", hex(THREE))
```

```python
import sys, struct
from asmlib import Asm

NAME = "recurrent_scan__sliding_block_cached__geglu_ffn__decode"
NW = 14
WS_EPOCH = 0
WS_QP = 0x1000
WS_ST = WS_QP + 128 * 1024
WS_GUP = WS_ST + 128 * 128
WS_OP = WS_GUP + 216 * 1024
LOC = 488 * 1024
WS_FP = WS_QP + 2 * LOC
FPS = 72 * 128
WS_HINT = WS_FP + 36 * FPS
WS_STAMP = 8 << 20
L_XNP = 0
L_VAL = 4608
L_STM, L_STL = 5632, 5664
L_TAG, L_QFLAG, L_CNT0, L_CNT1, L_CNT2, L_CNT3, L_DONE, L_QGO = 5760, 5764, 5768, 5772, 5776, 5780, 5784, 5788
L_KRDY, L_VISS, L_CGO, L_TK, L_E1, L_CNT4, L_FLUSH = 5792, 5808, 5812, 5816, 5820, 5824, 5828
L_QL = 7168
L_OT = 8192
L_T3 = 12288
L_BIG = 20480
L_GT = L_BIG + 9216
LDS_BYTES = 86016
SPIN = 1000000
MF = "v_mfma_f32_16x16x32_bf16"
SM = "v_smfmac_f32_16x16x64_bf16"
DPPF = "row_mask:0xf bank_mask:0xf"

def f32bits(x): return struct.unpack("<I", struct.pack("<f", x))[0]
def vr(r, n=4): return f"v[{r}:{r+n-1}]"

DEF = dict(wa0=4, wa=8, wg=2, wg2=3, gburst=9, wl=6, wlg=6, vd=3, gd=0, qgo=6, qsets=2, qstag=12, lmask=7,
           warm=1, dyn=0, cda=12, cdg=5, fast4=1, perm=1, order=1, fake=0, hp=-1, hb=0, wpl=4, unev=0, cut=0, nog=0, dfr=1, kf=7, fd=1, stl=0, xp=0, pst=1, fw=0, hs=1, hst=4, warmq=0, g1=0)

def gen(stamps=False, opt=None):
    o_ = dict(DEF); o_.update(opt or {}); opt = o_
    a = Asm()
    DYN = opt["dyn"]
    WPL = opt["wpl"]; NLN = 5 * 16 // WPL
    def stamp(i):
        if stamps: a(f"s_memrealtime s[{60+2*i}:{61+2*i}]")
    def finish_wave():
        if stamps:
            stamp(7); a("s_branch L_dump")
        else:
            a("s_endpgm")
    def spin(reads, check, sleep=1, preloaded=False):
        L = a.label("spin"); D = a.label("spun"); C = a.label("chk")
        a(f"s_mov_b32 s51, {SPIN}")
        if preloaded: a(f"s_branch {C}")
        a(f"{L}:")
        a(reads)
        if preloaded: a(f"{C}:")
        a("s_waitcnt lgkmcnt(0)")
        a(check)
        a(f"s_cbranch_vccz {D}")
        a("s_sub_u32 s51, s51, 1")
        a("s_cbranch_scc1 L_abort")
        if sleep: a(f"s_sleep {sleep}")
        a(f"s_branch {L}")
        a(f"{D}:")
    def chain(op3, op2, regs, tmp):
        out = []; rs = list(regs); cur = rs.pop(0)
        while rs:
            if len(rs) >= 2:
                out.append(f"{op3} v{tmp}, v{cur}, v{rs[0]}, v{rs[1]}"); rs = rs[2:]
            else:
                out.append(f"{op2} v{tmp}, v{cur}, v{rs[0]}"); rs = rs[1:]
            cur = tmp
        return out, cur
    def maxchain(regs):
        out, cur = chain("v_max3_u32", "v_max_u32", regs, 9)
        return "\n".join(out + [f"v_cmp_eq_u32 vcc, -2, v{cur}"])
    def untag(dst, src, n):
        for r in range(n): a(f"v_xor_b32 v{dst+r}, v{src+r}, v8")
        out, cur = chain("v_or3_b32", "v_or_b32", range(dst, dst + n), 9)
        a("\n".join(out + [f"v_and_b32 v9, 0xff, v{cur}", "v_cmp_ne_u32 vcc, 0, v9"]))
    def poll(nsets, n, canon, raw0, issue, nloads, stag=1):
        L = a.label("poll"); D = a.label("polled")
        a(f"s_mov_b32 s51, {SPIN}")
        for k in range(nsets):
            issue(raw0 + k * n)
            if k < nsets - 1: a(f"s_sleep {stag}")
        a(f"{L}:")
        for k in range(nsets):
            a(f"s_waitcnt vmcnt({(nsets-1)*nloads})")
            untag(canon, raw0 + k * n, n)
            a(f"s_cbranch_vccz {D}")
            issue(raw0 + k * n)
        a("s_sub_u32 s51, s51, 1")
        a("s_cbranch_scc1 L_abort")
        a(f"s_branch {L}")
        a(f"{D}:")
    def poll1(n, reg, issue):
        L = a.label("again"); F = a.label("first")
        a(f"""
        s_branch {F}
        {L}:
        s_sub_u32 s51, s51, 1
        s_cbranch_scc1 L_abort
        {F}:
        """)
        issue(reg)
        a("s_waitcnt vmcnt(0)")
        untag(reg, reg, n)
        a(f"s_cbranch_vccnz {L}")
    def sel_masks():
        a("""
        v_and_b32 v9, 1, v1
        v_lshlrev_b32 v9, 4, v9
        v_mov_b32 v10, 0xffff
        v_lshlrev_b32 v10, v9, v10
        v_bfe_u32 v9, v1, 1, 2
        v_cmp_eq_u32 s[76:77], 0, v9
        v_cmp_eq_u32 s[78:79], 1, v9
        v_cmp_eq_u32 s[80:81], 2, v9
        v_cmp_eq_u32 s[82:83], 3, v9
        v_cndmask_b32 v4, 0, v10, s[76:77]
        v_cndmask_b32 v5, 0, v10, s[78:79]
        v_cndmask_b32 v6, 0, v10, s[80:81]
        v_cndmask_b32 v7, 0, v10, s[82:83]
        """)
    def get_tag():
        a(f"v_mov_b32 v9, {L_TAG}")
        spin("ds_read_b32 v8, v9", "v_cmp_eq_u32 vcc, -2, v8")
    def wait_flag(addr, sleep=1):
        a(f"v_mov_b32 v9, {addr}")
        spin("ds_read_b32 v10, v9", "v_cmp_eq_u32 vcc, -2, v10", sleep=sleep)
    def wait_value(addr, val, sleep=1):
        a(f"v_mov_b32 v9, {addr}")
        spin("ds_read_b32 v10, v9", f"v_cmp_ne_u32 vcc, {val}, v10", sleep=sleep)
    def lane0(op, addr, val):
        a(f"""
        v_mov_b32 v9, {addr}
        v_mov_b32 v10, {val}
        s_mov_b64 exec, 1
        {op} v9, v10
        s_mov_b64 exec, -1
        """)
    def set_flag(addr, val=0): lane0("ds_write_b32", addr, val)
    def bump(addr): lane0("ds_add_u32", addr, 1)
    def build_op(dst, val):
        for t in range(4): a(f"v_and_b32 v{dst+t}, v{val}, v{4+t}")
    def tag4(r):
        for t in range(4): a(f"v_and_or_b32 v{r+t}, v{r+t}, s50, v8")
    def add4(d, x, y):
        a(f"v_pk_add_f32 {vr(d,2)}, {vr(x,2)}, {vr(y,2)}")
        a(f"v_pk_add_f32 {vr(d+2,2)}, {vr(x+2,2)}, {vr(y+2,2)}")
    def wave_reduce(op, regs):
        for mode in ("quad_perm:[1,0,3,2] row_mask:0xf", "quad_perm:[2,3,0,1] row_mask:0xf", "row_half_mirror row_mask:0xf",
                     "row_mirror row_mask:0xf", "row_bcast:15 row_mask:0xa", "row_bcast:31 row_mask:0xc"):
            for r in regs: a(f"{op}_dpp v{r}, v{r}, v{r} {mode} bank_mask:0xf")
    def la_prep(cnt):
        a(f"v_mov_b32 v9, {cnt}")
        a("v_mov_b32 v10, 1")
    def last_arriver(expect, skip, reads, r0=9):
        a(f"""
        s_mov_b64 exec, 1
        ds_add_rtn_u32 v11, v{r0}, v{r0+1}
        s_mov_b64 exec, -1
        """)
        for r in reads: a(r)
        a(f"""
        s_waitcnt lgkmcnt({len(reads)})
        v_readfirstlane_b32 s84, v11
        s_cmp_eq_u32 s84, {expect}
        s_cbranch_scc0 {skip}
        """)
    def lin_addr(r):
        a(f"""
        v_and_b32 v{r}, 33, v1
        v_mul_u32_u24 v{r}, 0x110, v{r}
        v_and_b32 v{r}, 0x300, v{r}
        v_bfe_u32 v9, v1, 1, 4
        v_lshl_add_u32 v{r}, v9, 4, v{r}
        """)
    def done_target_g(dst):
        a(f"""
        s_mul_i32 s41, s6, 9
        s_add_u32 s42, s41, 8
        s_lshr_b32 s41, s41, 4
        s_lshr_b32 s42, s42, 4
        s_sub_u32 {dst}, s42, s41
        s_sub_u32 {dst}, {dst}, 1
        """)
    def q_head(dst):
        if not opt["perm"]: return f"s_lshr_b32 {dst}, s7, 2"
        return f"""
        s_and_b32 {dst}, s6, 12
        s_lshr_b32 {dst}, 0x1320, {dst}
        s_and_b32 {dst}, {dst}, 3
        s_lshl2_add_u32 {dst}, s4, {dst}
        """
    def get_slot():
        if not DYN:
            a("s_mov_b32 s97, s6"); return
        wait_flag(L_TK, sleep=2)
        a("v_readfirstlane_b32 s97, v10")

    def defer(skip="L_wave_end"):
        if opt["dfr"]:
            a("s_setprio 0")
            if opt["xp"] & 1: a("s_branch " + skip); return
            wait_flag(L_FLUSH, sleep=4)
    WQ, WU, W3, OPR, V0, D0, D1, D2 = 16, 32, 68, 104, 116, 12, 48, 52
    AXQ, AXU, AXU2, ALN, AW, AW2 = 112, 113, 114, 115, 125, 126

    stamp(0)
    a(f"""
    s_cmp_ge_u32 s2, 256
    s_cbranch_scc1 L_exit
    s_load_dwordx16 s[16:31], s[0:1], 0
    s_load_dwordx8 s[32:39], s[0:1], 64
    s_load_dwordx2 s[12:13], s[0:1], 88
    s_getpc_b64 s[40:41]
    L_pc:
    v_lshlrev_b32 v9, 4, v0
    v_min_u32 v9, KERNEL_END-L_pc-4, v9
    global_load_dword v67, v9, s[40:41]
    v_lshrrev_b32 v2, 6, v0
    v_and_b32 v1, 63, v0
    v_readfirstlane_b32 s3, v2
    v_lshlrev_b32 v9, 3, v0
    v_mov_b32 v4, -2
    v_mov_b32 v5, -2
    ds_write_b64 v9, v[4:5]
    s_and_b32 s4, s2, 7
    s_lshr_b32 s6, s2, 4
    s_bfe_u32 s5, s2, 0x10003
    s_lshl_b32 s7, s4, 4
    s_add_u32 s7, s7, s6
    v_and_b32 v2, 15, v1
    v_lshrrev_b32 v3, 4, v1
    s_mov_b32 s50, 0xffffff00
    s_mov_b32 s11, 0x20000
    s_mov_b32 s14, 0x1000000
    s_mov_b32 s15, 0x20000
    s_sub_u32 s3, s3, 1
    s_cbranch_scc0 L_notM
    s_setprio 3
    v_lshrrev_b32 v11, 5, v1
    v_mul_u32_u24 v11, 1152, v11
    v_and_b32 v12, 31, v1
    v_mul_u32_u24 v12, 36, v12
    v_add_u32 v11, v11, v12
    s_cmp_eq_u32 s5, 0
    s_waitcnt lgkmcnt(0)
    s_cbranch_scc1 L_M_nox
    global_load_dwordx4 v[108:111], v11, s[16:17]
    global_load_dwordx4 v[112:115], v11, s[16:17] offset:16
    global_load_dword v116, v11, s[16:17] offset:32
    L_M_nox:
    s_load_dword s52, s[38:39], {WS_EPOCH}
    s_barrier
    s_branch L_M2
    L_notM:
    s_cmp_ge_u32 s3, 9
    s_cbranch_scc1 L_S
    s_cmp_eq_u32 s5, 1
    s_cbranch_scc1 L_X
    s_cmp_ge_u32 s3, 4
    s_cbranch_scc1 L_S
    s_bfe_u32 s40, s6, 0x10002
    s_lshl_b32 s40, s40, 4
    s_lshr_b32 s41, s7, 3
    s_add_u32 s40, s40, s41
    s_lshl_b32 s40, s40, 20
    s_and_b32 s41, s6, 3
    s_lshl_b32 s41, s41, 16
    s_add_u32 s40, s40, s41
    s_lshl_b32 s41, s3, 14
    s_add_u32 s40, s40, s41
    s_add_u32 s40, s40, {3072*256}
    s_mov_b32 s42, s40
    s_add_u32 s41, s41, {L_BIG}
    s_mov_b32 m0, s41
    v_lshlrev_b32 v9, 8, v3
    """)
    for q in range(4):
        a(f"v_add_u32 v{16+q}, {4*q}, v3")
        a(f"v_xor_b32 v{16+q}, v{16+q}, v2")
        a(f"v_lshl_add_u32 v{16+q}, v{16+q}, 4, v9")
    a("""
    s_mov_b32 s10, 33554432
    s_waitcnt lgkmcnt(0)
    s_mov_b32 s8, s18
    s_mov_b32 s9, s19
    """)
    stamp(1)
    def l_issue(i):
        if i < 16:
            if i and i % 4 == 0:
                a("s_add_u32 s41, s41, 4096"); a("s_mov_b32 m0, s41"); a("s_add_u32 s40, s40, 4096")
            a(f"buffer_load_dwordx4 v{16+i%4}, s[8:11], s40 offen offset:{(i%4)*1024} nt lds")
        else:
            k = i - 16
            if k == 0:
                a("s_mov_b32 s8, s20"); a("s_mov_b32 s9, s21")
            if k and k % 4 == 0: a("s_add_u32 s42, s42, 4096")
            a(f"buffer_load_dwordx4 {vr(64+4*k)}, v20, s[8:11], s42 offen offset:{(k%4)*256} nt")
    WA0, WA = opt["wa0"], opt["wa"]
    for i in range(WA0): l_issue(i)
    a("""
    s_barrier
    s_branch L_L
    L_X:
    s_and_b32 s40, s6, 3
    s_mul_i32 s40, s40, 144
    s_lshl_b32 s41, s3, 4
    s_add_u32 s47, s40, s41
    s_lshl_b32 s40, s47, 13
    """ + q_head("s41") + """
    s_lshl_b32 s41, s41, 8
    s_add_u32 s40, s40, s41
    v_lshlrev_b32 v11, 15, v3
    v_lshl_add_u32 v11, v2, 4, v11
    s_mov_b32 s10, 4718592
    s_movk_i32 s42, 0x2000
    s_waitcnt lgkmcnt(0)
    s_mov_b32 s8, s22
    s_mov_b32 s9, s23
    """)
    stamp(1)
    if opt["fake"] & 2:
        a("""
        s_mul_i32 s40, s7, 9
        s_add_u32 s40, s40, s3
        s_lshl_b32 s40, s40, 12
        s_movk_i32 s42, 1024
        v_lshlrev_b32 v11, 4, v1
        """)
    for i in range(4):
        a(f"buffer_load_dwordx4 {vr(WQ+4*i)}, v11, s[8:11], s40 offen nt")
        if i < 3: a("s_add_u32 s40, s40, s42")
    a("""
    s_barrier
    s_branch L_X2
    L_S:
    s_cmp_eq_u32 s5, 0
    s_cbranch_scc1 L_S_bar
    v_lshlrev_b32 v9, 4, v0
    v_mov_b32 v4, 0
    v_mov_b32 v5, 0
    v_mov_b32 v6, 0
    v_mov_b32 v7, 0
    """ + "\n".join(f"ds_write_b128 v9, v[4:7] offset:{L_GT-10240+4096*t}" for t in range(5)) + """
    L_S_bar:
    s_waitcnt lgkmcnt(0)
    s_barrier
    s_cmp_lt_u32 s3, 8
    s_cbranch_scc1 L_S2
    s_cmp_ge_u32 s3, 9
    s_cbranch_scc1 L_D
    L_exit:
    s_endpgm
    """)

    a(f"""
    L_L:
    s_setprio 3
    v_lshlrev_b32 v20, 10, v3
    v_lshl_add_u32 v20, v2, 4, v20
    s_lshl_b32 s44, s3, 2
    s_add_u32 s44, s44, {L_KRDY}
    """)
    sel_masks()
    landed = 0
    for n in range(WA0, 32):
        w = min(WA, WA0 + (n - WA0 + 1) // 2)
        prev = landed
        if n - landed >= w:
            a(f"s_waitcnt vmcnt({w-1})")
            landed = n - w + 1
        U = opt["unev"]
        if U and (n % 16) >= 16 - U:
            Lu = a.label("u")
            a("s_cmp_lt_u32 s6, 12")
            a(f"s_cbranch_scc1 {Lu}")
            for e in range(3):
                a(f"s_sub_u32 s48, s42, {262144 * (1 + e % 2) + 1024 * (n % 16) + 16384 * 4 * 0 + (e // 2) * 2048}")
                a(f"buffer_load_dwordx4 v[24:27], v20, s[8:11], s48 offen nt")
                a(f"s_waitcnt vmcnt({w-1})")
            l_issue(n)
            a(f"{Lu}:")
        else:
            l_issue(n)
        if prev < opt["qgo"] <= landed: set_flag(L_QGO)
        if prev < 16 <= landed: set_flag("s44")
        if DYN and n == 31 - opt["cda"]: bump(L_CGO)
        if n == 31 - opt["vd"]: bump(L_VISS)
    assert landed >= 16
    stamp(3)
    get_tag()
    a(f"""
    v_bfe_u32 v11, v1, 3, 1
    v_lshlrev_b32 v11, 10, v11
    v_lshl_add_u32 v11, v3, 4, v11
    s_lshl_b32 s41, s3, 8
    v_add_u32 v11, s41, v11
    s_lshl_b32 s45, s7, 10
    s_add_u32 s45, s45, {WS_OP}
    s_add_u32 s46, s45, {LOC}
    """)
    spin("\n".join(f"ds_read_b128 {vr(16+4*b)}, v11 offset:{L_XNP+64*b}" for b in range(4)), maxchain(range(16, 32)))
    stamp(4)
    for i in range(2): build_op(32 + 4 * i, 16 + i)
    nb = 2
    for i in range(16):
        a(f"s_waitcnt vmcnt({15-i})")
        a(f"{MF} v[12:15], {vr(32+4*(i%8))}, {vr(64+4*i)}, {'0' if i == 0 else 'v[12:15]'}")
        for _ in range(1 if i < 6 else 2):
            if nb < 16: build_op(32 + 4 * (nb % 8), 16 + nb); nb += 1
        if i == 11:
            a("""
            s_lshl_b32 s41, s3, 10
            v_lshlrev_b32 v17, 4, v1
            v_add_u32 v18, s41, v17
            """)
            lin_addr(19)
            if opt["stl"]:
                a("v_lshrrev_b32 v16, 5, v1")
                a("v_lshlrev_b32 v16, 4, v16")
                spin(f"ds_read_b128 v[20:23], v16 offset:{L_STM}\nds_read_b128 v[24:27], v16 offset:{L_STL}", maxchain(range(24, 28)), sleep=0)
                a(f"""
                v_max3_f32 v20, v20, v21, v22
                v_add_f32 v24, v24, v25
                v_add_f32 v26, v26, v27
                v_max_f32 v20, v20, v23
                v_add_f32 v24, v24, v26
                v_lshlrev_b32 v16, 2, v16
                v_lshl_add_u32 v16, v2, 4, v16
                v_and_or_b32 v28, v20, s50, v8
                v_lshl_or_b32 v29, v20, 8, v8
                v_and_or_b32 v30, v24, s50, v8
                v_mov_b32 v31, v8
                s_lshl_b32 s47, s7, 7
                s_add_u32 s47, s47, {WS_ST}
                s_add_u32 s48, s47, {LOC}
                """)
            la_prep(L_CNT0)
    stamp(5)
    a(f"ds_write_b128 v18, v[12:15] offset:{L_OT}")
    last_arriver(1, "L_wave_end", [f"ds_read_b128 {vr(32+4*t)}, v19 offset:{L_OT+1024*t}" for t in range(4)])
    def st_store(so, fl):
        if opt["stl"]:
            a(f"""
            s_mov_b32 exec_lo, 15
            s_mov_b32 exec_hi, 15
            buffer_store_dwordx4 v[28:31], v16, s[12:15], {so} offen {fl}
            s_mov_b64 exec, -1
            """)
    st_store("s48", "")
    a("s_waitcnt lgkmcnt(2)")
    add4(32, 32, 36)
    a("s_waitcnt lgkmcnt(0)")
    add4(40, 40, 44); add4(32, 32, 40)
    tag4(32)
    a("buffer_store_dwordx4 v[32:35], v17, s[12:15], s46 offen")
    set_flag(L_DONE)
    stamp(6)
    defer()
    st_store("s47", "sc1")
    a("buffer_store_dwordx4 v[32:35], v17, s[12:15], s45 offen sc1")
    finish_wave()

    a(f"""
    L_S2:
    s_sub_u32 s49, s3, 4
    s_lshl_b32 s41, s49, 14
    s_add_u32 s41, s41, {L_BIG}
    v_lshl_add_u32 v11, v2, 8, s41
    """)
    for st in range(4):
        a(f"v_or_b32 v{12+st}, {4*st}, v3")
        a(f"v_xor_b32 v{12+st}, v{12+st}, v2")
        a(f"v_lshl_add_u32 v{12+st}, v{12+st}, 4, v11")
    a(f"""
    v_cmp_eq_u32 s[54:55], 1, v3
    v_cmp_eq_u32 s[56:57], 2, v3
    v_cmp_eq_u32 s[58:59], 3, v3
    s_lshl_b32 s53, s49, 2
    s_add_u32 s47, s53, {L_KRDY}
    v_mov_b32 v4, s53
    v_mov_b32 v5, 0
    s_lshl_b32 s48, s49, 8
    v_lshl_add_u32 v6, v1, 2, s48
    """)
    get_tag()
    wait_flag("s47", sleep=2)
    stamp(4)
    a("s_waitcnt vmcnt(0)")
    for t in range(4):
        for st in range(4):
            a(f"ds_read_b128 {vr(64+16*t+4*st)}, v{12+st} offset:{t*4096}")
    a("""
    v_and_b32 v11, 1, v1
    v_lshlrev_b32 v11, 8, v11
    v_lshl_add_u32 v11, v3, 4, v11
    """)
    wait_flag(L_QFLAG)
    stamp(2)
    for st in range(4): a(f"ds_read_b128 {vr(16+4*st)}, v11 offset:{L_QL+64*st}")
    for st in range(4):
        a(f"s_waitcnt lgkmcnt({3-st})")
        for t in range(4):
            a(f"{MF} {vr(32+4*t)}, {vr(16+4*st)}, {vr(64+16*t+4*st)}, {'0' if st == 0 else vr(32+4*t)}")
    a(f"""
    s_mov_b32 s48, {f32bits(128**-0.5 * 1.4426950408889634)}
    v_cndmask_b32 v32, v32, v36, s[54:55]
    v_cndmask_b32 v33, v33, v37, s[54:55]
    v_cndmask_b32 v32, v32, v40, s[56:57]
    v_cndmask_b32 v33, v33, v41, s[56:57]
    v_cndmask_b32 v32, v32, v44, s[58:59]
    v_cndmask_b32 v33, v33, v45, s[58:59]
    v_mul_f32 v32, s48, v32
    v_mul_f32 v33, s48, v33
    v_mov_b32 v34, v32
    v_mov_b32 v35, v33
    """)
    wave_reduce("v_max_f32", (34, 35))
    a(f"""
    s_mov_b32 exec_lo, 0
    s_mov_b32 exec_hi, 0x80000000
    ds_write_b32 v4, v34 offset:{L_STM}
    ds_write_b32 v4, v35 offset:{L_STM+16}
    s_mov_b64 exec, -1
    """)
    spin(f"ds_read_b128 v[36:39], v5 offset:{L_STM}\nds_read_b128 v[40:43], v5 offset:{L_STM+16}", maxchain(range(36, 44)), sleep=0)
    a(f"""
    v_max3_f32 v36, v36, v37, v38
    v_max3_f32 v40, v40, v41, v42
    v_max_f32 v36, v36, v39
    v_max_f32 v40, v40, v43
    v_sub_f32 v32, v32, v36
    v_sub_f32 v33, v33, v40
    v_exp_f32 v32, v32
    v_exp_f32 v33, v33
    v_cvt_pk_bf16_f32 v32, v32, v32
    v_cvt_pk_bf16_f32 v33, v33, v33
    ds_write_b32 v6, v32 offset:{L_XNP}
    ds_write_b32 v6, v33 offset:{L_XNP+1024}
    v_and_b32 v34, 0xffff0000, v32
    v_and_b32 v35, 0xffff0000, v33
    """)
    stamp(3)
    wave_reduce("v_add_f32", (34, 35))
    if opt["stl"]:
        a(f"""
        s_mov_b32 exec_lo, 0
        s_mov_b32 exec_hi, 0x80000000
        ds_write_b32 v4, v34 offset:{L_STL}
        ds_write_b32 v4, v35 offset:{L_STL+16}
        """)
        finish_wave()
    else:
        la_prep(L_CNT1)
        a(f"""
        v_lshrrev_b32 v5, 5, v1
        v_lshlrev_b32 v5, 4, v5
        s_mov_b32 exec_lo, 0
        s_mov_b32 exec_hi, 0x80000000
        ds_write_b32 v4, v34 offset:{L_STL}
        ds_write_b32 v4, v35 offset:{L_STL+16}
        """)
        last_arriver(1, "L_wave_end", [f"ds_read_b128 v[44:47], v5 offset:{L_STL}"])
        a(f"""
        v_cmp_lt_u32 vcc, 31, v1
        v_lshlrev_b32 v5, 2, v5
        v_lshl_add_u32 v5, v2, 4, v5
        v_cndmask_b32 v36, v36, v40, vcc
        s_lshl_b32 s45, s7, 7
        s_add_u32 s45, s45, {WS_ST}
        s_add_u32 s46, s45, {LOC}
        s_waitcnt lgkmcnt(0)
        v_add_f32 v44, v44, v45
        v_add_f32 v46, v46, v47
        v_add_f32 v44, v44, v46
        v_and_or_b32 v28, v36, s50, v8
        v_lshl_or_b32 v29, v36, 8, v8
        v_and_or_b32 v30, v44, s50, v8
        v_mov_b32 v31, v8
        s_mov_b32 exec_lo, 15
        s_mov_b32 exec_hi, 15
        buffer_store_dwordx4 v[28:31], v5, s[12:15], s46 offen
        """)
        stamp(5)
        defer()
        a("buffer_store_dwordx4 v[28:31], v5, s[12:15], s45 offen sc1")
        finish_wave()

    a(f"""
    L_X2:
    s_setprio 3
    s_mul_i32 s57, s6, 9
    s_add_u32 s46, s57, s3
    s_lshr_b32 s52, s46, 4
    s_and_b32 s48, s46, 15
    s_mul_i32 s48, s48, 36
    s_and_b32 s43, s4, 1
    s_mul_i32 s41, s43, 5
    s_lshr_b32 s44, s52, 1
    s_add_u32 s41, s41, s44
    s_and_b32 s44, s52, 1
    s_cmp_eq_u32 s52, 8
    s_cselect_b32 s41, 4, s41
    s_cselect_b32 s43, s43, s44
    s_lshr_b32 s44, s4, 1
    s_mul_i32 s44, s44, 9
    s_add_u32 s41, s41, s44
    s_mul_i32 s44, s43, 36
    s_add_u32 s44, s44, s41
    s_cmp_eq_u32 s43, 1
    s_cselect_b32 s8, s30, s28
    s_cselect_b32 s9, s31, s29
    s_lshl_b32 s41, s41, 8
    s_mul_i32 s40, s48, 9216
    s_add_u32 s40, s40, s41
    s_mov_b32 s10, {576*9216}
    s_movk_i32 s42, 9216
    v_mul_u32_u24 v{AW2}, 9216, v3
    v_lshlrev_b32 v{AW}, 2, v{AW2}
    v_lshl_add_u32 v{AW}, v2, 4, v{AW}
    v_lshl_add_u32 v{AW2}, v2, 4, v{AW2}
    """)
    if opt["fake"] & 1:
        a(f"""
        s_lshr_b32 s41, s41, 4
        s_and_b32 s40, s46, 15
        s_add_u32 s40, s40, s41
        s_mul_i32 s40, s40, 9216
        s_movk_i32 s42, 1024
        v_lshlrev_b32 v{AW}, 4, v1
        v_lshlrev_b32 v{AW2}, 4, v1
        """)
    def g_issue(k):
        if opt["fake"] & 1:
            if k: a("s_add_u32 s40, s40, s42")
            a(f"buffer_load_dwordx4 {vr(WU+4*k)}, v{AW}, s[8:11], s40 offen nt")
            return
        if k: a(f"s_add_u32 s40, s40, {13*9216 if k % 4 == 0 else 's42'}")
        a(f"buffer_load_dwordx4 {vr(WU+4*k)}, v{AW if k < 8 else AW2}, s[8:11], s40 offen nt")
    sel_masks()
    a(f"""
    v_bfe_u32 v{AXQ}, v1, 3, 1
    v_mul_u32_u24 v{AXQ}, 2304, v{AXQ}
    s_lshl_b32 s41, s48, 2
    v_add_u32 v{AXU}, s41, v{AXQ}
    v_lshl_add_u32 v{AXU2}, v3, 2, v{AXU}
    v_add_u32 v{AXU2}, 128, v{AXU2}
    v_lshl_add_u32 v{AXU}, v3, 4, v{AXU}
    s_lshl_b32 s41, s47, 2
    v_add_u32 v{AXQ}, s41, v{AXQ}
    v_lshl_add_u32 v{AXQ}, v3, 4, v{AXQ}
    v_lshlrev_b32 v{ALN}, 4, v1
    s_lshl_b32 s53, s52, 4
    s_sub_i32 s54, s53, s57
    s_add_i32 s55, s54, 16
    s_max_i32 s54, s54, 0
    s_min_i32 s55, s55, 9
    s_sub_u32 s90, s3, s54
    s_lshl_b32 s90, s90, 10
    s_sub_i32 s54, s55, s54
    s_sub_i32 s54, s54, 3
    s_mul_i32 s59, s53, 7282
    s_lshr_b32 s59, s59, 16
    s_sub_u32 s59, s6, s59
    s_mul_i32 s56, s44, 3
    s_add_u32 s56, s56, s59
    s_lshl_b32 s56, s56, 10
    s_add_u32 s56, s56, {WS_GUP}
    s_add_u32 s59, s56, {LOC}
    s_lshr_b32 s57, s57, 4
    s_sub_u32 s55, s52, s57
    s_mul_i32 s53, s55, 9216
    s_add_u32 s90, s90, s53
    s_lshl_b32 s55, s55, 2
    s_add_u32 s55, s55, {L_CNT0}
    s_lshl_b32 s58, s3, 10
    """)
    def tile_reads(base, tmp, addr):
        return [f"ds_read_b128 {vr(tmp+4*t)}, v{addr} offset:{base+1024*t}" for t in range(9)]
    gu_vals = f"ds_read_b128 {vr(V0)}, v{AXU}\nds_read_b128 {vr(V0+4)}, v{AXU} offset:64\nds_read_b32 v{V0+8}, v{AXU2}"
    def q_block():
        spin(f"ds_read_b128 {vr(V0)}, v{AXQ}", maxchain(range(V0, V0 + 4)))
        a(f"v_mov_b32 v10, {L_TAG}")
        a("ds_read_b32 v8, v10")
        stamp(2)
        for i in range(2): build_op(OPR + 4 * i, V0 + i)
        for i in range(4):
            a(f"{MF} {vr(D0)}, {vr(OPR+4*(i%2))}, {vr(WQ+4*i)}, {'0' if i == 0 else vr(D0)}")
            if i < 2: build_op(OPR + 4 * i, V0 + 2 + i)
        a(gu_vals)
        a(f"v_add_u32 v11, s58, v{ALN}")
        a(f"ds_write_b128 v11, {vr(D0)} offset:{L_BIG}")
        bump(L_CNT2)
        stamp(3)
        spin(gu_vals, maxchain(range(V0, V0 + 9)), preloaded=True)
    def g_mfma(k, wait=None):
        build_op(OPR + 4 * (k % 2), V0 + k)
        if wait is not None: a(f"s_waitcnt vmcnt({wait})")
        a(f"{MF} {vr(D0)}, {vr(OPR+4*(k%2))}, {vr(WU+4*k)}, {'0' if k == 0 else vr(D0)}")
    done = 0; landed = 0; qdone = False
    for k in range(9):
        n = 4 + k
        w = opt["wg"] if k < opt["gburst"] else opt["wg2"]
        if k < opt["g1"]: w = 1
        if opt["fast4"] and w < opt["wg2"] and qdone:
            Lb = a.label("f4")
            a("s_cmp_ge_u32 s6, 12")
            a(f"s_cbranch_scc1 {Lb}")
            a(f"s_waitcnt vmcnt({w-1})")
            a(f"{Lb}:")
            w = opt["wg2"]
        if n - landed >= w:
            a(f"s_waitcnt vmcnt({w-1})")
            landed = n - w + 1
        g_issue(k)
        if not qdone and landed >= 4:
            q_block(); qdone = True
        if DYN and k == 8 - opt["cdg"]: bump(L_CGO)
        if k == 8 - opt["gd"]: bump(L_VISS)
        while qdone and 4 + done < landed:
            g_mfma(done); done += 1
    stamp(4)
    a(f"v_add_u32 v{AXQ}, s90, v{ALN}")
    lin_addr(AXU)
    a(f"v_add_u32 v{AXU}, s53, v{AXU}")
    la_prep("s55")
    a(f"v_mov_b32 v{AXU2}, {L_VISS}")
    for k in range(done, 9):
        g_mfma(k, 8 - k)
        if opt["gd"] < 0 and k == 9 + opt["gd"]:
            a(f"""
            s_mov_b64 exec, 1
            ds_add_u32 v{AXU2}, v10
            s_mov_b64 exec, -1
            """)
    stamp(5)
    a(f"ds_write_b128 v{AXQ}, {vr(D0)} offset:{L_GT}")
    last_arriver("s54", "L_wave_end", tile_reads(L_GT, 68, AXU))
    for t in range(4):
        a(f"s_waitcnt lgkmcnt({7-2*t})")
        add4(68 + 8 * t, 68 + 8 * t, 72 + 8 * t)
        if t == 1: add4(68, 68, 76)
    add4(84, 84, 92)
    a("s_waitcnt lgkmcnt(0)")
    add4(68, 68, 100); add4(68, 68, 84)
    tag4(68)
    a(f"buffer_store_dwordx4 v[68:71], v{ALN}, s[12:15], s59 offen")
    bump(L_DONE)
    stamp(6)
    a("s_cmp_eq_u32 s52, 8")
    a("s_cbranch_scc1 L_X_now")
    defer()
    a("L_X_now:")
    a(f"buffer_store_dwordx4 v[68:71], v{ALN}, s[12:15], s56 offen sc1")
    finish_wave()

    a(f"""
    L_D:
    s_sub_u32 s49, s3, 9
    v_lshlrev_b32 v57, 4, v1
    s_lshl_b32 s41, s49, 11
    v_add_u32 v58, s41, v57
    """)
    lin_addr(57)
    a(f"""
    s_lshl_b32 s41, s49, 10
    v_add_u32 v57, s41, v57
    v_and_b32 v9, 7, v1
    v_lshlrev_b32 v9, 4, v9
    s_movk_i32 s41, {FPS}
    v_lshrrev_b32 v59, 3, v1
    v_mad_u32_u24 v59, v59, s41, v9
    v_bfe_u32 v60, v1, 3, 1
    v_and_b32 v10, 2, v3
    v_add3_u32 v60, v60, v10, 8
    v_mad_u32_u24 v60, v60, s41, v9
    s_cmp_eq_u32 s49, 1
    s_cselect_b32 s54, 0xffff, -1
    s_mov_b32 s55, s54
    s_cselect_b64 vcc, -1, 0
    v_cndmask_b32 v59, v59, v60, vcc
    v_bfe_u32 v9, v1, 2, 1
    v_cmp_eq_u32 vcc, 0, v9
    v_mov_b32 v10, 0xffff
    v_cndmask_b32 v4, 0, v10, vcc
    v_xor_b32 v5, v4, v10
    v_lshlrev_b32 v6, 16, v4
    v_lshlrev_b32 v7, 16, v5
    v_mov_b32 v122, {L_CNT3}
    v_mov_b32 v123, 1
    v_and_b32 v46, 3, v1
    v_mul_u32_u24 v46, 0x5555, v46
    v_mul_u32_u24 v44, {128*NLN}, v2
    s_lshl_b32 s41, s49, 7
    s_add_u32 s41, s41, {L_VAL}
    v_and_b32 v65, 1, v1
    v_lshlrev_b32 v65, 5, v65
    v_bfe_u32 v9, v1, 3, 1
    v_lshl_add_u32 v65, v9, 4, v65
    v_lshlrev_b32 v56, 6, v9
    v_bfe_u32 v9, v1, 4, 1
    v_lshl_add_u32 v65, v9, 3, v65
    v_bfe_u32 v9, v1, 1, 1
    v_lshl_add_u32 v65, v9, 2, v65
    v_bfe_u32 v9, v1, 2, 1
    v_lshl_add_u32 v65, v9, 1, v65
    v_lshrrev_b32 v120, 5, v1
    v_lshl_add_u32 v65, v120, 6, v65
    v_add_u32 v65, s41, v65
    v_lshl_add_u32 v56, v3, 4, v56
    v_add_u32 v56, s41, v56
    v_and_b32 v121, 31, v1
    v_mul_u32_u24 v{AW}, 4608, v3
    v_lshrrev_b32 v9, 3, v2
    v_mul_u32_u24 v9, {18432-128}, v9
    v_lshl_add_u32 v{AW}, v2, 4, v{AW}
    v_add_u32 v{AW2}, v9, v{AW}
    """)
    for r in list(range(D0, D0 + 4)) + list(range(D1, D1 + 8)): a(f"v_mov_b32 v{r}, 0")
    get_tag()
    a("""
    v_mul_u32_u24 v45, 0x101, v8
    s_cmp_eq_u32 s5, 1
    s_cbranch_scc1 L_DG
    """)
    def claim(role):
        if not DYN: return
        L = a.label("noclaim")
        a("s_cmp_lg_u32 s49, 0")
        a(f"s_cbranch_scc1 {L}")
        wait_value(L_CGO, (4, 9)[role] - 2, sleep=2)
        a(f"""
        s_lshl_b32 s41, s4, 2
        s_add_u32 s76, s36, s41
        s_addc_u32 s77, s37, 0
        s_mov_b32 s97, 1
        s_atomic_add s97, s[76:77], {128*role} glc
        s_waitcnt lgkmcnt(0)
        s_and_b32 s97, s97, 15
        """)
        if role == 1:
            a("""
            s_and_b32 s41, s4, 1
            s_sub_u32 s42, 14, s41
            s_add_u32 s43, s97, 12
            s_cmp_ge_u32 s43, s42
            s_cselect_b32 s41, s42, 0
            s_sub_u32 s43, s43, s41
            s_cmp_lt_u32 s97, s42
            s_cselect_b32 s97, s43, s97
            """)
        set_flag(L_TK, "s97")
        a(f"{L}:")
    def tile_scalars(role):
        ptr, nbytes = ((24, 4096 * 1152), (32, 4608 * 1152))[role]
        a(f"""
        s_add_u32 s40, s86, {32*role}
        s_lshl_b32 s43, s40, 7
        s_mul_i32 s41, s87, {12*FPS}
        s_add_u32 s43, s43, s41
        s_add_u32 s43, s43, {WS_FP}
        s_lshr_b32 s41, s40, {WPL.bit_length()-1}
        s_and_b32 s40, s40, {WPL-1}
        s_mul_i32 s42, s87, {12*NLN}
        s_add_u32 s41, s41, s42
        s_lshl_b32 s41, s41, 7
        {"s_lshl2_add_u32 s44, s40, s41" if opt["hb"] else "s_lshl1_add_u32 s44, s40, s41"}
        {"s_add_u32 s44, s44, s49" if opt["hb"] else ""}
        s_add_u32 s44, s44, {WS_HINT}
        s_lshl2_add_u32 s45, s86, s49
        s_mul_i32 s45, s45, 36864
        s_mul_i32 s41, s87, 384
        s_add_u32 s45, s45, s41
        s_add_u32 s46, s45, 18432
        s_mov_b32 s8, s{ptr}
        s_mov_b32 s9, s{ptr+1}
        s_mov_b32 s10, {nbytes}
        """)
    div3 = """
    s_mul_i32 s88, s97, 86
    s_lshr_b32 s88, s88, 8
    s_mul_i32 s87, s88, 3
    s_sub_u32 s87, s97, s87
    """
    ORDER = [[8, 9, 10, 11, 0, 1, 2, 3, 4, 5, 6, 7], [0, 8, 4, 1, 9, 5, 2, 10, 6, 3, 11, 7], [0, 1, 2, 3, 4, 5, 6, 7, 8, 9, 10, 11]][opt['order']]
    def tile_stream(role, p_issue, lo, n, mask, tail=None, quick=None):
        WL = opt["wlg" if role else "wl"]
        stamp(1)
        if opt["warm"] and not DYN: p_issue()
        wait_value(L_VISS, (4, 9)[role] - 2, sleep=1)
        stamp(2)
        if opt["fake"] & 4:
            a(f"""
            s_mul_i32 s45, s86, 3
            s_add_u32 s45, s45, s87
            s_lshl2_add_u32 s45, s45, s49
            s_mul_i32 s45, s45, 12288
            v_lshlrev_b32 v{AW}, 4, v1
            """)
        for k, j in enumerate(ORDER):
            if k >= WL: a(f"s_waitcnt vmcnt({WL-1})")
            if opt["fake"] & 4:
                a(f"buffer_load_dwordx4 {vr(W3+4*j)}, v{AW}, s[8:11], s45 offen nt")
                a("s_add_u32 s45, s45, 1024")
                continue
            if j < 8: a(f"buffer_load_dwordx4 {vr(W3+4*j)}, v{AW}, s[8:11], {'s45' if j < 4 else 's46'} offen offset:{(j%4)*1152} nt")
            else: a(f"buffer_load_dwordx4 {vr(W3+4*j)}, v{AW2}, s[8:11], s45 offen offset:{(j-8)*1152+256} nt")
        if tail: tail()
        stamp(3)
        if opt["cut"] == 1: a("s_waitcnt vmcnt(0)"); a("s_endpgm")
        wait_value(L_DONE, "s58", sleep=0)
        if quick: quick()
        hand(p_issue, lo, n, mask)
    def hand(p_issue, lo, n, mask, entry=None):
        L = a.label("hand"); F = a.label("first"); K = a.label("keep")
        a(f"""
        s_mov_b32 s51, 1
        s_branch {entry or F}
        {L}:
        s_add_u32 s51, s51, 1
        s_cmp_gt_u32 s51, {SPIN}
        s_cbranch_scc1 L_abort
        s_cmp_lg_u32 s51, {opt["kf"]}
        s_cbranch_scc1 {K}
        s_mov_b64 exec, 1
        ds_write_b32 v122, v123 offset:{L_FLUSH-L_CNT3}
        s_mov_b64 exec, -1
        {K}:
        s_and_b32 s41, s51, {mask}
        s_cselect_b32 s42, {LOC}, 0
        {F}:
        s_waitcnt vmcnt(0)
        """)
        p_issue()
        if entry: a(f"{entry}:")
        a("s_waitcnt vmcnt(0)")
        untag(lo, lo, n)
        a(f"s_cbranch_vccnz {L}")
        stamp(4)
        if opt["cut"] == 2: a("s_endpgm")
        if opt["hb"] == 1: byte_notice()
        elif not opt["hb"]:
            a("""
            s_mov_b64 exec, 1
            ds_add_rtn_u32 v11, v122, v123
            s_mov_b64 exec, -1
            """)
    def byte_notice():
        a("""
        s_mov_b64 exec, 0xfff
        buffer_store_byte v8, v44, s[12:15], s44 offen sc1
        s_mov_b64 exec, -1
        """)
    def tile_tail():
        def notice():
            if opt["xp"] & 8: return
            B = a.label("nohint")
            a(f"""
            v_readfirstlane_b32 s84, v11
            s_cmp_eq_u32 s84, 1
            s_cbranch_scc0 {B}
            s_mov_b64 exec, 0xfff
            buffer_store_short v45, v44, s[12:15], s44 offen sc1
            s_mov_b64 exec, -1
            """)
            stamp(1)
            a(f"{B}:")
        a(f"""
        v_cvt_pk_bf16_f32 v16, v16, v16
        ds_write_b16 v65, v16
        ds_read_b128 {vr(V0)}, v56
        """)
        if opt["hb"] == 2: byte_notice()
        if opt["hp"] < 0 and not opt["hb"]:
            a("s_waitcnt lgkmcnt(2)")
            notice()
        a("s_waitcnt lgkmcnt(0)")
        OP = [24, 28, 32, 36]
        k = 0
        for st in ["b0", "b2", (D1, 0, 32), "b1", (D2, 2, 32), "b3", (D1, 1, 40), (D2, 3, 40), (D0, 0, 0), (D0, 1, 8), (D0, 2, 16), (D0, 3, 24)]:
            if isinstance(st, str): build_op(OP[int(st[1])], V0 + int(st[1]))
            else:
                a(f"{SM} {vr(st[0])}, {vr(OP[st[1]])}, {vr(W3+st[2], 8)}, v46")
                k += 1
                if k == opt["hp"]: notice()
        stamp(5)
        L2 = a.label("sum"); F2 = a.label("sum1")
        for r in range(4): a(f"v_add_f32_dpp v{D1+r}, v{D2+r}, v{D1+r} row_ror:8 {DPPF}")
        a(f"""
        ds_write_b128 v58, {vr(D1)} offset:{L_T3+1024}
        ds_write_b128 v58, {vr(D0)} offset:{L_T3}
        s_mov_b64 exec, 1
        ds_add_u32 v122, v123 offset:{L_CNT4-L_CNT3}
        s_mov_b64 exec, s[54:55]
        s_cmp_ge_u32 s49, 2
        s_cbranch_scc1 L_wave_end
        s_mov_b32 s51, {SPIN}
        {L2}:
        ds_read_b32 v10, v122 offset:{L_CNT4-L_CNT3}
        """)
        for t in range(4): a(f"ds_read_b128 {vr(16+4*t)}, v57 offset:{L_T3+2048*t}")
        a(f"""
        s_sub_u32 s51, s51, 1
        s_cbranch_scc1 L_abort
        s_waitcnt lgkmcnt(4)
        v_cmp_ne_u32 vcc, 2, v10
        s_cbranch_vccnz {L2}
        s_waitcnt lgkmcnt(2)
        """)
        add4(16, 16, 20)
        a("s_waitcnt lgkmcnt(0)")
        add4(24, 24, 28); add4(16, 16, 24)
        tag4(16)
        a("buffer_store_dwordx4 v[16:19], v59, s[12:15], s43 offen sc1")
        a(f"""
        s_mov_b64 exec, 1
        ds_write_b32 v122, v123 offset:{L_FLUSH-L_CNT3}
        """)
        stamp(6)
        finish_wave()
    a(f"""
    v_lshlrev_b32 v61, 12, v120
    v_lshl_add_u32 v61, v121, 2, v61
    v_and_b32 v10, 3, v1
    v_lshl_add_u32 v62, v120, 2, v10
    v_lshlrev_b32 v62, 7, v62
    s_mov_b32 s57, 0x07060501
    s_mov_b32 s58, 0
    """)
    if DYN and opt["warm"]:
        a(f"""
        s_lshl_b32 s41, s7, 10
        s_add_u32 s41, s41, {WS_OP+LOC}
        s_lshl_b32 s42, s49, 8
        s_add_u32 s41, s41, s42
        v_lshlrev_b32 v9, 2, v1
        buffer_load_dword v20, v9, s[12:15], s41 offen sc1
        """)
    claim(0); get_slot()
    a(f"""
    s_lshl2_add_u32 s89, s4, s97
    s_sub_u32 s89, s89, 12
    s_cmp_ge_u32 s97, 12
    s_cbranch_scc1 L_free
    {div3}
    s_lshl2_add_u32 s86, s4, s88
    s_lshr_b32 s47, s86, 1
    s_lshl_b32 s48, s47, 10
    s_lshl_b32 s47, s47, 13
    s_and_b32 s41, s86, 1
    s_lshl_b32 s42, s41, 6
    s_add_u32 s48, s48, s42
    s_add_u32 s48, s48, {WS_ST}
    s_lshl_b32 s41, s41, 9
    s_add_u32 s47, s47, s41
    s_lshl_b32 s41, s49, 7
    s_add_u32 s47, s47, s41
    s_add_u32 s47, s47, {WS_OP}
    v_add_u32 v61, s47, v61
    v_add_u32 v62, s48, v62
    """)
    tile_scalars(0)
    a(f"s_mov_b32 s42, {LOC}")
    def st_load(): a("buffer_load_dwordx4 v[24:27], v62, s[12:15], s42 offen sc1")
    def o_loads():
        for k in range(4): a(f"buffer_load_dword v{20+k}, v61, s[12:15], s42 offen offset:{k*1024} sc1")
    weights = f"""
    v_perm_b32 v28, v24, v25, s57
    v_mov_b32 v29, v28
    v_max_f32_dpp v29, v29, v29 quad_perm:[1,0,3,2] {DPPF}
    v_max_f32_dpp v29, v29, v29 quad_perm:[2,3,0,1] {DPPF}
    v_sub_f32 v28, v28, v29
    v_exp_f32 v28, v28
    v_mul_f32 v26, v26, v28
    v_mov_b32_dpp v40, v28 quad_perm:[0,0,0,0] {DPPF}
    v_mov_b32_dpp v41, v28 quad_perm:[1,1,1,1] {DPPF}
    v_add_f32_dpp v26, v26, v26 quad_perm:[1,0,3,2] {DPPF}
    v_mov_b32_dpp v42, v28 quad_perm:[2,2,2,2] {DPPF}
    v_mov_b32_dpp v43, v28 quad_perm:[3,3,3,3] {DPPF}
    v_add_f32_dpp v26, v26, v26 quad_perm:[2,3,0,1] {DPPF}
    v_rcp_f32 v26, v26
    """
    def quick():
        a("s_waitcnt vmcnt(0)")
        o_loads()
        untag(24, 24, 4)
        a("s_cbranch_vccz L_o_quick")
    tile_stream(0, lambda: (st_load(), o_loads()), 20, 8, opt["lmask"], st_load if opt["pst"] else None, quick if opt["pst"] else None)
    a(weights)
    if opt["pst"]:
        a("s_branch L_o_sum")
        a("L_o_quick:")
        a(weights)
        hand(o_loads, 20, 4, opt["lmask"], entry="L_o_wait")
        a("L_o_sum:")
    a("""
    v_mul_f32 v16, v40, v20
    v_mul_f32 v18, v42, v22
    v_fmac_f32 v16, v41, v21
    v_fmac_f32 v18, v43, v23
    v_add_f32 v16, v16, v18
    v_mul_f32 v16, v16, v26
    """)
    tile_tail()
    c1 = -2.0 * 0.7978845608028654 * 1.4426950408889634
    a(f"""
    L_DG:
    v_lshlrev_b32 v47, 9, v120
    v_lshl_add_u32 v47, v121, 2, v47
    s_mov_b32 s59, {f32bits(0.044715 * c1)}
    v_mov_b32 v66, {f32bits(c1):#x}
    """)
    done_target_g("s58")
    claim(1); get_slot()
    a(f"""
    s_lshr_b32 s89, s4, 1
    s_add_u32 s89, s89, 32
    s_and_b32 s85, s4, 1
    s_lshl4_add_u32 s41, s85, s97
    s_cmp_eq_u32 s41, 29
    s_cbranch_scc1 L_free
    s_mov_b32 s89, -1
    s_cmp_ge_u32 s97, 14
    s_cbranch_scc1 L_free
    {div3}
    s_mul_i32 s86, s85, 5
    s_add_u32 s86, s86, s88
    s_lshl1_add_u32 s41, s85, s87
    s_cmp_lt_u32 s97, 12
    s_cselect_b32 s86, s86, 4
    s_cselect_b32 s87, s87, s41
    s_cselect_b32 s48, {opt["lmask"]}, 0
    s_lshr_b32 s41, s4, 1
    s_mul_i32 s41, s41, 9
    s_add_u32 s86, s86, s41
    s_lshl_b32 s56, s88, 1
    s_add_u32 s57, s56, 1
    s_min_u32 s57, s57, 8
    """)
    for sl, msk in (("s56", "s[90:91]"), ("s57", "s[92:93]")):
        a(f"""
        s_bitcmp1_b32 {THREE:#x}, {sl}
        s_cselect_b64 {msk}, -1, 0
        s_cselect_b32 {sl}, 2, 1
        s_lshl_b32 {sl}, {sl}, 10
        """)
    a(f"""
    s_mul_i32 s47, s86, 3072
    s_lshl_b32 s41, s49, 7
    s_add_u32 s47, s47, s41
    s_add_u32 s47, s47, {WS_GUP}
    v_add_u32 v61, s47, v47
    v_add_u32 v62, {36*3072}, v61
    v_add_u32 v63, s56, v61
    v_add_u32 v64, s57, v62
    """)
    tile_scalars(1)
    a("s_cmp_eq_u32 s48, 0")
    a(f"s_cselect_b32 s42, 0, {LOC}")
    def h_issue():
        a("""
        buffer_load_dword v16, v61, s[12:15], s42 offen sc1
        buffer_load_dword v17, v62, s[12:15], s42 offen sc1
        buffer_load_dword v18, v61, s[12:15], s42 offen offset:1024 sc1
        buffer_load_dword v19, v62, s[12:15], s42 offen offset:1024 sc1
        buffer_load_dword v20, v63, s[12:15], s42 offen sc1
        buffer_load_dword v21, v64, s[12:15], s42 offen sc1
        """)
    tile_stream(1, h_issue, 16, 6, "s48")
    a("""
    v_cndmask_b32 v20, 0, v20, s[90:91]
    v_cndmask_b32 v21, 0, v21, s[92:93]
    v_pk_add_f32 v[16:17], v[16:17], v[18:19]
    v_pk_add_f32 v[16:17], v[16:17], v[20:21]
    v_cvt_pk_bf16_f32 v17, v16, v17
    v_lshlrev_b32 v16, 16, v17
    v_and_b32 v17, 0xffff0000, v17
    v_mul_f32 v18, v16, v16
    v_fma_f32 v18, v18, s59, v66
    v_mul_f32 v18, v18, v16
    v_exp_f32 v18, v18
    v_add_f32 v18, 1.0, v18
    v_rcp_f32 v18, v18
    v_mul_f32 v16, v16, v18
    v_cvt_pk_bf16_f32 v16, v16, v16
    v_and_b32 v16, 0xffff0000, v16
    v_mul_f32 v16, v16, v17
    """)
    tile_tail()
    a("L_free:")
    if opt["fd"]: wait_value(L_DONE, "s58", sleep=2)
    if opt["xp"] & 4: a("s_sleep 40")
    set_flag(L_FLUSH)
    a("""
    s_cmp_lg_u32 s89, -1
    s_cbranch_scc1 L_R
    """)
    a("L_wave_end:")
    finish_wave()

    def collect(nd, n, issue):
        L = a.label("hint"); R = a.label("again"); F = a.label("read")
        if opt["hs"] > 1:
            assert WPL == 16
            HS = opt["hs"]; S = a.label("hstart")
            base = [16, 24, 80][:HS]
            ld = lambda k: a(f"s_load_dwordx{nd} s[{base[k]}:{base[k]+nd-1}], s[76:77], 0 glc")
            a(f"""
            s_branch {S}
            {R}:
            s_sub_u32 s51, s51, 1
            s_cbranch_scc1 L_abort
            s_branch {F}
            {S}:
            """)
            for k in range(HS):
                ld(k)
                if k < HS - 1: a(f"s_sleep {opt['hst']}")
            a(f"{L}:")
            for k in range(HS):
                a(f"s_waitcnt lgkmcnt({2*(HS-1)})")
                for j in range(nd // 2):
                    a(f"s_xor_b64 s[{'36:37' if j == 0 else '78:79'}], s[{base[k]+2*j}:{base[k]+2*j+1}], s[90:91]")
                    if j: a("s_or_b64 s[36:37], s[36:37], s[78:79]")
                a(f"s_cbranch_scc0 {F}")
                ld(k)
            a("s_sub_u32 s53, s53, 1")
            a(f"s_cbranch_scc0 {L}")
            a(f"{F}:")
            issue()
            a("s_waitcnt vmcnt(0) lgkmcnt(0)")
            untag(48, 48, n)
            a(f"s_cbranch_vccnz {R}")
            return
        a(f"""
        s_branch {L}
        {R}:
        s_sub_u32 s51, s51, 1
        s_cbranch_scc1 L_abort
        s_branch {F}
        {L}:
        s_sub_u32 s53, s53, 1
        s_cbranch_scc1 {F}
        """)
        per = min(nd, WPL // 2)
        for k in range(nd // per):
            a(f"s_load_dwordx{per} s[{16+per*k}:{15+per*k+per}], s[76:77], {128*k} glc" if per > 1 else f"s_load_dword s{16+k}, s[76:77], {128*k} glc")
        a("s_waitcnt lgkmcnt(0)")
        for k in range(nd // 2): a(f"s_xor_b64 s[{16+2*k}:{17+2*k}], s[{16+2*k}:{17+2*k}], s[90:91]")
        for k in range(1, nd // 2): a(f"s_or_b64 s[16:17], s[16:17], s[{16+2*k}:{17+2*k}]")
        a(f"s_cbranch_scc1 {L}")
        stamp(2)
        a(f"{F}:")
        issue()
        a("s_waitcnt vmcnt(0)")
        untag(48, 48, n)
        a(f"s_cbranch_vccnz {R}")
        stamp(3)

    def m_tag():
        a(f"""
        s_waitcnt lgkmcnt(0)
        s_add_u32 s52, s52, 1
        s_and_b32 s53, s52, 0xff
        v_mov_b32 v8, s53
        v_mov_b32 v13, {L_TAG}
        s_mov_b64 exec, 1
        v_mov_b32 v10, s52
        ds_write_b32 v13, v10 offset:{L_E1-L_TAG}
        ds_write_b32 v13, v8
        s_mov_b64 exec, -1
        s_mov_b32 s49, 4
        """)
    a("""
    L_M2:
    s_cmp_eq_u32 s5, 0
    s_cbranch_scc1 L_MA
    s_waitcnt vmcnt(0)
    """)
    stamp(2)
    X = 16
    for t in range(9):
        a(f"v_lshlrev_b32 v{X+2*t}, 16, v{108+t}")
        a(f"v_and_b32 v{X+2*t+1}, 0xffff0000, v{108+t}")
    a(f"v_pk_add_f32 v[34:35], {vr(X,2)}, {vr(X+2,2)}")
    for t in range(2, 9): a(f"v_pk_add_f32 v[34:35], v[34:35], {vr(X+2*t,2)}")
    a("v_add_f32 v34, v34, v35")
    def half_reduce(r):
        for mode in ("quad_perm:[1,0,3,2]", "quad_perm:[2,3,0,1]", "row_half_mirror", "row_mirror"):
            a(f"v_add_f32_dpp v{r}, v{r}, v{r} {mode} {DPPF}")
        a(f"v_mov_b32 v{r+1}, v{r}")
        a(f"v_permlane16_swap_b32 v{r}, v{r+1}")
        a(f"v_add_f32 v{r}, v{r}, v{r+1}")
    half_reduce(34)
    a(f"v_mul_f32 v34, {f32bits(1.0/576):#x}, v34")
    a("v_mov_b32 v35, v34")
    for t in range(9): a(f"v_pk_add_f32 {vr(36+2*t,2)}, {vr(X+2*t,2)}, v[34:35] neg_lo:[0,1] neg_hi:[0,1]")
    a("v_pk_mul_f32 v[54:55], v[36:37], v[36:37]")
    for t in range(1, 9): a(f"v_pk_fma_f32 v[54:55], {vr(36+2*t,2)}, {vr(36+2*t,2)}, v[54:55]")
    a("v_add_f32 v54, v54, v55")
    half_reduce(54)
    a(f"""
    v_mul_f32 v54, {f32bits(1.0/576):#x}, v54
    v_cvt_pk_bf16_f32 v34, v34, v54
    v_and_b32 v54, 0xffff0000, v34
    v_lshlrev_b32 v34, 16, v34
    v_mov_b32 v35, v34
    v_add_f32 v54, {f32bits(1e-5):#x}, v54
    v_cvt_pk_bf16_f32 v54, v54, v54
    v_and_b32 v54, 0xffff0000, v54
    v_sqrt_f32 v54, v54
    v_cvt_pk_bf16_f32 v54, v54, v54
    v_and_b32 v54, 0xffff0000, v54
    v_rcp_f32 v54, v54
    v_lshrrev_b32 v11, 5, v1
    v_mul_u32_u24 v11, 2304, v11
    v_and_b32 v13, 31, v1
    v_mul_u32_u24 v13, 72, v13
    v_add_u32 v11, v11, v13
    v_mov_b32 v55, v54
    """)
    for t in range(9): a(f"v_pk_add_f32 {vr(X+2*t,2)}, {vr(X+2*t,2)}, v[34:35] neg_lo:[0,1] neg_hi:[0,1]")
    for t in range(9): a(f"v_cvt_pk_bf16_f32 v{36+t}, v{X+2*t}, v{X+2*t+1}")
    m_tag()
    for t in range(9):
        a(f"v_lshlrev_b32 v{X+2*t}, 16, v{36+t}")
        a(f"v_and_b32 v{X+2*t+1}, 0xffff0000, v{36+t}")
        a(f"v_pk_mul_f32 {vr(X+2*t,2)}, {vr(X+2*t,2)}, v[54:55]")
        a(f"v_cvt_pk_bf16_f32 v{X+2*t}, v{X+2*t}, v{X+2*t}")
        a(f"v_cvt_pk_bf16_f32 v{X+2*t+1}, v{X+2*t+1}, v{X+2*t+1}")
        a(f"ds_write_b64 v11, {vr(X+2*t,2)} offset:{L_XNP+8*t}")
    stamp(3)
    a(f"""
    v_lshlrev_b32 v14, 4, v1
    v_mov_b32 v15, {L_CNT2}
    """ + q_head("s44") + f"""
    s_and_b32 s41, s6, 3
    s_lshl2_add_u32 s44, s44, s41
    s_lshl_b32 s44, s44, 10
    s_add_u32 s44, s44, {WS_QP}
    s_add_u32 s45, s44, {LOC}
    """)
    spin("\n".join(["ds_read_b32 v10, v15"] + tile_reads(L_BIG, 16, 14)), "v_cmp_ne_u32 vcc, 7, v10", sleep=0)
    add4(16, 16, 20); add4(24, 24, 28); add4(32, 32, 36); add4(40, 40, 44)
    add4(16, 16, 24); add4(32, 32, 40); add4(16, 16, 48); add4(16, 16, 32)
    tag4(16)
    a("buffer_store_dwordx4 v[16:19], v14, s[12:15], s45 offen")
    stamp(1)
    defer("L_M_q2")
    a("buffer_store_dwordx4 v[16:19], v14, s[12:15], s44 offen sc1")
    a("L_M_q2:")
    done_target_g("s58")
    a("s_setprio 0")
    get_slot()
    a("""
    s_lshr_b32 s89, s4, 1
    s_add_u32 s89, s89, 32
    s_and_b32 s41, s4, 1
    s_lshl4_add_u32 s41, s41, s97
    s_cmp_eq_u32 s41, 29
    s_cbranch_scc1 L_R
    """)
    finish_wave()

    a(f"""
    L_MA:
    s_lshr_b32 s46, s7, 3
    s_lshl_b32 s46, s46, 13
    s_bfe_u32 s47, s6, 0x10002
    s_lshl_b32 s47, s47, 9
    s_add_u32 s46, s46, s47
    s_add_u32 s46, s46, {WS_QP}
    s_add_u32 s47, s46, {LOC}
    s_mov_b32 s48, 0
    v_lshrrev_b32 v11, 5, v1
    v_and_b32 v15, 31, v1
    v_lshlrev_b32 v14, 12, v11
    v_lshl_add_u32 v14, v15, 4, v14
    v_lshlrev_b32 v12, 8, v11
    v_lshl_add_u32 v12, v2, 4, v12
    v_and_b32 v9, 1, v3
    v_lshl_add_u32 v12, v9, 3, v12
    """)
    m_tag()
    def q_issue(r):
        a("s_add_u32 s48, s48, 1")
        a(f"s_and_b32 s41, s48, {opt['lmask']}")
        a("s_cselect_b32 s42, s47, s46")
        for i in range(NQ): a(f"buffer_load_dwordx4 {vr(r+4*i)}, v14, s[12:15], s42 offen offset:{i*(1024 if NQ == 4 else 2048)} sc1")
    NQ = 2 if opt["xp"] & 16 else 4
    if NQ == 2:
        a("v_bfe_u32 v9, v1, 4, 1")
        a("v_lshl_add_u32 v14, v9, 10, v14")
    if opt["warmq"]:
        for i in range(4): a(f"buffer_load_dwordx4 {vr(64+4*i)}, v14, s[12:15], s47 offen offset:{i*1024} sc1")
    wait_flag(L_QGO, sleep=2)
    stamp(2)
    poll(opt["qsets"], 4 * NQ, 16, 64, q_issue, NQ, stag=opt["qstag"])
    add4(16, 16, 20); add4(24, 24, 28); add4(16, 16, 24)
    a(f"""
    v_cvt_pk_bf16_f32 v16, v16, v17
    v_cvt_pk_bf16_f32 v17, v18, v19
    ds_write_b64 v12, v[16:17] offset:{L_QL}
    """)
    set_flag(L_QFLAG)
    stamp(3)
    get_slot()
    a("""
    s_lshl2_add_u32 s89, s4, s97
    s_sub_u32 s89, s89, 12
    s_mov_b32 s58, 0
    s_cmp_lt_u32 s97, 12
    s_cbranch_scc1 L_wave_end
    """)

    a(f"""
    L_R:
    s_mul_i32 s46, s89, {FPS}
    s_lshl_b32 s41, s49, 11
    s_add_u32 s46, s46, s41
    s_add_u32 s46, s46, {WS_FP}
    v_lshlrev_b32 v14, 4, v1
    v_lshlrev_b32 v19, 2, v1
    s_lshl_b32 s41, s49, 8
    v_add_u32 v15, s41, v19
    s_mul_i32 s41, s89, 43
    s_lshr_b32 s41, s41, 9
    s_mul_i32 s42, s41, 12
    s_sub_u32 s42, s89, s42
    s_mul_i32 s41, s41, 192
    s_cmp_ge_u32 s42, 8
    s_cbranch_scc1 L_R_hi
    s_lshr_b32 s43, s42, 2
    s_and_b32 s48, s42, 3
    s_lshl_b32 s48, s48, 5
    s_branch L_R_col
    L_R_hi:
    s_bfe_u32 s43, s42, 0x10001
    s_and_b32 s48, s42, 1
    s_lshl_b32 s48, s48, 5
    s_add_u32 s48, s48, 128
    L_R_col:
    s_mul_i32 s43, s43, 576
    s_add_u32 s41, s41, s43
    s_add_u32 s41, s41, s48
    s_lshl_b32 s41, s41, 1
    v_and_b32 v12, 7, v1
    v_lshlrev_b32 v12, 3, v12
    v_lshl_add_u32 v12, v3, 1, v12
    v_add_u32 v12, s41, v12
    v_min_u32 v12, 2302, v12
    global_load_ushort v13, v12, s[16:17]
    v_mov_b32 v48, 0
    v_mov_b32 v49, 0
    v_mov_b32 v50, 0
    v_mov_b32 v51, 0
    s_mov_b32 s43, {f32bits(-1.4426950408889634)}
    """)
    if opt["fw"]:
        a("""
        s_waitcnt vmcnt(0)
        s_add_u32 s76, s38, s46
        s_addc_u32 s77, s39, 0
        """)
        for k in range(16): a(f"s_load_dword s{16+k}, s[76:77], {128*k} glc")
        a("s_waitcnt lgkmcnt(0)")
    wait_value(L_DONE, "s58", sleep=2)
    if opt["cut"]:
        a(f"""
        s_cmp_lg_u32 s89, 0
        s_cbranch_scc1 L_wave_end
        s_mov_b64 exec, 1
        v_mov_b32 v18, {L_E1}
        ds_read_b32 v19, v18
        v_mov_b32 v18, {WS_EPOCH}
        s_waitcnt lgkmcnt(0)
        buffer_store_dword v19, v18, s[12:15], 0 offen
        s_endpgm
        """)
    stamp(4)
    a(f"""
    s_waitcnt vmcnt(0)
    v_lshlrev_b32 v22, 16, v13
    v_readfirstlane_b32 s90, v8
    s_mul_i32 s41, s89, 5
    s_add_u32 s41, s41, s49
    s_mul_i32 s41, s41, {128*16//WPL}
    s_add_u32 s41, s41, {WS_HINT}
    s_add_u32 s76, s38, s41
    s_addc_u32 s77, s39, 0
    s_mul_i32 s90, s90, 0x01010101
    s_mov_b32 s91, s90
    s_movk_i32 s53, {0 if opt["xp"] & 8 else 200}
    s_mov_b32 s51, {SPIN}
    v_mov_b32 v20, {L_CNT3}
    v_mov_b32 v21, 1
    {"s_sleep 30" if opt["xp"] & 2 else ""}
    s_cmp_eq_u32 s49, 4
    s_cbranch_scc0 L_R_full
    s_mov_b32 exec_hi, 0
    """)
    collect(4 if opt["hb"] else 2, 4, lambda: a("buffer_load_dwordx4 v[48:51], v14, s[12:15], s46 offen sc1"))
    a("""
    s_mov_b32 exec_hi, -1
    s_branch L_R_put
    L_R_full:
    """)
    collect(16 if opt["hb"] else 8, 8, lambda: a("buffer_load_dwordx4 v[48:51], v14, s[12:15], s46 offen sc1\nbuffer_load_dwordx4 v[52:55], v14, s[12:15], s46 offen offset:1024 sc1"))
    add4(48, 48, 52)
    a("L_R_put:")
    a(f"""
    v_permlane32_swap_b32 v48, v50
    v_permlane32_swap_b32 v49, v51
    v_pk_add_f32 v[48:49], v[48:49], v[50:51]
    v_permlane16_swap_b32 v48, v49
    v_add_f32 v48, v48, v49
    v_add_f32_dpp v48, v48, v48 row_ror:8 {DPPF}
    ds_write_b32 v15, v48 offset:{L_T3}
    """)
    last_arriver(2, "L_wave_end", [f"ds_read2st64_b32 v[26:27], v19 offset0:{L_T3//256+2} offset1:{L_T3//256+3}",
                                   f"ds_read_b32 v28, v19 offset:{L_T3+1024}",
                                   f"ds_read2st64_b32 v[24:25], v19 offset0:{L_T3//256} offset1:{L_T3//256+1}"], r0=20)
    stamp(5)
    a(f"""
    s_mov_b32 exec_lo, 0x00ff00ff
    s_mov_b32 exec_hi, 0x00ff00ff
    s_waitcnt lgkmcnt(1)
    v_add_f32 v26, v26, v27
    v_add_f32 v26, v26, v28
    s_waitcnt lgkmcnt(0)
    v_add_f32 v24, v24, v25
    v_cvt_pk_bf16_f32 v24, v24, v26
    v_and_b32 v26, 0xffff0000, v24
    v_mul_f32 v27, s43, v26
    v_exp_f32 v27, v27
    v_lshlrev_b32 v24, 16, v24
    v_add_f32 v27, 1.0, v27
    v_rcp_f32 v27, v27
    v_mul_f32 v26, v26, v27
    v_cvt_pk_bf16_f32 v26, v26, v26
    v_and_b32 v26, 0xffff0000, v26
    v_mul_f32 v26, v26, v24
    v_cvt_pk_bf16_f32 v26, v26, v26
    v_and_b32 v26, 0xffff0000, v26
    v_add_f32 v26, v26, v22
    v_cvt_pk_bf16_f32 v26, v26, v26
    global_store_short v12, v26, s[34:35]
    s_cmp_lg_u32 s89, 0
    s_cbranch_scc1 L_R_done
    s_mov_b64 exec, 1
    v_mov_b32 v18, {L_E1}
    ds_read_b32 v19, v18
    v_mov_b32 v18, {WS_EPOCH}
    s_waitcnt lgkmcnt(0)
    buffer_store_dword v19, v18, s[12:15], 0 offen
    L_R_done:
    """)
    stamp(6)
    finish_wave()

    a("L_abort:")
    if stamps:
        a("s_mov_b32 s74, -1")
        a(f"""
        L_dump:
        s_mov_b64 exec, -1
        s_waitcnt lgkmcnt(0)
        s_lshl_b32 s41, s2, 4
        s_add_u32 s41, s41, s3
        s_add_u32 s41, s41, 1
        s_lshl_b32 s41, s41, 5
        s_add_u32 s41, s41, {WS_STAMP}
        v_mov_b32 v9, s41
        """)
        for i in range(8): a(f"v_mov_b32 v{i}, s{60+2*i}")
        a("""
        s_mov_b64 exec, 1
        buffer_store_dwordx4 v[0:3], v9, s[12:15], 0 offen
        buffer_store_dwordx4 v[4:7], v9, s[12:15], 0 offen offset:16
        """)
    a("s_endpgm")
    body = a.finish()
    init = "\n".join(f"    s_mov_b32 s{60+2*i}, 0" for i in range(1, 8)) + "\n" if stamps else ""
    hdr = open("cdna_kernels/" + NAME + ".s.ref").read().split("; Override launch")[0]
    return f"""{hdr}; @launch grid=(256,1,1) block=({NW*64},1,1) lds={LDS_BYTES}
.amdgcn_target "amdgcn-amd-amdhsa--gfx950"
.text
.globl {NAME}_kernel
.p2align 12
.p2align 8
.type {NAME}_kernel,@function
{NAME}_kernel:
{init}{body}
KERNEL_END:
.section .rodata,"a"
.p2align 6
.amdhsa_kernel {NAME}_kernel
  .amdhsa_next_free_vgpr 128
  .amdhsa_next_free_sgpr 100
  .amdhsa_accum_offset 128
  .amdhsa_group_segment_fixed_size 0
  .amdhsa_kernarg_size 96
  .amdhsa_user_sgpr_count 2
  .amdhsa_user_sgpr_kernarg_segment_ptr 1
  .amdhsa_system_sgpr_workgroup_id_x 1
.end_amdhsa_kernel
"""

THREE = sum(1 << s for s in range(9) if (16 * s + 15) // 9 - (16 * s) // 9 == 2)

def emit(name, stamps, opt):
    import hb, subprocess
    open(name + ".s", "w").write(gen(stamps, opt)); hb.build(name + ".s")
    r = subprocess.run([sys.executable, "../cdna_kernels/cdna_unwritten_srd_check.py", name + ".co", "--entry", NAME + "_kernel"], capture_output=True, text=True)
    if ": ok:" not in r.stdout: print(r.stdout[-2500:])

if __name__ == "__main__":
    emit("k26", False, {}); emit("ks26", True, {})
    print("built", hex(THREE))
```
